```python
import torch

def _softmax(x, axis=-1):
    return torch.softmax(x, dim=axis)
def _gelu(x):
    return torch.nn.functional.gelu(x, approximate="tanh")
def _silu(x):
    return torch.nn.functional.silu(x)
def _sigmoid(x):
    return torch.sigmoid(x)
def _layernorm(x, axis=-1, eps=1e-5):
    m = x.mean(dim=axis, keepdim=True)
    v = x.var(dim=axis, keepdim=True, unbiased=False)
    return (x - m) / torch.sqrt(v + eps)
def _scatter_add(tgt, idx, src, axis=0):
    return tgt.clone().index_add_(axis, idx, src)
def _segment_sum(src, seg, n):
    out = torch.zeros((n,) + src.shape[1:], dtype=src.dtype)
    return out.index_add_(0, seg, src)
def _pad(x, pw):
    flat = tuple(v for pair in reversed(pw) for v in pair)
    return torch.nn.functional.pad(x, flat)

kernel_name = 'recurrent_scan__grouped_kv_mqa__glu_gated_swiglu__prompt'

def setup_inputs():

    _w = (lambda a: (lambda t: t.to(torch.bfloat16) if t.is_floating_point() else t)(torch.as_tensor(a)))
    def _A_setup():
        B, S, D, H = 1, 2048, 576, 32
        Dh = D // H
        return {
            "x": _w((lambda *s: torch.randn(*s, dtype=torch.bfloat16) * 0.05)(B, S, D)),
            "wq": _w((lambda *s: torch.randn(*s, dtype=torch.bfloat16) * 0.2)(D, H * Dh)),
            "wk": _w((lambda *s: torch.randn(*s, dtype=torch.bfloat16) * 0.2)(D, Dh)),
            "wv": _w((lambda *s: torch.randn(*s, dtype=torch.bfloat16) * 0.2)(D, Dh)),
            "wo": _w((lambda *s: torch.randn(*s, dtype=torch.bfloat16) * 0.2)(H * Dh, D)),
        }
    _A_in = _A_setup()

    def _B_setup():
        B, S, D, F = 1, 2048, 576, 4608
        return {
            "x": _w((lambda *s: torch.randn(*s, dtype=torch.bfloat16) * 0.05)(B, S, D)),
            "w1": _w((lambda *s: torch.randn(*s, dtype=torch.bfloat16) * 0.1)(D, F) * (2.0 / D) ** 0.5),
            "w3": _w((lambda *s: torch.randn(*s, dtype=torch.bfloat16) * 0.1)(D, F) * (2.0 / D) ** 0.5),
            "w2": _w((lambda *s: torch.randn(*s, dtype=torch.bfloat16) * 0.1)(F, D) * (2.0 / F) ** 0.5),
        }
    _B_in = _B_setup()

    return {
        "A_x": _A_in["x"],
        "A_wq": _A_in["wq"],
        "A_wk": _A_in["wk"],
        "A_wv": _A_in["wv"],
        "A_wo": _A_in["wo"],
        "B_x": _B_in["x"],
        "B_w1": _B_in["w1"],
        "B_w3": _B_in["w3"],
        "B_w2": _B_in["w2"],
    }

def reference(A_x, A_wq, A_wk, A_wv, A_wo, B_x, B_w1, B_w3, B_w2):
    def _A_ref(x, wq, wk, wv, wo):
        B, S, D = x.shape
        H = 32
        Dh = D // H
        q = (lambda x, *d: x.permute(*d))((x @ wq).reshape(B, S, H, Dh), 0, 2, 1, 3)
        k = x @ wk
        v = x @ wv
        scores = torch.einsum("bhqd,bkd->bhqk", q, k) * (Dh ** -0.5)
        p = _softmax(scores, axis=-1)
        o = torch.einsum("bhqk,bkd->bhqd", p, v)
        return (lambda x, *d: x.permute(*d))(o, 0, 2, 1, 3).reshape(B, S, H * Dh) @ wo

    def _B_ref(x, w1, w3, w2):
        gate = torch.einsum("bsd,df->bsf", x, w1)
        up = torch.einsum("bsd,df->bsf", x, w3)
        h = _silu(gate) * up
        out = torch.einsum("bsf,fd->bsd", h, w2)
        return out

    x = A_x
    xn = _layernorm(x, axis=-1)
    s = _A_ref(xn, A_wq, A_wk, A_wv, A_wo)
    g = _silu(_B_ref(xn, B_w1, B_w3, B_w2))
    return x + s * g
```

```python
H_OFF   = 0x0000000
W2R_OFF = 0x1200000
WOR_OFF = 0x1710000
O_OFF   = 0x1800000
Q_OFF   = 0x1A40000
KV_OFF  = 0x1C80000
REC = 2304
K2_IN, V_IN = 1024, 1152
KV_BYTES = 147456
WS_BYTES = 0x2000000
import struct
def f32(x):
    return '0x%08x' % struct.unpack('<I', struct.pack('<f', x))[0]
LOG2E = 1.4426950408889634
QSCALE = (18 ** -0.5) * LOG2E
STAMP_A = 0x1D00000
STAMP_B = 0x1D80000
import os
STAMPS = bool(os.environ.get('STAMPS'))
FLAG_OFF = 0x1CC0000
```

```python
class Emit:
    def __init__(self):
        self.lines = []
        self.vm = []
        self.lg = []
        self.vm_done = 0
        self.lg_done = 0
    def raw(self, s):
        for l in s.strip('\n').split('\n'):
            self.lines.append(l if l.endswith(':') or l.startswith('.') or l.startswith(';') else '    ' + l.strip())
    def i(self, s):
        self.lines.append('    ' + s)
    def label(self, s):
        self.lines.append(s + ':')
    def vmop(self, s, tag=None):
        self.i(s); self.vm.append(tag)
    def vmcount(self, n, tag=None):
        self.vm += [tag] * n
    def lgop(self, s, tag=None):
        self.i(s); self.lg.append(tag)
    def _last(self, lst, tags):
        idx = -1
        for t in tags:
            found = [k for k, x in enumerate(lst) if x == t]
            assert found, f'tag {t} never issued'
            idx = max(idx, found[-1])
        return idx
    def need(self, vm=(), lg=()):
        parts = []
        if vm:
            idx = self._last(self.vm, vm)
            if idx >= self.vm_done:
                n = len(self.vm) - 1 - idx
                if n < 63:
                    parts.append(f'vmcnt({n})')
                self.vm_done = idx + 1
        if lg:
            idx = self._last(self.lg, lg)
            if idx >= self.lg_done:
                n = len(self.lg) - 1 - idx
                n = min(n, 15)
                parts.append(f'lgkmcnt({n})')
                self.lg_done = len(self.lg) - n
        if parts:
            self.i('s_waitcnt ' + ' '.join(parts))
    def drain(self, vm=False, lg=False):
        parts = []
        if vm: parts.append('vmcnt(0)'); self.vm_done = len(self.vm)
        if lg: parts.append('lgkmcnt(0)'); self.lg_done = len(self.lg)
        self.i('s_waitcnt ' + ' '.join(parts))
    nstamp = 0
    stamps_on = False
    def stamp(self, real=False):
        if not self.stamps_on: return
        self.i(('s_memrealtime' if real else 's_memtime') + ' s[64:65]')
        self.drain(lg=True)
        self.i(f's_mov_b32 s{66 + self.nstamp}, s64')
        self.nstamp += 1
        assert self.nstamp <= 32
    def stamp_flush(self, sWS, sWAVE, off):
        if not self.stamps_on: return
        self.i('s_lshl_b32 s64, s2, 3')
        self.i(f's_add_u32 s64, s64, s{sWAVE}')
        self.i('s_lshl_b32 s64, s64, 7')
        self.i(f's_add_u32 s64, s64, {off}')
        self.i('v_mov_b32 v1, 0')
        self.i('s_mov_b64 exec, 1')
        for k in range(self.nstamp):
            self.i(f'v_mov_b32 v2, s{66 + k}')
            self.i(f'buffer_store_dword v2, v1, s[{sWS}:{sWS+3}], s64 offen offset:{4 * k}')
        self.i('s_mov_b64 exec, -1')
    def text(self):
        return '\n'.join(self.lines) + '\n'

def vr(a, n=4):
    return f'v[{a}:{a+n-1}]'
def sr(a, n=4):
    return f's[{a}:{a+n-1}]'
```

```python
from emit import *
from common import *
import os
EXP = os.environ.get('EXP', '').split(',')

SLOT = 24576
XS = 3 * SLOT
XS2 = 5 * SLOT
CST = XS2 + 32768
KA_LDS = CST + 2560
BUF = [0, 1, 2, 0, 1, 3, 4, 2, 0, 1, 3, 4, 2, 0, 1]

vL16, vTA0, vTA1, vCS, vDMA, vT0 = 0, 1, 2, 3, 4, 5
vCF = 8
vXG0, vXG1, vXR0, vXR1 = 12, 13, 14, 15
vNM = [12, 13]; vC = [14, 15]; vIR2 = [6, 7]
def X(tb, ks): return 16 + (ks * 2 + tb) * 4
def ACC(buf, b, tb): return 160 + buf * 32 + (b * 2 + tb) * 4
NAF = 4
def AF(n): return 224 + (n % NAF) * 4
vONE = 240; vCA = 244
vCV = 248
DSP = int(os.environ.get('DSP', 16))
W1POS = int(os.environ.get('W1POS', -1))
W2POS = int(os.environ.get('W2POS', 22))
MAPPING = int(os.environ.get('MAPPING', 2))
sX, sW, sQ, sWS, sRL = 24, 28, 32, 36, 40
sWAVE, sTM, sFN, sQI = 44, 45, 46, 47
sXO = [48, 49, 50, 51]
sWM0, sWSO, sT0, sT1, sXM0, sHO, sSCALE, sT2 = 52, 53, 54, 55, 56, 57, 58, 59
sT3, sT4 = 60, 61
sRLD, sQSO = 62, 63
sKVM0, sKVSO = 14, 15

def gen_ka(name):
    e = Emit()
    e.stamps_on = STAMPS
    I = lambda s: (lambda: e.i(s))
    LT = 3 - MAPPING
    e.raw(f'''
.p2align 8
.globl {name}
.type {name},@function
{name}:
s_cmp_ge_u32 s2, 256
s_cbranch_scc1 KA_END
s_load_dwordx8 s[4:11], s[0:1], 0
s_load_dwordx2 s[12:13], s[0:1], 32
s_load_dwordx4 s[16:19], s[0:1], 48
s_load_dwordx2 s[20:21], s[0:1], 64
s_load_dwordx2 s[22:23], s[0:1], 88
v_lshrrev_b32 v1, 6, v0
v_and_b32 v0, 63, v0
v_readfirstlane_b32 s{sWAVE}, v1
s_and_b32 s{sT0}, s2, 7
s_lshr_b32 s{sT1}, s2, 3
s_lshr_b32 s{sTM}, s{sT1}, {5 - LT}
s_and_b32 s{sT2}, s{sT0}, {(1 << MAPPING) - 1}
s_lshl_b32 s{sT2}, s{sT2}, {LT}
s_add_u32 s{sTM}, s{sTM}, s{sT2}
s_and_b32 s{sT1}, s{sT1}, {(1 << (5 - LT)) - 1}
s_lshr_b32 s{sT0}, s{sT0}, {MAPPING}
s_lshl_b32 s{sFN}, s{sT0}, {5 - LT}
s_add_u32 s{sFN}, s{sFN}, s{sT1}
s_and_b32 s{sT1}, s{sFN}, 3
s_lshl_b32 s{sQI}, s{sT1}, 3
s_lshr_b32 s{sT1}, s{sFN}, 2
s_add_u32 s{sQI}, s{sQI}, s{sT1}
; x DMA source: row=l/8, pos=l%8 : row*1152 + ((pos ^ (row>>1))*16)
v_lshrrev_b32 v6, 4, v0
v_and_b32 v10, 7, v0
v_xor_b32 v6, v6, v10
v_lshrrev_b32 v10, 3, v0
v_mul_u32_u24 v{vXG0}, 1152, v10
v_lshl_add_u32 v{vXG0}, v6, 4, v{vXG0}
v_xor_b32 v{vXG1}, 64, v{vXG0}
s_mul_i32 s{sXM0}, s{sWAVE}, 10240
s_add_u32 s{sXM0}, s{sXM0}, {XS}
s_lshl_b32 s{sT0}, s{sTM}, 3
s_add_u32 s{sT0}, s{sT0}, s{sWAVE}
s_mul_i32 s{sXO[0]}, s{sT0}, {32*1152}
s_add_u32 s{sXO[1]}, s{sXO[0]}, {8*1152}
s_add_u32 s{sXO[2]}, s{sXO[0]}, {16*1152}
s_add_u32 s{sXO[3]}, s{sXO[0]}, {24*1152}
; H store base: ((tg*144)*4 + 2*(w%2))*1024, tg = (8tm+w)/2
s_lshr_b32 s{sT1}, s{sT0}, 1
s_mul_i32 s{sHO}, s{sT1}, {144*4096}
s_and_b32 s{sT1}, s{sWAVE}, 1
s_lshl_b32 s{sT1}, s{sT1}, 11
s_add_u32 s{sHO}, s{sHO}, s{sT1}
; W DMA source lane part: row=l/4, sigma = (l%4) ^ (2*(row>>3)) ; v8=row, v9=sigma
v_lshrrev_b32 v8, 2, v0
v_lshrrev_b32 v9, 4, v0
v_and_b32 v9, 2, v9
v_and_b32 v6, 3, v0
v_xor_b32 v9, v9, v6
v_mul_u32_u24 v{vDMA}, 9216, v8
v_lshl_add_u32 v{vDMA}, v9, 4, v{vDMA}
s_and_b32 s{sT0}, s{sWAVE}, 3
s_lshr_b32 s{sT1}, s{sWAVE}, 2
s_mul_i32 s{sWM0}, s{sT1}, 12288
s_lshl_b32 s{sT1}, s{sT0}, 10
s_add_u32 s{sWM0}, s{sWM0}, s{sT1}
s_mul_i32 s{sWSO}, s{sT0}, {16*9216}
s_lshl_b32 s{sT1}, s{sFN}, 8
s_add_u32 s{sWSO}, s{sWSO}, s{sT1}
s_mul_i32 s{sQSO}, s{sT0}, {16*1152}
s_lshl_b32 s{sT1}, s{sQI}, 6
s_add_u32 s{sQSO}, s{sQSO}, s{sT1}
v_mul_u32_u24 v250, 1152, v8
v_lshl_add_u32 v250, v9, 4, v250
s_lshl_b32 s{sT1}, s{sWAVE}, 2
s_and_b32 s{sT1}, s{sT1}, 8
v_and_b32 v6, 15, v0
v_xor_b32 v6, s{sT1}, v6
v_lshrrev_b32 v10, 4, v0
v_mul_u32_u24 v10, 36, v10
v_lshl_add_u32 v10, v6, 2, v10
v_cmp_gt_u32 vcc, 9, v6
v_mov_b32 v6, 0x7fffff00
s_mul_i32 s{sKVSO}, s{sWAVE}, 144
v_cndmask_b32 v251, v6, v10, vcc
s_lshl_b32 s{sKVM0}, s{sWAVE}, 8
v_mul_u32_u24 v6, 9216, v8
v_and_b32 v10, 1, v9
v_lshl_add_u32 v6, v10, 4, v6
s_mul_i32 s{sT0}, s{sT0}, {16*9216}
s_lshl_b32 s{sT1}, s{sFN}, 5
s_add_u32 s{sT0}, s{sT0}, s{sT1}
s_add_u32 s{sT0}, s{sT0}, 8192
v_add_u32 v6, s{sT0}, v6
v_cmp_gt_u32 vcc, 2, v9
s_waitcnt lgkmcnt(0)
s_mov_b32 s{sX}, s4
s_mov_b32 s{sX+1}, s5
s_mov_b32 s{sX+2}, {2048*1152}
s_mov_b32 s{sX+3}, 0x00020000
''')
    e.stamp(True); e.stamp()
    def xdma(pi):
        cgp, tb = divmod(pi, 2)
        items = []
        for h in range(2):
            def f(h=h):
                if pi >= 5 and h == 0:
                    pc, pt = divmod(pi - 5, 2)
                    e.need(lg=[('xf', pt, 2 * pc + 1)])
                e.i(f's_add_u32 m0, s{sXM0}, {(pi % 5) * 2048 + h * 1024 - cgp * 128}')
                e.i('s_nop 0')
                e.vmop(f'buffer_load_dwordx4 v{vXG1 if h else vXG0}, {sr(sX)}, s{sXO[2 * tb + h]} offen offset:{cgp * 128} lds', ('x', pi))
            items.append(f)
        return items
    for pi in (0, 1):
        for it in xdma(pi): it()
    e.raw(f'''
v_mov_b32 v248, s18
v_mov_b32 v249, s19
v_mov_b32 v8, s16
v_mov_b32 v10, s17
v_cndmask_b32 v248, v248, v8, vcc
v_cndmask_b32 v249, v249, v10, vcc
v_add_co_u32 v248, vcc, v248, v6
s_nop 1
v_addc_co_u32 v249, vcc, 0, v249, vcc
s_mov_b32 s{sQ}, s6
s_mov_b32 s{sQ+1}, s7
s_mov_b32 s{sQ+2}, {576*1152}
s_mov_b32 s{sQ+3}, 0x00020000
s_mov_b32 s{sSCALE}, {f32(-QSCALE / LOG2E)}
s_cmp_lt_u32 s{sQI}, 18
s_cbranch_scc1 KA_ROLE_DONE
s_mov_b32 s{sSCALE}, {f32(-1.0 / LOG2E)}
s_mov_b32 s{sQ+2}, 0
s_cmp_gt_u32 s{sQI}, 19
s_cbranch_scc1 KA_ROLE_DONE
s_cmp_eq_u32 s{sQI}, 18
s_cselect_b32 s{sQ}, s8, s10
s_cselect_b32 s{sQ+1}, s9, s11
s_mov_b32 s{sQ+2}, {576*36}
KA_ROLE_DONE:
''')
    def c0_slot(s):
        e.i(f's_cmp_lt_u32 s{sWAVE}, 4')
        e.i(f's_cbranch_scc0 KA_P{s}B')
        for i in range(3):
            e.i(f's_add_u32 m0, s{sWM0}, {s * SLOT + i * 4096}')
            e.i('s_nop 0')
            e.i(f'global_load_lds_dwordx4 v[248:249], off')
            e.i(f'v_add_co_u32 v248, vcc, {64 * 9216}, v248')
            e.i('s_nop 1')
            e.i(f'v_addc_co_u32 v249, vcc, 0, v249, vcc')
        e.i(f's_cmp_eq_u32 s{sQ+2}, {576*36}')
        e.i(f's_cbranch_scc1 KA_P{s}K')
        e.i(f's_branch KA_P{s}E')
        e.label(f'KA_P{s}B')
        e.i(f's_cmp_eq_u32 s{sQ+2}, {576*36}')
        e.i(f's_cbranch_scc1 KA_P{s}K')
        for i in range(3):
            e.i(f's_add_u32 m0, s{sWM0}, {s * SLOT + i * 4096}')
            e.i(f's_add_u32 s{sT2}, s{sQSO}, {(192 * s + 64 * i) * 1152}')
            e.i(f'buffer_load_dwordx4 v250, {sr(sQ)}, s{sT2} offen lds')
        e.i(f's_branch KA_P{s}E')
        e.label(f'KA_P{s}K')
        for i in range(6):
            e.i(f's_add_u32 m0, s{sKVM0}, {s * SLOT + 12288 + i * 2048}')
            e.i(f's_add_u32 s{sT2}, s{sKVSO}, {(6 * s + i) * 8 * 144}')
            e.i(f'buffer_load_dword v251, {sr(sQ)}, s{sT2} offen lds')
        e.label(f'KA_P{s}E')
        e.vmcount(3, ('W', s))
    c0_slot(0)
    e.i('s_barrier')
    for pi in (2, 3, 4):
        for it in xdma(pi): it()
        if pi == 3 and W1POS < 0: c0_slot(1)
    e.raw(f'''
s_cmp_lt_u32 s{sWAVE}, 4
s_cselect_b32 s{sW}, s16, s18
s_cselect_b32 s{sW+1}, s17, s19
s_mov_b32 s{sW+2}, {576*9216}
s_mov_b32 s{sW+3}, 0x00020000
s_mov_b32 s{sWS}, s22
s_mov_b32 s{sWS+1}, s23
s_mov_b32 s{sWS+2}, {WS_BYTES}
s_mov_b32 s{sWS+3}, 0x00020000
; tr-read base: g=l/16,i=l%16: (8g+i/4)*64 + (g&1)*32 + (i%4)*8
v_lshrrev_b32 v6, 4, v0
v_lshlrev_b32 v{vTA0}, 9, v6
v_and_b32 v6, 1, v6
v_lshl_add_u32 v{vTA0}, v6, 5, v{vTA0}
v_bfe_u32 v6, v0, 2, 2
v_lshl_add_u32 v{vTA0}, v6, 6, v{vTA0}
v_and_b32 v6, 3, v0
v_lshl_add_u32 v{vTA0}, v6, 3, v{vTA0}
v_xor_b32 v{vTA1}, 32, v{vTA0}
s_and_b32 s{sT0}, s{sWAVE}, 1
s_lshl_b32 s{sT0}, s{sT0}, 5
v_xor_b32 v{vCS}, s{sT0}, v{vTA0}
s_bfe_u32 s{sT0}, s{sWAVE}, 0x10001
s_mul_i32 s{sT0}, s{sT0}, 12288
s_lshr_b32 s{sT1}, s{sWAVE}, 2
s_mul_i32 s{sT1}, s{sT1}, 6144
s_add_u32 s{sT0}, s{sT0}, s{sT1}
v_add_u32 v{vCS}, s{sT0}, v{vCS}
; x staging read addr: t=l%16, kg=l/16: base + t*128 + ((kg ^ (t>>1))*16)
v_bfe_u32 v6, v0, 1, 3
v_lshrrev_b32 v10, 4, v0
v_xor_b32 v6, v6, v10
v_lshlrev_b32 v6, 4, v6
v_and_b32 v10, 15, v0
v_lshl_add_u32 v6, v10, 7, v6
v_add_u32 v{vXR0}, s{sXM0}, v6
v_xor_b32 v{vXR1}, 64, v{vXR0}
v_mov_b32 v{vONE}, 0x3f803f80
v_mov_b32 v{vONE+1}, 0x3f803f80
v_mov_b32 v{vONE+2}, 0x3f803f80
v_mov_b32 v{vONE+3}, 0x3f803f80
v_lshlrev_b32 v{vL16}, 4, v0
''')

    def zero_flags():
        e.raw(f'''
s_lshl_b32 s{sT0}, s2, 3
s_add_u32 s{sT0}, s{sT0}, s{sWAVE}
s_cmp_ge_u32 s{sT0}, 8
s_cbranch_scc1 KA_NOZ
s_lshl_b32 s{sT0}, s{sT0}, 10
s_add_u32 s{sT0}, s{sT0}, {FLAG_OFF}
v_mov_b32 v{vCF}, 0
v_mov_b32 v{vCF+1}, 0
v_mov_b32 v{vCF+2}, 0
v_mov_b32 v{vCF+3}, 0
buffer_store_dwordx4 {vr(vCF)}, v{vL16}, {sr(sWS)}, s{sT0} offen
KA_NOZ:
''')
    def dma_slot(p):
        c, ph = divmod(p, 3)
        items = []
        for i in range(3):
            def f(i=i):
                e.i(f's_add_u32 m0, s{sWM0}, {BUF[p] * SLOT + i * 4096}')
                e.i(f's_add_u32 s{sT2}, s{sWSO}, {(192 * ph + 64 * i) * 9216 + 64 * (c - 1)}')
                e.vmop(f'buffer_load_dwordx4 v{vDMA}, {sr(sW)}, s{sT2} offen lds', ('W', p))
            items.append(f)
        return items

    FR = []
    for p in range(12):
        for ksl in range(6):
            for b in range(4): FR.append((p // 3, p, ksl, b))
    for u in range(2):
        for p in (12, 13, 14):
            for ksl in range(6):
                for mat in range(2): FR.append((4, p, ksl, 2 * mat + u))
    NS = 720
    sched = [[] for _ in range(NS + 1)]
    pre = [[] for _ in range(361)]
    def place(items, a, b):
        n = len(items)
        for k, it in enumerate(items):
            sched[a + (k * (b - a)) // n].append(it)
    NOP = lambda: None

    def xread(pi):
        cgp, tb = divmod(pi, 2)
        def r0():
            e.need(vm=[('x', pi)])
            e.lgop(f'ds_read_b128 {vr(X(tb, 2 * cgp))}, v{vXR0} offset:{(pi % 5) * 2048}', ('xf', tb, 2 * cgp))
        def r1(): e.lgop(f'ds_read_b128 {vr(X(tb, 2 * cgp + 1))}, v{vXR1} offset:{(pi % 5) * 2048}', ('xf', tb, 2 * cgp + 1))
        return [r0, r1]
    for cgp in range(1, 9):
        place(xread(2 * cgp) + xread(2 * cgp + 1), 16 * (cgp - 1) + 8, 16 * (cgp - 1) + 12)
    for pi in range(5, 18):
        pc = (pi - 5) // 2
        a = 16 * pc + 1 + 2 * ((pi - 5) & 1)
        place(xdma(pi), a, a + 2)
    if W1POS >= 0: place([lambda: c0_slot(1)], W1POS, W1POS + 1)
    place([lambda: c0_slot(2)], W2POS, W2POS + 1)

    SX = [ACC(1, 0, 0), ACC(1, 0, 1)]; SG = [ACC(1, 1, 0), ACC(1, 1, 1)]
    for ks in range(18):
        for tb in range(2):
            if 'nostat' not in EXP:
                sched[8 * ks + 1 + tb].append(I(f'v_mfma_f32_16x16x32_bf16 {vr(SX[tb])}, {vr(vONE)}, {vr(X(tb, ks))}, {0 if ks == 0 else vr(SX[tb])}'))
                sched[8 * ks + 3 + tb].append(I(f'v_mfma_f32_16x16x32_bf16 {vr(SG[tb])}, {vr(X(tb, ks))}, {vr(X(tb, ks))}, {0 if ks == 0 else vr(SG[tb])}'))
    T = [vC[0], vC[1], vIR2[0], vIR2[1]]
    fin1 = [I('s_nop 3')]
    for tb in range(2): fin1.append(I(f'v_mul_f32 v{vNM[tb]}, {f32(-1.0/576)}, v{SX[tb]}'))
    for r in range(4):
        m = sum(1 << (20 * g + r) for g in range(4))
        fin1.append(I(f's_mov_b32 vcc_lo, {m & 0xffffffff:#x}'))
        fin1.append(I(f's_mov_b32 vcc_hi, {m >> 32:#x}'))
        for tb in range(2):
            fin1.append(I(f'v_cndmask_b32 v{T[tb]}, {0 if r == 0 else "v%d" % T[tb]}, v{SG[tb] + r}, vcc'))
    sched[143] += fin1
    fin = []
    for swap in ('v_permlane32_swap_b32', 'v_permlane16_swap_b32'):
        for tb in range(2): fin.append(I(f'v_mov_b32 v{T[2 + tb]}, v{T[tb]}'))
        fin.append(I('s_nop 1'))
        for tb in range(2): fin.append(I(f'{swap} v{T[2 + tb]}, v{T[tb]}'))
        fin.append(I('s_nop 1'))
        for tb in range(2): fin.append(I(f'v_add_f32 v{T[tb]}, v{T[2 + tb]}, v{T[tb]}'))
    for tb in range(2): fin.append(I(f'v_mul_f32 v{T[2 + tb]}, v{vNM[tb]}, v{vNM[tb]}'))
    for tb in range(2): fin.append(I(f'v_mul_f32 v{T[tb]}, {f32(1.0/576)}, v{T[tb]}'))
    for tb in range(2): fin.append(I(f'v_sub_f32 v{T[tb]}, v{T[tb]}, v{T[2 + tb]}'))
    for tb in range(2): fin.append(I(f'v_max_f32 v{T[tb]}, 0, v{T[tb]}'))
    for tb in range(2): fin.append(I(f'v_add_f32 v{vIR2[tb]}, {f32(1e-5)}, v{T[tb]}'))
    for tb in range(2): fin.append(I(f'v_rsq_f32 v{T[tb]}, v{vIR2[tb]}'))
    fin.append(I('s_nop 0'))
    for tb in range(2): fin.append(I(f'v_mul_f32 v{vC[tb]}, {f32(-LOG2E)}, v{T[tb]}'))
    place(fin, 144, 160)

    def cs_rd(p, i):
        def rd():
            e.lgop(f'ds_read_b64_tr_b16 {vr(vCF, 2)}, v{vCS} offset:{i * 2048}')
            e.lgop(f'ds_read_b64_tr_b16 {vr(vCF + 2, 2)}, v{vCS} offset:{i * 2048 + 256}', ('cf', p, i))
        return rd
    def cs_mm(p, i):
        def d():
            e.need(lg=[('cf', p, i)])
            e.i(f'v_mfma_f32_16x16x32_bf16 {vr(vCA)}, {vr(vONE)}, {vr(vCF)}, {0 if (p % 3 == 0 and i == 0) else vr(vCA)}')
        return d
    def cs_wr(c):
        def ad():
            e.i(f'v_lshrrev_b32 v{vT0}, 2, v{vL16}')
            e.i(f's_lshl_b32 s{sT0}, s{sWAVE}, 6')
            e.i(f's_add_u32 s{sT0}, s{sT0}, {CST + c * 512}')
            e.i(f'v_add_u32 v{vT0}, s{sT0}, v{vT0}')
            e.i(f's_mov_b64 exec, 0xffff')
            e.lgop(f'ds_write_b32 v{vT0}, v{vCA}', ('cswr', c))
            e.i(f's_mov_b64 exec, -1')
        return ad
    def cs_move(p):
        d = (BUF[p] - BUF[p - 1]) * SLOT
        return I(f'v_add_u32 v{vCS}, {d & 0xffffffff:#x}, v{vCS}')
    for p in range(12):
        if p: sched[48 * p].append(cs_move(p))
        for i in range(3):
            sched[48 * p + 10 + 6 * i].append(cs_rd(p, i))
            sched[48 * p + 15 + 6 * i].append(cs_mm(p, i))
        if p % 3 == 2: sched[48 * p + 33].append(cs_wr(p // 3))
    t = 576 + 10
    for p in (12, 13, 14):
        sched[t - 1].append(cs_move(p))
        for i in range(3):
            sched[t].append(cs_rd(p, i)); sched[t + 4].append(cs_mm(p, i)); t += 5
    sched[t + 5].append(cs_wr(4))

    def rl_dma():
        e.raw(f'''
s_lshl_b32 s{sT0}, s{sWAVE}, 8
s_add_u32 s{sT0}, s{sT0}, s2
s_mul_i32 s{sT1}, s{sT0}, 7282
s_lshr_b32 s{sT1}, s{sT1}, 16
s_mul_i32 s{sT2}, s{sT1}, 9
s_sub_u32 s{sT2}, s{sT0}, s{sT2}
s_lshl_b32 s{sRLD}, s{sT0}, 12
s_add_u32 s{sRLD}, s{sRLD}, {W2R_OFF}
s_mov_b32 s{sRL+3}, 0x00020000
s_lshl_b32 s{sT2}, s{sT2}, 7
s_lshl_b32 s{sT0}, s{sWAVE}, 12
s_add_u32 s{sT0}, s{sT0}, {XS2}
v_bfe_u32 v{vCF}, v{vL16}, 7, 1
v_mul_u32_u24 v{vCF}, 1152, v{vCF}
v_and_b32 v{vCF+1}, 0x70, v{vL16}
v_add_u32 v{vCF}, v{vCF}, v{vCF+1}
v_bfe_u32 v{vCF+1}, v{vL16}, 8, 1
v_lshrrev_b32 v{vCF+2}, 9, v{vL16}
v_mul_u32_u24 v{vCF+1}, 1152, v{vCF+1}
v_mul_u32_u24 v{vCF+2}, 1152, v{vCF+2}
s_cmp_lt_u32 s{sT1}, 144
s_cbranch_scc0 KA_RLWO
s_mov_b32 s{sRL}, s20
s_mov_b32 s{sRL+1}, s21
s_mov_b32 s{sRL+2}, {4608*1152}
s_mul_i32 s{sT1}, s{sT1}, {32*1152}
s_add_u32 s{sT2}, s{sT2}, s{sT1}
v_lshl_add_u32 v{vCF+3}, v{vCF+1}, 1, v{vCF}
v_lshl_add_u32 v{vCF+3}, v{vCF+2}, 4, v{vCF+3}
''')
        for i in range(4):
            e.i(f's_add_u32 m0, s{sT0}, {i * 1024}')
            e.i(f's_add_u32 s{sT1}, s{sT2}, {4 * i * 1152}')
            e.i(f'buffer_load_dwordx4 v{vCF+3}, {sr(sRL)}, s{sT1} offen lds')
        e.raw(f'''
s_branch KA_RLE
KA_RLWO:
s_mov_b32 s{sRL}, s12
s_mov_b32 s{sRL+1}, s13
s_cmp_lt_u32 s{sT1}, 162
s_cselect_b32 s{sRL+2}, {576*1152}, 0
s_cselect_b32 s{sRLD}, s{sRLD}, 0x7f000000
s_sub_u32 s{sT1}, s{sT1}, 144
s_lshl_b32 s{sT1}, s{sT1}, 2
''')
        for i in range(4):
            e.raw(f'''
s_add_u32 s{sT3}, s{sT1}, {i}
s_mul_i32 s{sT4}, s{sT3}, 7282
s_lshr_b32 s{sT4}, s{sT4}, 16
s_mul_i32 vcc_lo, s{sT4}, 9
s_sub_u32 s{sT3}, s{sT3}, vcc_lo
s_mul_i32 s{sT4}, s{sT4}, 72
s_lshr_b32 vcc_lo, s{sT3}, 1
s_mul_i32 vcc_lo, vcc_lo, 18
s_and_b32 vcc_hi, s{sT3}, 1
s_lshl_b32 vcc_hi, vcc_hi, 2
s_add_u32 vcc_lo, vcc_lo, vcc_hi
s_cmp_eq_u32 s{sT3}, 8
s_cselect_b32 vcc_lo, 16, vcc_lo
s_add_u32 s{sT4}, s{sT4}, vcc_lo
s_mul_i32 s{sT4}, s{sT4}, 1152
s_add_u32 s{sT4}, s{sT4}, s{sT2}
s_cmp_eq_u32 s{sT3}, 8
s_cselect_b32 vcc_lo, 18, 2
s_cselect_b32 vcc_hi, 36, 8
v_mad_u32_u24 v{vCF+3}, v{vCF+1}, vcc_lo, v{vCF}
v_mad_u32_u24 v{vCF+3}, v{vCF+2}, vcc_hi, v{vCF+3}
s_add_u32 m0, s{sT0}, {i * 1024}
s_nop 0
buffer_load_dwordx4 v{vCF+3}, {sr(sRL)}, s{sT4} offen lds
''')
        e.label('KA_RLE')
        e.vmcount(4, 'rl')
    sched[48 * 4 + 34].append(rl_dma)
    sched[48 * 5 + 36].append(zero_flags)
    for q in range(4):
        def rd(q=q):
            e.need(vm=['rl'])
            e.i(f'v_lshrrev_b32 v{vT0}, 8, v{vL16}')
            e.i(f'v_lshlrev_b32 v{vT0}, 10, v{vT0}')
            e.i(f'v_and_b32 v{vCF}, 0xc0, v{vL16}')
            e.i(f'v_lshl_add_u32 v{vT0}, v{vCF}, 1, v{vT0}')
            e.i(f'v_bfe_u32 v{vCF}, v{vL16}, 4, 2')
            e.i(f'v_lshl_add_u32 v{vT0}, v{vCF}, 3, v{vT0}')
            e.i(f's_lshl_b32 s{sT0}, s{sWAVE}, 12')
            e.i(f's_add_u32 s{sT0}, s{sT0}, {XS2}')
            e.i(f'v_add_u32 v{vT0}, s{sT0}, v{vT0}')
            e.lgop(f'ds_read_b64_tr_b16 {vr(vCF, 2)}, v{vT0} offset:{q * 32}')
            e.lgop(f'ds_read_b64_tr_b16 {vr(vCF + 2, 2)}, v{vT0} offset:{q * 32 + 512}', ('rlf', q))
        def st(q=q):
            e.need(lg=[('rlf', q)])
            e.vmop(f'buffer_store_dwordx4 {vr(vCF)}, v{vL16}, {sr(sWS)}, s{sRLD} offen offset:{q * 1024}', 'rls')
        sched[48 * (7 + q) + 31].append(rd)
        sched[48 * (7 + q) + 39].append(st)

    def cs_load(c, b0, b1, t0, t1):
        def f():
            e.i(f'v_lshrrev_b32 v{vT0}, 4, v{vL16}')
            e.i(f'v_and_b32 v{vT0}, 48, v{vT0}')
            e.i(f'v_add_u32 v{vT0}, {CST + c * 512}, v{vT0}')
            e.lgop(f'ds_read_b128 {vr(vCV)}, v{vT0} offset:{b0 * 64}')
            e.lgop(f'ds_read_b128 {vr(t0)}, v{vT0} offset:{256 + b0 * 64}')
            e.lgop(f'ds_read_b128 {vr(vCV + 4)}, v{vT0} offset:{b1 * 64}')
            e.lgop(f'ds_read_b128 {vr(t1)}, v{vT0} offset:{256 + b1 * 64}', ('cv', c, b0))
        def g():
            e.need(lg=[('cv', c, b0)])
            for r in range(4): e.i(f'v_add_f32 v{vCV + r}, v{vCV + r}, v{t0 + r}')
        def h():
            for r in range(4): e.i(f'v_add_f32 v{vCV + 4 + r}, v{vCV + 4 + r}, v{t1 + r}')
        return f, g, h
    def swiglu(c, bg, bu, tb, outs):
        buf = c & 1
        g = ACC(buf, bg, tb); u = ACC(buf, bu, tb)
        it = []
        for r in range(4): it.append(I(f'v_fma_f32 v{g + r}, v{vNM[tb]}, v{vCV + r}, v{g + r}'))
        for r in range(4): it.append(I(f'v_fma_f32 v{u + r}, v{vNM[tb]}, v{vCV + 4 + r}, v{u + r}'))
        for r in range(4): it.append(I(f'v_mul_f32 v{u + r}, v{g + r}, v{u + r}'))
        for r in range(4): it.append(I(f'v_mul_f32 v{g + r}, v{vC[tb]}, v{g + r}'))
        for r in range(4): it.append(I(f'v_exp_f32 v{g + r}, v{g + r}'))
        for r in range(4): it.append(I(f'v_fma_f32 v{g + r}, v{g + r}, v{vIR2[tb]}, v{vIR2[tb]}'))
        for r in range(4): it.append(I(f'v_rcp_f32 v{g + r}, v{g + r}'))
        for r in range(4): it.append(I(f'v_mul_f32 v{u + r}, v{g + r}, v{u + r}'))
        it.append(I(f'v_cvt_pk_bf16_f32 v{outs[0]}, v{u}, v{u + 1}'))
        it.append(I(f'v_cvt_pk_bf16_f32 v{outs[1]}, v{u + 2}, v{u + 3}'))
        return it
    def head(c, b0, b1, s0):
        f, g, h = cs_load(c, b0, b1, vCA, vCF)
        sched[s0].append(f); sched[s0 + 5].append(g); sched[s0 + 6].append(h)
    def epi_half(c, half, with_load):
        buf = c & 1
        it = []
        if with_load:
            f, g, h = cs_load(c, 1, 3, ACC(buf, 2, 0), ACC(buf, 2, 1))
            it += [f, NOP, NOP, NOP, NOP, g, h]
        for tb in range(2):
            o = ACC(buf, 0, tb)
            it += swiglu(c, half, 2 + half, tb, [o + 2 * half, o + 2 * half + 1])
            if half == 1:
                def st_(tb=tb, o=o):
                    e.i(f's_lshl_b32 s{sT0}, s{sFN}, 14')
                    e.i(f's_add_u32 s{sT0}, s{sT0}, s{sHO}')
                    e.i(f's_add_u32 s{sT0}, s{sT0}, {H_OFF + (c - 1) * 4096 + tb * 1024}')
                    e.vmop(f'buffer_store_dwordx4 {vr(o)}, v{vL16}, {sr(sWS)}, s{sT0} offen', 'hs')
                it.append(st_)
        return it
    def epi_c0():
        it = []
        for tb in range(2):
            o = ACC(0, 0, tb)
            it += swiglu(0, 0, 1, tb, [o, o + 1])
            def st_(tb=tb, o=o):
                e.i(f's_lshr_b32 s{sT0}, s{sFN}, 1')
                e.i(f's_lshl_b32 s{sT0}, s{sT0}, 12')
                e.i(f's_and_b32 s{sT1}, s{sFN}, 1')
                e.i(f's_lshl_b32 s{sT1}, s{sT1}, 3')
                e.i(f's_add_u32 s{sT0}, s{sT0}, s{sT1}')
                e.i(f's_add_u32 s{sT0}, s{sT0}, s{sHO}')
                e.i(f's_add_u32 s{sT0}, s{sT0}, {H_OFF + 128 * 4096 + tb * 1024}')
                e.vmop(f'buffer_store_dwordx2 {vr(o, 2)}, v{vL16}, {sr(sWS)}, s{sT0} offen', 'hs')
            it.append(st_)
        f, g, h = cs_load(0, 2, 3, ACC(0, 1, 0), ACC(0, 1, 1))
        it += [f, NOP, NOP, NOP, NOP, g, h]
        vR = [ACC(0, 1, 0), ACC(0, 1, 1)]
        for tb in range(2): it.append(I(f'v_mul_f32 v{vR[tb]}, s{sSCALE}, v{vC[tb]}'))
        for tb in range(2):
            for b in (2, 3):
                a = ACC(0, b, tb)
                for r in range(4): it.append(I(f'v_fma_f32 v{a + r}, v{vNM[tb]}, v{vCV + 4 * (b - 2) + r}, v{a + r}'))
                for r in range(4): it.append(I(f'v_mul_f32 v{a + r}, v{vR[tb]}, v{a + r}'))
                it.append(I(f'v_cvt_pk_bf16_f32 v{a}, v{a}, v{a + 1}'))
                it.append(I(f'v_cvt_pk_bf16_f32 v{a + 1}, v{a + 2}, v{a + 3}'))
        def stores():
            A = lambda b, tb: ACC(0, b, tb)
            t0, t1, t2 = vCV, vCV + 1, vCV + 2
            e.raw(f'''
s_cmp_gt_u32 s{sQI}, 19
s_cbranch_scc1 KA_QKV_DONE
v_bfe_u32 v{t0}, v{vL16}, 4, 4
v_lshrrev_b32 v{t1}, 8, v{vL16}
s_lshl_b32 s{sT0}, s{sTM}, 3
s_add_u32 s{sT0}, s{sT0}, s{sWAVE}
s_cmp_lt_u32 s{sQI}, 18
s_cbranch_scc0 KA_KV
v_mul_u32_u24 v{t2}, 1152, v{t0}
v_lshl_add_u32 v{t2}, v{t1}, 3, v{t2}
s_lshl_b32 s{sT1}, s{sQI}, 6
s_add_u32 s{sT1}, s{sT1}, {Q_OFF}
s_add_u32 s{sT0}, s{sT1}, s{sXO[0]}
s_add_u32 s{sT1}, s{sT1}, s{sXO[2]}
buffer_store_dwordx2 {vr(A(2,0),2)}, v{t2}, {sr(sWS)}, s{sT0} offen
buffer_store_dwordx2 {vr(A(3,0),2)}, v{t2}, {sr(sWS)}, s{sT0} offen offset:32
buffer_store_dwordx2 {vr(A(2,1),2)}, v{t2}, {sr(sWS)}, s{sT1} offen
buffer_store_dwordx2 {vr(A(3,1),2)}, v{t2}, {sr(sWS)}, s{sT1} offen offset:32
s_branch KA_QKV_DONE
KA_KV:
s_cmp_eq_u32 s{sQI}, 18
s_cbranch_scc0 KA_V
; K1[tile][half=rg/2][key][ (rg%2)*8 ]
v_lshrrev_b32 v{t2}, 1, v{t1}
v_lshlrev_b32 v{t2}, 9, v{t2}
v_lshl_add_u32 v{t2}, v{t0}, 4, v{t2}
v_and_b32 v{vT0}, 1, v{t1}
v_lshl_add_u32 v{t2}, v{vT0}, 3, v{t2}
s_mul_i32 s{sT1}, s{sT0}, {REC}
s_add_u32 s{sT1}, s{sT1}, {KV_OFF}
buffer_store_dwordx2 {vr(A(2,0),2)}, v{t2}, {sr(sWS)}, s{sT1} offen
buffer_store_dwordx2 {vr(A(2,1),2)}, v{t2}, {sr(sWS)}, s{sT1} offen offset:256
v_lshlrev_b32 v{t2}, 2, v{t0}
v_lshl_add_u32 v{t2}, v{t1}, 28, v{t2}
s_add_u32 s{sT1}, s{sT1}, {K2_IN}
buffer_store_dword v{A(3,0)}, v{t2}, {sr(sWS)}, s{sT1} offen
buffer_store_dword v{A(3,1)}, v{t2}, {sr(sWS)}, s{sT1} offen offset:64
s_branch KA_QKV_DONE
KA_V:
; V[kblk][half=(t/4)%2][d][j=4(t/8)+t%4] : off = half*288 + d*16 + j*2 , d = 4rg+i
v_bfe_u32 v{t2}, v{t0}, 2, 1
v_mul_u32_u24 v{t2}, 288, v{t2}
v_lshrrev_b32 v{vT0}, 3, v{t0}
v_lshl_add_u32 v{t2}, v{vT0}, 3, v{t2}
v_and_b32 v{vT0}, 3, v{t0}
v_lshl_add_u32 v{t2}, v{vT0}, 1, v{t2}
v_lshl_add_u32 v{vT0}, v{t1}, 28, v{t2}
v_lshl_add_u32 v{t2}, v{t1}, 6, v{t2}
s_mul_i32 s{sT1}, s{sT0}, {REC}
s_add_u32 s{sT1}, s{sT1}, {KV_OFF + V_IN}
''')
            for tb in range(2):
                o = tb * 576
                e.i(f'buffer_store_short v{A(2,tb)}, v{t2}, {sr(sWS)}, s{sT1} offen offset:{o}')
                e.i(f'buffer_store_short_d16_hi v{A(2,tb)}, v{t2}, {sr(sWS)}, s{sT1} offen offset:{o + 16}')
                e.i(f'buffer_store_short v{A(2,tb)+1}, v{t2}, {sr(sWS)}, s{sT1} offen offset:{o + 32}')
                e.i(f'buffer_store_short_d16_hi v{A(2,tb)+1}, v{t2}, {sr(sWS)}, s{sT1} offen offset:{o + 48}')
                e.i(f'buffer_store_short v{A(3,tb)}, v{vT0}, {sr(sWS)}, s{sT1} offen offset:{o + 256}')
                e.i(f'buffer_store_short_d16_hi v{A(3,tb)}, v{vT0}, {sr(sWS)}, s{sT1} offen offset:{o + 272}')
            e.label('KA_QKV_DONE')
        it.append(stores)
        return it
    head(0, 0, 1, 144)
    place(epi_c0(), 162, 282)
    if 'noepi' not in EXP:
        for c in (1, 2):
            head(c, 0, 2, 144 * (c + 1))
            place(epi_half(c, 0, False) + epi_half(c, 1, True), 144 * (c + 1) + 8, 144 * (c + 1) + 138)
        head(3, 0, 2, 576)
        place(epi_half(3, 0, False) + epi_half(3, 1, True), 576 + 8, 576 + 72)
        head(4, 0, 2, 648)
        f, g, h = cs_load(4, 1, 3, ACC(0, 2, 0), ACC(0, 2, 1))
        place(epi_half(4, 0, False) + [f, NOP, NOP, NOP, g, h], 648 + 8, 719)

    D = NAF - 1
    def bar(vm, lg, dmas, stamp=False):
        def f(n):
            e.need(vm=vm, lg=lg)
            e.i('s_barrier')
            if stamp or 'allstamps' in EXP: e.stamp()
            k = 0
            for p in dmas:
                for it in dma_slot(p):
                    sched[2 * n + 2 + (DSP if (len(dmas) == 1 and dmas[0] != 3) else (1 if k < 3 else 5)) * k].append(it); k += 1
        return f
    for p in range(12):
        dm = {1: [3], 2: [4, 5, 6]}.get(p, [p + 4] if 3 <= p <= 10 else [])
        pre[24 * (p + 1) - D].append(bar([('W', p + 1)], [('cswr', p // 3)] if p % 3 == 2 else [], dm, p % 3 == 2 or p < 3))
    pre[288 + 12 - D].append(bar([('W', 13), ('W', 14)], [], []))
    pre[288 + 36 - 1].append(bar([], [('cswr', 4)], [], True))

    cur = {0: 0, 1: 0}
    def rdA(n, r):
        c, p, ksl, b = FR[n]
        mat, u = divmod(b, 2)
        a = vTA1 if u else vTA0
        if cur[u] != BUF[p]:
            d = (BUF[p] - cur[u]) * SLOT
            e.i(f'v_add_u32 v{a}, {d & 0xffffffff:#x}, v{a}')
            cur[u] = BUF[p]
        e.lgop(f'ds_read_b64_tr_b16 {vr(AF(n) + 2 * r, 2)}, v{a} offset:{mat * 12288 + ksl * 2048 + r * 256}', ('af', n) if r else None)

    e.stamp()
    for it in xread(0) + xread(1): it()
    e.need(vm=[('W', 0)])
    e.i('s_barrier')
    e.stamp()
    for n in range(D):
        rdA(n, 0); rdA(n, 1)
    for n in range(360):
        c, p, ksl, b = FR[n]
        ks = 6 * (p % 3) + ksl
        for f in pre[n]: f(n)
        for tb in range(2):
            e.need(lg=[('af', n)] + ([('xf', tb, ks)] if c == 0 else []))
            acc = ACC(c & 1, b, tb)
            e.i(f'v_mfma_f32_16x16x32_bf16 {vr(acc)}, {vr(AF(n))}, {vr(X(tb, ks))}, {0 if ks == 0 else vr(acc)}')
            if n + D < 360: rdA(n + D, tb)
            for it in sched[2 * n + tb]: it()
    e.i('s_nop 7')
    e.stamp()
    for it in epi_half(4, 1, False): it()
    e.stamp()
    if STAMPS: e.drain(vm=True)
    e.stamp(); e.stamp(True)
    e.stamp_flush(sWS, sWAVE, STAMP_A)
    e.label('KA_END')
    e.i('s_endpgm')
    return e.text()

KA_DESC = lambda name: f'''
.amdhsa_kernel {name}
  .amdhsa_next_free_vgpr 256
  .amdhsa_next_free_sgpr {100 if STAMPS else 64}
  .amdhsa_accum_offset 256
  .amdhsa_group_segment_fixed_size 0
  .amdhsa_kernarg_size 96
  .amdhsa_user_sgpr_count 2
  .amdhsa_user_sgpr_kernarg_segment_ptr 1
  .amdhsa_system_sgpr_workgroup_id_x 1
.end_amdhsa_kernel
'''
```

```python
from emit import *
from common import *
import os
EXP = os.environ.get('EXP', '').split(',')
FLG = KV_BYTES + REC
KB_LDS = FLG + 64
SP_OFF = 73728
DEPTH = int(os.environ.get('DEPTH', 4))
PRIO_A = int(os.environ.get('PRIO_A', 1))
PRIO_G = int(os.environ.get('PRIO_G', 0))

sX, sOUT, sDBG, sWS = 12, 16, 20, 24
sWAVE, sTG, sCG, sODD = 28, 29, 30, 31
sT0, sT1, sT2, sT3 = 32, 33, 34, 35
sHO, sWM, sWSH = 36, 37, 38
sIT, sRDY, sNT, sOFFS, sFINAL = 39, 40, 41, 42, 43
sVM = 44
sW4 = 46

def gen_kb(name):
    e = Emit()
    e.stamps_on = STAMPS
    e.raw(f'''
.p2align 8
.globl {name}
.type {name},@function
{name}:
s_cmp_ge_u32 s2, 256
s_cbranch_scc1 KB_END
s_load_dwordx2 s[4:5], s[0:1], 0
s_load_dwordx4 s[8:11], s[0:1], 72
s_load_dwordx2 s[6:7], s[0:1], 88
v_lshrrev_b32 v1, 6, v0
v_and_b32 v0, 63, v0
v_readfirstlane_b32 s{sWAVE}, v1
s_and_b32 s{sT0}, s2, 7
s_lshr_b32 s{sT1}, s2, 3
s_lshr_b32 s{sTG}, s{sT1}, 3
s_lshl_b32 s{sT0}, s{sT0}, 2
s_add_u32 s{sTG}, s{sTG}, s{sT0}
s_and_b32 s{sCG}, s{sT1}, 7
s_and_b32 s{sODD}, s{sCG}, 1
s_and_b32 s{sW4}, s{sWAVE}, 3
s_waitcnt lgkmcnt(0)
s_mov_b32 s{sWS}, s6
s_mov_b32 s{sWS+1}, s7
s_mov_b32 s{sWS+2}, {WS_BYTES}
s_mov_b32 s{sWS+3}, 0x00020000
''')
    e.stamp(True); e.stamp()
    ns0 = e.nstamp
    e.i(f's_cmp_ge_u32 s{sWAVE}, 4')
    e.i('s_cbranch_scc1 KB_ATT')

    vL16, vA, vB, vT = 0, 1, 2, 3
    F = lambda t: 4 + 4 * t
    S = lambda t: 76 + 4 * t
    BUFS = [148, 184, 220, 76, 112][:DEPTH]
    e.raw(f'''
s_setprio {PRIO_G}
v_lshlrev_b32 v{vL16}, 4, v0
s_lshl_b32 s{sT0}, s{sWAVE}, 10
s_add_u32 s{sT1}, s{sT0}, {KV_OFF}
''')
    def kvdma(i):
        e.i(f's_add_u32 m0, s{sT0}, {i * 4096}')
        e.i(f's_add_u32 s{sT2}, s{sT1}, {i * 4096}')
        e.vmop(f'buffer_load_dwordx4 v{vL16}, {sr(sWS)}, s{sT2} offen lds', ('kv', i))
    for i in range(6): kvdma(i)
    e.i('s_barrier')
    for i in range(6, 36): kvdma(i)
    e.raw(f'''
s_lshl_b32 s{sT2}, s{sODD}, 11
v_add_u32 v{vA}, s{sT2}, v{vL16}
v_xor_b32 v{vB}, 0x800, v{vA}
s_mul_i32 s{sHO}, s{sTG}, {144 * 4096}
s_lshl_b32 s{sT2}, s{sWAVE}, 12
s_add_u32 s{sHO}, s{sHO}, s{sT2}
s_lshr_b32 s{sT2}, s{sCG}, 1
s_mul_i32 s{sWSH}, s{sT2}, {9 * 1024}
s_mul_i32 s{sT2}, s{sWAVE}, {36 * 1024}
s_add_u32 s{sWSH}, s{sWSH}, s{sT2}
s_add_u32 s{sWSH}, s{sWSH}, {W2R_OFF}
s_mul_i32 s{sT2}, s{sODD}, {5 * 1024}
s_add_u32 s{sWM}, s{sWSH}, s{sT2}
s_add_u32 s{sWSH}, s{sWSH}, {4 * 1024}
s_lshl_b32 s{sT3}, s{sWAVE}, 2
s_add_u32 s{sT3}, s{sT3}, {FLG}
''')
    def loads(i):
        r = BUFS[i % DEPTH]
        for j in range(4):
            e.vmop(f'buffer_load_dwordx4 {vr(r + 4 * j)}, v{vA if j < 2 else vB}, {sr(sWS)}, s{sHO} offen offset:{(j & 1) * 1024}', ('g', i, 0))
        for j in range(4):
            e.vmop(f'buffer_load_dwordx4 {vr(r + 16 + 4 * j)}, v{vL16}, {sr(sWS)}, s{sWM} offen offset:{j * 1024}', ('g', i, j))
        e.vmop(f'buffer_load_dwordx4 {vr(r + 32)}, v{vL16}, {sr(sWS)}, s{sWSH} offen', ('g', i, 4))
        e.i(f's_add_u32 s{sHO}, s{sHO}, {4 * 4096}')
        e.i(f's_add_u32 s{sWM}, s{sWM}, {4 * 36 * 1024}')
        e.i(f's_add_u32 s{sWSH}, s{sWSH}, {4 * 36 * 1024}')
    def flag(n, val):
        e.need(vm=[('kv', n - 1)])
        e.i(f'v_mov_b32 v{vT}, s{sT3}')
        e.i(f'v_mov_b32 v{F(0)}, {val}')
        e.i('s_mov_b64 exec, 1')
        e.lgop(f'ds_write_b32 v{vT}, v{F(0)}')
        e.i('s_mov_b64 exec, -1')
    flag(6, 1)
    loads(0)
    flag(15, 3)
    loads(1)
    flag(36, 8)
    for i in range(2, DEPTH - 1): loads(i)
    e.stamp()
    def mm(acc, r, first, tagf):
        for nb in range(5):
            e.need(vm=[tagf(nb)])
            for j in range(4 if nb < 4 else 2):
                t = nb * 4 + j
                e.i(f'v_mfma_f32_16x16x32_bf16 {vr(acc(t))}, {vr(r + 16 + 4 * nb)}, {vr(r + 4 * j)}, {0 if first else vr(acc(t))}')
    for i in range(36):
        if i + DEPTH - 1 < 36: loads(i + DEPTH - 1)
        mm(F, BUFS[i % DEPTH], i == 0, lambda nb, i=i: ('g', i, nb))
    e.stamp()
    WO = lambda i, nb: 148 + (i * 5 + nb) * 4
    for i in range(5):
        if i == 4:
            e.i(f's_cmp_gt_u32 s{sWAVE}, 1')
            e.i('s_cbranch_scc1 KB_WO4')
        for j in range(4):
            e.i(f'buffer_load_dwordx4 {vr(WO(i, j))}, v{vL16}, {sr(sWS)}, s{sWM} offen offset:{j * 1024}')
        e.i(f'buffer_load_dwordx4 {vr(WO(i, 4))}, v{vL16}, {sr(sWS)}, s{sWSH} offen')
        e.i(f's_add_u32 s{sWM}, s{sWM}, {4 * 36 * 1024}')
        e.i(f's_add_u32 s{sWSH}, s{sWSH}, {4 * 36 * 1024}')
    e.label('KB_WO4')
    e.raw(f'''
s_mul_i32 s{sT2}, s{sWAVE}, 18432
v_add_u32 v{vT}, s{sT2}, v{vL16}
s_mul_i32 s{sHO}, s{sTG}, {18 * 4096}
s_lshl_b32 s{sT2}, s{sWAVE}, 12
s_add_u32 s{sHO}, s{sHO}, s{sT2}
s_add_u32 s{sHO}, s{sHO}, {O_OFF}
s_lshl_b32 s{sT2}, s{sTG}, 8
s_add_u32 s{sT2}, s{sT2}, {FLAG_OFF}
s_barrier
''')
    e.stamp()
    for t in range(18):
        e.i(f'ds_write_b128 v{vT}, {vr(F(t))} offset:{t * 1024}')
    e.raw(f'''
s_waitcnt lgkmcnt(0)
s_barrier
''')
    e.stamp()
    e.raw(f'''
v_mov_b32 v{F(0)}, 1
s_lshl_b32 s{sT3}, s{sCG}, 2
v_mov_b32 v{F(0)+1}, s{sT3}
v_lshrrev_b32 v{F(0)+2}, 2, v{vL16}
s_cmp_lg_u32 s{sWAVE}, 0
s_cbranch_scc1 KB_POLL
s_mov_b64 exec, 1
buffer_store_dword v{F(0)}, v{F(0)+1}, {sr(sWS)}, s{sT2} offen sc1
KB_POLL:
s_mov_b32 s{sIT}, 0x40000
s_mov_b64 exec, 0xff
KB_POLL2:
buffer_load_dword v{F(0)+3}, v{F(0)+2}, {sr(sWS)}, s{sT2} offen sc1
s_waitcnt vmcnt(0)
v_cmp_ne_u32 vcc, 1, v{F(0)+3}
s_cmp_eq_u64 vcc, 0
s_cbranch_scc1 KB_GO
s_sleep 2
s_sub_u32 s{sIT}, s{sIT}, 1
s_cmp_lg_u32 s{sIT}, 0
s_cbranch_scc1 KB_POLL2
KB_GO:
s_mov_b64 exec, -1
''')
    e.stamp()
    OB = lambda i, j: 4 + (i * 4 + j) * 4 if i < 4 else 68 + 4 * j if j < 2 else 248 + 4 * (j - 2)
    e.vm = []; e.vm_done = 0
    e.i(f's_cmp_gt_u32 s{sWAVE}, 1')
    e.i('s_cbranch_scc1 KB_O4')
    e.i(f's_add_u32 s{sT2}, s{sHO}, {4 * 4 * 4096}')
    for j in range(4):
        e.i(f'buffer_load_dwordx4 {vr(OB(4, j))}, v{vA if j < 2 else vB}, {sr(sWS)}, s{sT2} offen offset:{(j & 1) * 1024} sc1')
    e.label('KB_O4')
    for i in range(4):
        for j in range(4):
            e.vmop(f'buffer_load_dwordx4 {vr(OB(i, j))}, v{vA if j < 2 else vB}, {sr(sWS)}, s{sHO} offen offset:{(j & 1) * 1024} sc1', ('o', i))
        e.i(f's_add_u32 s{sHO}, s{sHO}, {4 * 4096}')
    def omm(i, first):
        for nb in range(5):
            for j in range(4 if nb < 4 else 2):
                t = nb * 4 + j
                e.i(f'v_mfma_f32_16x16x32_bf16 {vr(S(t))}, {vr(WO(i, nb))}, {vr(OB(i, j))}, {0 if first else vr(S(t))}')
    for i in range(4):
        e.need(vm=[('o', i)])
        omm(i, i == 0)
        if i == 0:
            e.i(f's_cmp_gt_u32 s{sWAVE}, 1')
            e.i('s_cbranch_scc1 KB_M4')
            omm(4, False)
            e.label('KB_M4')
    e.i(f'v_add_u32 v{vT}, {SP_OFF}, v{vT}')
    e.i('s_nop 6')
    for t in range(18):
        e.i(f'ds_write_b128 v{vT}, {vr(S(t))} offset:{t * 1024}')
    e.raw('''
s_waitcnt lgkmcnt(0)
s_barrier
''')
    e.stamp(); e.stamp(True)
    e.stamp_flush(sWS, sWAVE, STAMP_B)
    e.i('s_endpgm')

    e.nstamp = ns0
    e.vm = []; e.vm_done = 0; e.lg = []; e.lg_done = 0
    vK1, vK2, vV = 1, 2, 3
    Q1 = [16, 24]; Q2 = [20, 28]
    SB = [32, 48]; P = 64; O = [72, 88]
    KF = [104, 112]; VF = [120, 128]
    t0, t1, t2, t3, t4, t5 = 4, 5, 6, 7, 8, 9
    vMX = [10, 11]
    e.label('KB_ATT')
    e.raw(f'''
s_setprio {PRIO_A}
v_and_b32 v{t0}, 31, v0
v_lshrrev_b32 v{t1}, 5, v0
v_mul_u32_u24 v{t2}, 1152, v{t0}
v_lshl_add_u32 v{t3}, v{t1}, 28, v{t2}
v_lshl_add_u32 v{t2}, v{t1}, 4, v{t2}
s_lshl_b32 s{sT0}, s{sCG}, 2
s_add_u32 s{sT0}, s{sT0}, s{sW4}
s_mul_i32 s{sT0}, s{sT0}, 36
s_mul_i32 s{sT1}, s{sTG}, {64 * 1152}
s_add_u32 s{sT0}, s{sT0}, s{sT1}
s_add_u32 s{sT0}, s{sT0}, {Q_OFF}
s_add_u32 s{sT1}, s{sT0}, {32 * 1152}
buffer_load_dwordx4 {vr(Q1[0])}, v{t2}, {sr(sWS)}, s{sT0} offen
buffer_load_dword v{Q2[0]}, v{t3}, {sr(sWS)}, s{sT0} offen offset:32
buffer_load_dwordx4 {vr(Q1[1])}, v{t2}, {sr(sWS)}, s{sT1} offen
buffer_load_dword v{Q2[1]}, v{t3}, {sr(sWS)}, s{sT1} offen offset:32
v_mov_b32 v{t4}, 0
v_lshlrev_b32 v{t5}, 2, v{t0}
v_add_u32 v{t5}, {FLG}, v{t5}
s_mov_b64 exec, 15
ds_write_b32 v{t5}, v{t4}
s_mov_b64 exec, -1
s_waitcnt lgkmcnt(0)
s_barrier
v_cmp_gt_u32 vcc, 32, v0
v_mov_b32 v{t4}, 0x3f803f80
v_mov_b32 v{t5}, 0x00003f80
v_cndmask_b32 v{KF[0]+5}, 0, v{t4}, vcc
v_cndmask_b32 v{KF[0]+6}, 0, v{t5}, vcc
v_mov_b32 v{KF[0]+7}, 0
v_mov_b32 v{KF[1]+5}, v{KF[0]+5}
v_mov_b32 v{KF[1]+6}, v{KF[0]+6}
v_mov_b32 v{KF[1]+7}, 0
v_mov_b32 v{Q2[0]+3}, 0
v_mov_b32 v{Q2[1]+3}, 0
v_or_b32 v{t5}, 4, v{t0}
v_cmp_eq_u32 vcc, 22, v{t5}
s_mov_b32 s{sVM}, 0x3ffff
s_mov_b32 s{sVM+1}, 0x3ffff
''')
    for r in range(16):
        e.i(f'v_cndmask_b32 v{VF[0] + r}, 0, v{t4}, vcc')
    e.raw(f'''
s_mov_b32 s{sRDY}, 0
s_mov_b32 s{sNT}, 1
s_mov_b32 s{sOFFS}, {f32(100.0)}
s_mov_b32 s{sFINAL}, 0
s_mov_b32 s{sIT}, 0
''')
    def check_ready(lbl):
        e.raw(f'''
s_cmp_gt_u32 s{sRDY}, s{sIT}
s_cbranch_scc1 {lbl}_OK
v_mov_b32 v{t4}, {FLG}
s_mov_b32 s{sT3}, 0x100000
{lbl}_SPIN:
ds_read_b128 v[12:15], v{t4}
s_waitcnt lgkmcnt(0)
v_min_u32 v12, v12, v13
v_min3_u32 v12, v12, v14, v15
s_nop 0
v_readfirstlane_b32 s{sRDY}, v12
s_cmp_gt_u32 s{sRDY}, s{sIT}
s_cbranch_scc1 {lbl}_OK
s_sleep 1
s_sub_u32 s{sT3}, s{sT3}, 1
s_cmp_lg_u32 s{sT3}, 0
s_cbranch_scc1 {lbl}_SPIN
{lbl}_OK:
''')
    check_ready('KB_R0')
    e.i('s_waitcnt vmcnt(0)')
    e.stamp()
    def addr_reset():
        e.raw(f'''
v_lshlrev_b32 v{vK1}, 4, v0
v_and_b32 v{t0}, 31, v0
v_lshlrev_b32 v{vK2}, 2, v{t0}
v_lshrrev_b32 v{t1}, 5, v0
v_mul_u32_u24 v{vV}, 288, v{t1}
v_lshl_add_u32 v{vV}, v{t0}, 4, v{vV}
''')
    e.label('KB_MAX')
    addr_reset()
    for q in range(2):
        e.i(f'v_mov_b32 v{Q2[q] + 1}, 0')
        e.i(f'v_mov_b32 v{Q2[q] + 2}, 0')
        e.i(f'v_mov_b32 v{vMX[q]}, 0xff800000')
    e.label('KB_MAXL')
    e.raw(f'''
ds_read_b128 {vr(KF[0])}, v{vK1}
ds_read_b32 v{KF[0]+4}, v{vK2} offset:{K2_IN}
v_add_u32 v{vK1}, {REC}, v{vK1}
v_add_u32 v{vK2}, {REC}, v{vK2}
s_waitcnt lgkmcnt(0)
''')
    for q in range(2):
        e.i(f'v_mfma_f32_32x32x16_bf16 {vr(SB[q], 16)}, {vr(KF[0])}, {vr(Q1[q])}, 0')
        e.i(f'v_mfma_f32_32x32x16_bf16 {vr(SB[q], 16)}, {vr(KF[0] + 4)}, {vr(Q2[q])}, {vr(SB[q], 16)}')
    e.i('s_nop 11')
    for q in range(2):
        for r in range(0, 16, 2):
            e.i(f'v_max3_f32 v{vMX[q]}, v{SB[q] + r}, v{SB[q] + r + 1}, v{vMX[q]}')
    e.raw(f'''
s_sub_u32 s{sNT}, s{sNT}, 1
s_cmp_lg_u32 s{sNT}, 0
s_cbranch_scc1 KB_MAXL
''')
    addr_reset()
    e.raw(f'''
ds_read_b128 {vr(KF[0])}, v{vK1}
ds_read_b32 v{KF[0]+4}, v{vK2} offset:{K2_IN}
s_mov_b64 exec, {sr(sVM, 2)}
ds_read_b128 {vr(VF[0])}, v{vV} offset:{V_IN}
ds_read_b128 {vr(VF[0]+4)}, v{vV} offset:{V_IN + 576}
s_mov_b64 exec, -1
''')
    for q in range(2): e.i(f'v_mov_b32 v{t0 + q}, v{vMX[q]}')
    e.i('s_nop 1')
    for q in range(2): e.i(f'v_permlane32_swap_b32 v{t0 + q}, v{vMX[q]}')
    e.i('s_nop 1')
    for q in range(2): e.i(f'v_max_f32 v{vMX[q]}, v{t0 + q}, v{vMX[q]}')
    for q in range(2): e.i(f'v_sub_f32 v{vMX[q]}, -v{vMX[q]}, s{sOFFS}')
    for q in range(2): e.i(f'v_cvt_pk_bf16_f32 v{t0 + q}, v{vMX[q]}, 0')
    for q in range(2): e.i(f'v_lshlrev_b32 v{t0 + q}, 16, v{t0 + q}')
    for q in range(2): e.i(f'v_sub_f32 v{t0 + q}, v{vMX[q]}, v{t0 + q}')
    for q in range(2): e.i(f'v_cvt_pk_bf16_f32 v{Q2[q] + 1}, v{vMX[q]}, v{t0 + q}')
    for q in range(2): e.i(f'v_and_b32 v{t2 + q}, 0xffff0000, v{Q2[q] + 1}')
    for q in range(2): e.i(f'v_sub_f32 v{t0 + q}, v{t0 + q}, v{t2 + q}')
    for q in range(2): e.i(f'v_cvt_pk_bf16_f32 v{Q2[q] + 2}, v{t0 + q}, 0')
    for r in range(32): e.i(f'v_mov_b32 v{O[0] + r}, 0')
    for r in range(4): e.i(f'v_mov_b32 v{P + 4 + r}, 0')
    e.i(f's_mov_b32 s{sIT}, 0')
    e.i('s_waitcnt lgkmcnt(0)')
    e.i(f'v_mfma_f32_32x32x16_bf16 {vr(SB[0], 16)}, {vr(KF[0])}, {vr(Q1[0])}, 0')
    e.i(f'v_mfma_f32_32x32x16_bf16 {vr(SB[0], 16)}, {vr(KF[0] + 4)}, {vr(Q2[0])}, {vr(SB[0], 16)}')
    e.i('s_nop 7')
    e.stamp()
    e.raw('.p2align 6')
    e.label('KB_LOOP')
    check_ready('KB_R1')
    def step(tt, q):
        kb = tt & 1
        s = SB[q]; sn = SB[q ^ 1]
        kn = KF[kb] if q == 0 else KF[kb ^ 1]
        ex = lambda r: e.i(f'v_exp_f32 v{s + r}, v{s + r}')
        cv = lambda c: e.i(f'v_cvt_pk_bf16_f32 v{P + c}, v{s + 2 * c}, v{s + 2 * c + 1}')
        off = (tt + 1) * REC
        if q == 1: e.i('s_waitcnt lgkmcnt(0)')
        e.i(f'v_mfma_f32_32x32x16_bf16 {vr(sn, 16)}, {vr(kn)}, {vr(Q1[q ^ 1])}, 0')
        if q == 0:
            e.i(f'ds_read_b128 {vr(KF[kb ^ 1])}, v{vK1} offset:{off}')
            e.i(f'ds_read_b32 v{KF[kb ^ 1] + 4}, v{vK2} offset:{off + K2_IN}')
        else:
            e.i(f's_mov_b64 exec, {sr(sVM, 2)}')
            e.i(f'ds_read_b128 {vr(VF[kb ^ 1])}, v{vV} offset:{off + V_IN}')
            e.i(f'ds_read_b128 {vr(VF[kb ^ 1] + 4)}, v{vV} offset:{off + V_IN + 576}')
            e.i('s_mov_b64 exec, -1')
        ex(0); ex(1); ex(2); cv(0); ex(3)
        vp = VF[kb ^ 1] if q == 0 else VF[kb]
        e.i(f'v_mfma_f32_32x32x16_bf16 {vr(O[q ^ 1], 16)}, {vr(vp + 4)}, {vr(P + 4)}, {vr(O[q ^ 1], 16)}')
        ex(4); cv(1); ex(5); ex(6); cv(2); ex(7)
        e.i(f'v_mfma_f32_32x32x16_bf16 {vr(sn, 16)}, {vr(kn + 4)}, {vr(Q2[q ^ 1])}, {vr(sn, 16)}')
        ex(8); cv(3); ex(9); ex(10); cv(4); ex(11)
        if q == 0: e.i('s_waitcnt lgkmcnt(2)')
        e.i(f'v_mfma_f32_32x32x16_bf16 {vr(O[q], 16)}, {vr(VF[kb])}, {vr(P)}, {vr(O[q], 16)}')
        ex(12); cv(5); ex(13); ex(14); ex(15); cv(6); cv(7)
    for tt in range(8):
        step(tt, 0); step(tt, 1)
    e.raw(f'''
v_add_u32 v{vK1}, {8 * REC}, v{vK1}
v_add_u32 v{vK2}, {8 * REC}, v{vK2}
v_add_u32 v{vV}, {8 * REC}, v{vV}
s_add_u32 s{sIT}, s{sIT}, 1
s_cmp_lt_u32 s{sIT}, 8
s_cbranch_scc1 KB_LOOP
v_mfma_f32_32x32x16_bf16 {vr(O[1], 16)}, {vr(VF[1] + 4)}, {vr(P + 4)}, {vr(O[1], 16)}
s_waitcnt lgkmcnt(0)
s_nop 11
''')
    e.stamp()
    e.i(f'v_mov_b32 v{t0}, 0')
    for q in range(2):
        for r in range(10): e.i(f'v_fma_f32 v{t0}, v{O[q] + r}, 0, v{t0}')
    e.raw(f'''
v_max_f32 v{t1}, v{O[0]+10}, v{O[1]+10}
v_min_f32 v{t2}, v{O[0]+10}, v{O[1]+10}
v_fma_f32 v{t0}, v{O[0]+10}, 0, v{t0}
v_fma_f32 v{t0}, v{O[1]+10}, 0, v{t0}
v_cmp_neq_f32 {sr(sT0, 2)}, 0, v{t0}
v_cmp_lt_f32 vcc, {f32(2.0 ** 110)}, v{t1}
s_or_b64 {sr(sT0, 2)}, {sr(sT0, 2)}, vcc
v_cmp_gt_f32 vcc, {f32(2.0 ** -104)}, v{t2}
s_or_b64 {sr(sT0, 2)}, {sr(sT0, 2)}, vcc
s_cbranch_scc0 KB_SAFE
s_cmp_lg_u32 s{sFINAL}, 0
s_cbranch_scc1 KB_SAFE
s_mov_b32 s{sFINAL}, 1
s_mov_b32 s{sNT}, 64
s_mov_b32 s{sOFFS}, 0
''')
    e.raw(f'''
s_branch KB_MAX
KB_SAFE:
s_barrier
''')
    for q in range(2): e.i(f'v_rcp_f32 v{t0 + q}, v{O[q] + 10}')
    e.raw(f'''
s_mul_i32 s{sT0}, s{sCG}, 9
s_lshl_b32 s{sT1}, s{sW4}, 1
s_add_u32 s{sT1}, s{sT1}, s{sT0}
v_lshrrev_b32 v{t2}, 5, v0
v_add_u32 v{t3}, s{sT1}, v{t2}
v_lshrrev_b32 v{t4}, 2, v{t3}
v_lshlrev_b32 v{t4}, 12, v{t4}
v_and_b32 v{t3}, 3, v{t3}
v_lshl_add_u32 v{t4}, v{t3}, 8, v{t4}
v_bfe_u32 v{t3}, v0, 4, 1
v_lshlrev_b32 v{t3}, 10, v{t3}
v_and_b32 v{t5}, 15, v0
v_lshl_add_u32 v{t3}, v{t5}, 4, v{t3}
v_add_u32 v{t4}, v{t4}, v{t3}
v_lshl_add_u32 v{t3}, v{t2}, 28, v{t3}
s_mul_i32 s{sT2}, s{sTG}, {18 * 4096}
s_add_u32 s{sT2}, s{sT2}, {O_OFF}
s_add_u32 s{sT0}, s{sT0}, 8
s_lshr_b32 s{sT1}, s{sT0}, 2
s_lshl_b32 s{sT1}, s{sT1}, 12
s_and_b32 s{sT0}, s{sT0}, 3
s_lshl_b32 s{sT0}, s{sT0}, 8
s_add_u32 s{sT1}, s{sT1}, s{sT0}
s_lshl_b32 s{sT0}, s{sW4}, 2
s_add_u32 s{sT1}, s{sT1}, s{sT0}
s_add_u32 s{sT1}, s{sT1}, s{sT2}
''')
    for q in range(2):
        for r in range(10): e.i(f'v_mul_f32 v{O[q] + r}, v{t0 + q}, v{O[q] + r}')
        for c in range(5): e.i(f'v_cvt_pk_bf16_f32 v{SB[q] + c}, v{O[q] + 2 * c}, v{O[q] + 2 * c + 1}')
        e.i(f'buffer_store_dwordx4 {vr(SB[q])}, v{t4}, {sr(sWS)}, s{sT2} offen offset:{q * 2048} sc1')
        e.i(f'buffer_store_dword v{SB[q] + 4}, v{t3}, {sr(sWS)}, s{sT1} offen offset:{q * 2048} sc1')
    XR = 104
    e.raw(f'''
s_mov_b32 s{sX}, s4
s_mov_b32 s{sX+1}, s5
s_mov_b32 s{sX+2}, {2048 * 1152}
s_mov_b32 s{sX+3}, 0x00020000
s_mov_b32 s{sOUT}, s8
s_mov_b32 s{sOUT+1}, s9
s_mov_b32 s{sOUT+2}, {2048 * 1152}
s_mov_b32 s{sOUT+3}, 0x00020000
; token block = (w + 2odd) % 4
s_lshl_b32 s{sT0}, s{sODD}, 1
s_add_u32 s{sT0}, s{sT0}, s{sW4}
s_and_b32 s{sT0}, s{sT0}, 3
s_lshl_b32 s{sT1}, s{sTG}, 2
s_add_u32 s{sT0}, s{sT0}, s{sT1}
s_mul_i32 s{sT0}, s{sT0}, {16 * 1152}
s_lshr_b32 s{sT1}, s{sCG}, 1
s_mul_i32 s{sT1}, s{sT1}, 288
s_add_u32 s{sT0}, s{sT0}, s{sT1}
s_add_u32 s{sT1}, s{sT0}, 128
s_cmp_gt_u32 s{sW4}, 1
s_cselect_b32 s{sT1}, 0x7f000000, s{sT1}
s_mul_i32 s{sT2}, s{sODD}, 160
s_add_u32 s{sT0}, s{sT0}, s{sT2}
v_mul_u32_u24 v{t2}, 1152, v{t5}
v_lshrrev_b32 v{t3}, 4, v0
v_lshl_add_u32 v{t2}, v{t3}, 3, v{t2}
s_waitcnt vmcnt(0)
''')
    for nb in range(4):
        e.i(f'buffer_load_dwordx2 {vr(XR + 2 * nb, 2)}, v{t2}, {sr(sX)}, s{sT0} offen offset:{nb * 32}')
    e.i(f'buffer_load_dwordx2 {vr(XR + 8, 2)}, v{t2}, {sr(sX)}, s{sT1} offen')
    e.raw(f'''
s_lshl_b32 s{sT2}, s{sW4}, 10
v_lshlrev_b32 v{t3}, 4, v0
v_add_u32 v{t3}, s{sT2}, v{t3}
v_add_u32 v{t4}, 36864, v{t3}
s_barrier
''')
    e.stamp()
    R = lambda nb, w: 116 + (nb * 4 + w) * 4
    G = lambda nb: R(nb, 0)
    R2 = lambda nb, w: 16 + (nb * 4 + w) * 4
    def red(RR):
        for nb in range(5):
            for w in range(4):
                e.lgop(f'ds_read_b128 {vr(RR(nb, w))}, v{t3 if w < 2 else t4} offset:{(w & 1) * 18432 + nb * 4096}', ('r', nb))
        for nb in range(5):
            e.need(lg=[('r', nb)])
            for r in range(4): e.i(f'v_add_f32 v{RR(nb, 0) + r}, v{RR(nb, 0) + r}, v{RR(nb, 1) + r}')
            for r in range(4): e.i(f'v_add_f32 v{RR(nb, 2) + r}, v{RR(nb, 2) + r}, v{RR(nb, 3) + r}')
            for r in range(4): e.i(f'v_add_f32 v{RR(nb, 0) + r}, v{RR(nb, 0) + r}, v{RR(nb, 2) + r}')
    red(R)
    for nb in range(5):
        for r in range(4): e.i(f'v_mul_f32 v{R(nb, 1) + r}, {f32(-LOG2E)}, v{G(nb) + r}')
        for r in range(4): e.i(f'v_exp_f32 v{R(nb, 1) + r}, v{R(nb, 1) + r}')
        for r in range(4): e.i(f'v_add_f32 v{R(nb, 1) + r}, 1.0, v{R(nb, 1) + r}')
        for r in range(4): e.i(f'v_rcp_f32 v{R(nb, 1) + r}, v{R(nb, 1) + r}')
        for r in range(4): e.i(f'v_mul_f32 v{G(nb) + r}, v{G(nb) + r}, v{R(nb, 1) + r}')
    e.i('s_waitcnt vmcnt(0)')
    for nb in range(5):
        e.i(f'v_lshlrev_b32 v{R(nb, 1)}, 16, v{XR + 2 * nb}')
        e.i(f'v_and_b32 v{R(nb, 1) + 1}, 0xffff0000, v{XR + 2 * nb}')
        e.i(f'v_lshlrev_b32 v{R(nb, 1) + 2}, 16, v{XR + 2 * nb + 1}')
        e.i(f'v_and_b32 v{R(nb, 1) + 3}, 0xffff0000, v{XR + 2 * nb + 1}')
    e.i(f'v_add_u32 v{t3}, {SP_OFF}, v{t3}')
    e.i(f'v_add_u32 v{t4}, {SP_OFF}, v{t4}')
    e.stamp()
    e.i('s_barrier')
    e.stamp()
    e.lg = []; e.lg_done = 0
    red(R2)
    for nb in range(5):
        for r in range(4): e.i(f'v_fma_f32 v{R(nb, 1) + r}, v{R2(nb, 0) + r}, v{G(nb) + r}, v{R(nb, 1) + r}')
        e.i(f'v_cvt_pk_bf16_f32 v{R(nb, 2)}, v{R(nb, 1)}, v{R(nb, 1) + 1}')
        e.i(f'v_cvt_pk_bf16_f32 v{R(nb, 2) + 1}, v{R(nb, 1) + 2}, v{R(nb, 1) + 3}')
        if nb < 4:
            e.i(f'buffer_store_dwordx2 {vr(R(nb, 2), 2)}, v{t2}, {sr(sOUT)}, s{sT0} offen offset:{nb * 32}')
        else:
            e.i(f'buffer_store_dwordx2 {vr(R(nb, 2), 2)}, v{t2}, {sr(sOUT)}, s{sT1} offen')
    if STAMPS: e.drain(vm=True)
    e.stamp(); e.stamp(True)
    e.stamp_flush(sWS, sWAVE, STAMP_B)
    e.label('KB_END')
    e.i('s_endpgm')
    return e.text()

KB_DESC = lambda name: f'''
.amdhsa_kernel {name}
  .amdhsa_next_free_vgpr 256
  .amdhsa_next_free_sgpr {100 if STAMPS else 64}
  .amdhsa_accum_offset 256
  .amdhsa_group_segment_fixed_size 0
  .amdhsa_kernarg_size 96
  .amdhsa_user_sgpr_count 2
  .amdhsa_user_sgpr_kernarg_segment_ptr 1
  .amdhsa_system_sgpr_workgroup_id_x 1
.end_amdhsa_kernel
'''
```

```python
import sys, importlib
import ka
from common import *
HDR = open('recurrent_scan__grouped_kv_mqa__glu_gated_swiglu__prompt.s.ref').read().split('; Override launch')[0]
def build(kernels):
    s = HDR
    for n, g, b, l, _, _ in kernels:
        s += f'; @launch kernel={n} grid=({g},1,1) block=({b},1,1) lds={l}\n'
    s += '.amdgcn_target "amdgcn-amd-amdhsa--gfx950"\n.text\n'
    for k in kernels: s += k[4]
    s += '.section .rodata,"a"\n'
    for k in kernels: s += '.p2align 6' + k[5]
    return s
if __name__ == '__main__':
    out = sys.argv[1]
    ks = [('ka_kernel', 256, 512, ka.KA_LDS, ka.gen_ka('ka_kernel'), ka.KA_DESC('ka_kernel'))]
    try:
        import kb
        ks.append(('kb_kernel', 256, 512, kb.KB_LDS, kb.gen_kb('kb_kernel'), kb.KB_DESC('kb_kernel')))
    except ImportError:
        pass
    open(out, 'w').write(build(ks))
```

```python
H_OFF   = 0x0000000
W2R_OFF = 0x1200000
WOR_OFF = 0x1710000
O_OFF   = 0x1800000
Q_OFF   = 0x1A40000
KV_OFF  = 0x1C80000
REC = 2304
K2_IN, V_IN = 1024, 1152
KV_BYTES = 147456
WS_BYTES = 0x2000000
import struct
def f32(x):
    return '0x%08x' % struct.unpack('<I', struct.pack('<f', x))[0]
LOG2E = 1.4426950408889634
QSCALE = (18 ** -0.5) * LOG2E
STAMP_A = 0x1D00000
STAMP_B = 0x1D80000
import os
STAMPS = bool(os.environ.get('STAMPS'))
FLAG_OFF = 0x1CC0000
OF_OFF = FLAG_OFF
HF_OFF = FLAG_OFF + 8192
EF_OFF = FLAG_OFF + 16384
KVL0 = 73728
RF_OFF = FLAG_OFF + 17408
```

```python
class Emit:
    def __init__(self):
        self.lines = []
        self.vm = []
        self.lg = []
        self.vm_done = 0
        self.lg_done = 0
    def raw(self, s):
        for l in s.strip('\n').split('\n'):
            if not l.strip(): continue
            self.lines.append(l if l.endswith(':') or l.startswith('.') or l.startswith(';') else '    ' + l.strip())
    def i(self, s):
        self.lines.append('    ' + s)
    def label(self, s):
        self.lines.append(s + ':')
    def vmop(self, s, tag=None):
        self.i(s); self.vm.append(tag)
    def vmcount(self, n, tag=None):
        self.vm += [tag] * n
    def lgop(self, s, tag=None):
        self.i(s); self.lg.append(tag)
    def _last(self, lst, tags):
        idx = -1
        for t in tags:
            found = [k for k, x in enumerate(lst) if x == t]
            assert found, f'tag {t} never issued'
            idx = max(idx, found[-1])
        return idx
    def need(self, vm=(), lg=()):
        parts = []
        if vm:
            idx = self._last(self.vm, vm)
            if idx >= self.vm_done:
                n = len(self.vm) - 1 - idx
                if n < 63:
                    parts.append(f'vmcnt({n})')
                self.vm_done = idx + 1
        if lg:
            idx = self._last(self.lg, lg)
            if idx >= self.lg_done:
                n = len(self.lg) - 1 - idx
                n = min(n, 15)
                parts.append(f'lgkmcnt({n})')
                self.lg_done = len(self.lg) - n
        if parts:
            self.i('s_waitcnt ' + ' '.join(parts))
    def mark(self):
        return len(self.vm)
    def need_mark(self, m):
        n = len(self.vm) - m
        if n < 63: self.i(f's_waitcnt vmcnt({n})')
        self.vm_done = max(self.vm_done, m)
    def drain(self, vm=False, lg=False):
        parts = []
        if vm: parts.append('vmcnt(0)'); self.vm_done = len(self.vm)
        if lg: parts.append('lgkmcnt(0)'); self.lg_done = len(self.lg)
        self.i('s_waitcnt ' + ' '.join(parts))
    nstamp = 0
    stamps_on = False
    def stamp(self, real=False):
        if not self.stamps_on: return
        import os
        if os.environ.get('STAMPS') == 'rt': real = True
        self.i(('s_memrealtime' if real else 's_memtime') + ' s[68:69]')
        self.drain(lg=True)
        self.i(f's_mov_b32 s{70 + self.nstamp}, s68')
        self.nstamp += 1
        assert self.nstamp <= 32
    def stamp_flush(self, sWS, sWAVE, off):
        if not self.stamps_on: return
        self.i('s_lshl_b32 s68, s2, 3')
        self.i(f's_add_u32 s68, s68, s{sWAVE}')
        self.i('s_lshl_b32 s68, s68, 7')
        self.i(f's_add_u32 s68, s68, {off}')
        self.i('v_mov_b32 v1, 0')
        self.i('s_mov_b64 exec, 1')
        for k in range(self.nstamp):
            self.i(f'v_mov_b32 v2, s{70 + k}')
            self.i(f'buffer_store_dword v2, v1, s[{sWS}:{sWS+3}], s68 offen offset:{4 * k}')
        self.i('s_mov_b64 exec, -1')
    def text(self):
        return '\n'.join(self.lines) + '\n'

def vr(a, n=4):
    return f'v[{a}:{a+n-1}]'
def sr(a, n=4):
    return f's[{a}:{a+n-1}]'
```

```python
from emit import *
from common import *
import os
EXP = os.environ.get('EXP', '').split(',')
ENV = lambda k, d: int(os.environ.get(k, d))

SLOT = 24576
XS = 3 * SLOT
XS2 = 5 * SLOT
CST = XS2 + 32768
SCR = CST + 2560
FLG = SCR + 256
KA_LDS = FLG + 64
BUF = [3, 4, 0, 1, 2, 3, 0, 1, 2]

vL16, vTA0, vTA1, vCS, vDMA, vT0 = 0, 1, 2, 3, 4, 5
vCF = 8
vXG0, vXG1, vXR0, vXR1 = 12, 13, 14, 15
vNM = [12, 13]; vC = [14, 15]; vIR2 = [6, 7]
def X(tb, ks): return 16 + (ks * 2 + tb) * 4
def ACC(buf, b, tb): return 160 + buf * 32 + (b * 2 + tb) * 4
NAF = 4
def AF(n): return 224 + (n % NAF) * 4
vONE = 240; vCA = 244
vCV = 248
MAPPING = ENV('MAPPING', 1)
DSP = ENV('DSP', 16)
RLPOS = ENV('RLPOS', 0)
NTR = ' nt'
NTW = ' nt' if 'ntw' in EXP else ''
NTX = ' nt' if 'ntx' in EXP else ''
sX, sW, sQ, sWS, sRL = 24, 28, 32, 36, 40
sWAVE, sTM, sFN, sQI = 44, 45, 46, 47
sXO = [48, 49, 50, 51]
sWM0, sWSO, sT0, sT1, sXM0, sHO, sSCALE, sT2 = 52, 53, 54, 55, 56, 57, 58, 59
sT3, sT4 = 60, 61
sRLD = 62
sHF = 63
sHA, sHB = 8, 9
sF0 = 10
SWB = ENV('SWB', 0)
sTG, sCG = 4, 5
sMSK = 14
KBI = {0: 0, 1: 1, 3: 2, 4: 3}

def gen_ka(e, name):
    I = lambda s: (lambda: e.i(s))
    NOP = lambda: None
    LT = 3 - MAPPING
    e.raw(f'''
.p2align 8
.globl {name}
.type {name},@function
{name}:
s_cmp_ge_u32 s2, 256
s_cbranch_scc1 KB_END
s_load_dwordx8 s[4:11], s[0:1], 0
s_load_dwordx2 s[12:13], s[0:1], 32
s_load_dwordx4 s[16:19], s[0:1], 48
s_load_dwordx2 s[20:21], s[0:1], 64
s_load_dwordx2 s[22:23], s[0:1], 88
s_load_dwordx4 s[64:67], s[0:1], 72
v_lshrrev_b32 v1, 6, v0
v_and_b32 v0, 63, v0
v_readfirstlane_b32 s{sWAVE}, v1
s_and_b32 s{sT0}, s2, 7
s_lshr_b32 s{sT1}, s2, 3
s_lshr_b32 s{sTM}, s{sT1}, {5 - LT}
s_and_b32 s{sT2}, s{sT0}, {(1 << MAPPING) - 1}
s_lshl_b32 s{sT2}, s{sT2}, {LT}
s_add_u32 s{sTM}, s{sTM}, s{sT2}
s_and_b32 s{sT1}, s{sT1}, {(1 << (5 - LT)) - 1}
s_lshr_b32 s{sT0}, s{sT0}, {MAPPING}
s_lshl_b32 s{sFN}, s{sT0}, {5 - LT}
s_add_u32 s{sFN}, s{sFN}, s{sT1}
; x DMA source: row=l/8, pos=l%8 : row*1152 + ((pos ^ (row>>1))*16)
v_lshrrev_b32 v6, 4, v0
v_and_b32 v10, 7, v0
v_xor_b32 v6, v6, v10
v_lshrrev_b32 v10, 3, v0
v_mul_u32_u24 v{vXG0}, 1152, v10
v_lshl_add_u32 v{vXG0}, v6, 4, v{vXG0}
v_xor_b32 v{vXG1}, 64, v{vXG0}
s_mul_i32 s{sXM0}, s{sWAVE}, 10240
s_add_u32 s{sXM0}, s{sXM0}, {XS}
s_lshl_b32 s{sT0}, s{sTM}, 3
s_add_u32 s{sT0}, s{sT0}, s{sWAVE}
s_mul_i32 s{sXO[0]}, s{sT0}, {32*1152}
s_add_u32 s{sXO[1]}, s{sXO[0]}, {8*1152}
s_add_u32 s{sXO[2]}, s{sXO[0]}, {16*1152}
s_add_u32 s{sXO[3]}, s{sXO[0]}, {24*1152}
; pass-1 W DMA source: h=l/32, row=(l%32)/4, sigma=(l%4)^(2*(w&1)) : row*9216 + h*64 + sigma*16
s_lshl_b32 s{sT1}, s{sWAVE}, 1
s_and_b32 s{sT1}, s{sT1}, 2
v_bfe_u32 v8, v0, 2, 3
v_mul_u32_u24 v{vDMA}, 9216, v8
v_and_b32 v6, 3, v0
v_xor_b32 v6, s{sT1}, v6
v_lshl_add_u32 v{vDMA}, v6, 4, v{vDMA}
v_lshrrev_b32 v6, 5, v0
v_lshl_add_u32 v{vDMA}, v6, 6, v{vDMA}
s_and_b32 s{sT0}, s{sWAVE}, 3
s_lshr_b32 s{sT1}, s{sWAVE}, 2
s_lshl_b32 s{sWM0}, s{sT1}, 13
s_lshl_b32 s{sT1}, s{sT0}, 10
s_add_u32 s{sWM0}, s{sWM0}, s{sT1}
s_mul_i32 s{sWSO}, s{sT0}, {8*9216}
s_lshl_b32 s{sT1}, s{sFN}, 8
s_add_u32 s{sWSO}, s{sWSO}, s{sT1}
s_bfe_u32 s{sT1}, s{sFN}, {0x10000 + SWB}
s_lshl_b32 s{sT1}, s{sT1}, 7
s_add_u32 s{sWSO}, s{sWSO}, s{sT1}
s_cmp_lt_u32 s{sWAVE}, 4
s_waitcnt lgkmcnt(0)
s_mov_b32 s{sX}, s4
s_mov_b32 s{sX+1}, s5
s_mov_b32 s{sX+2}, {2048*1152}
s_mov_b32 s{sX+3}, 0x00020000
s_cselect_b32 s{sW}, s16, s18
s_cselect_b32 s{sW+1}, s17, s19
s_mov_b32 s{sW+2}, {576*9216}
s_mov_b32 s{sW+3}, 0x00020000
s_mov_b32 s{sWS}, s22
s_mov_b32 s{sWS+1}, s23
s_mov_b32 s{sWS+2}, {WS_BYTES}
s_mov_b32 s{sWS+3}, 0x00020000
s_cmp_lg_u32 s2, 0
s_cbranch_scc1 KA_NOZ
s_mul_i32 s{sT0}, s{sWAVE}, 3072
s_add_u32 s{sT0}, s{sT0}, {FLAG_OFF}
v_lshlrev_b32 v6, 4, v0
v_mov_b32 v8, 0
v_mov_b32 v9, 0
v_mov_b32 v10, 0
v_mov_b32 v11, 0
buffer_store_dwordx4 v[8:11], v6, {sr(sWS)}, s{sT0} offen sc1
buffer_store_dwordx4 v[8:11], v6, {sr(sWS)}, s{sT0} offen offset:1024 sc1
buffer_store_dwordx4 v[8:11], v6, {sr(sWS)}, s{sT0} offen offset:2048 sc1
KA_NOZ:
''')
    e.stamp(True); e.stamp()
    def xdma(pi):
        cgp, tb = divmod(pi, 2)
        items = []
        for h in range(2):
            def f(h=h):
                if pi >= 5 and h == 0:
                    pc, pt = divmod(pi - 5, 2)
                    e.need(lg=[('xf', pt, 2 * pc + 1)])
                e.i(f's_add_u32 m0, s{sXM0}, {(pi % 5) * 2048 + h * 1024 - cgp * 128}')
                e.i('s_nop 0')
                e.vmop(f'buffer_load_dwordx4 v{vXG1 if h else vXG0}, {sr(sX)}, s{sXO[2 * tb + h]} offen offset:{cgp * 128}{NTX} lds', ('x', pi))
            items.append(f)
        return items
    def wdma1(j):
        items = []
        for i in range(2):
            def f(i=i):
                e.i(f's_add_u32 m0, s{sWM0}, {(j % 4) * 16384 + i * 4096}')
                e.i(f's_add_u32 s{sT2}, s{sWSO}, {(64 * j + 32 * i) * 9216}')
                e.vmop(f'buffer_load_dwordx4 v{vDMA}, {sr(sW)}, s{sT2} offen{NTW} lds', ('Wp', j))
            items.append(f)
        return items
    for it in xdma(0) + wdma1(0) + xdma(1): it()
    e.i('s_barrier')
    for it in xdma(2) + wdma1(1) + xdma(3): it()
    e.raw(f'''
s_and_b32 s{sT1}, s{sFN}, 3
s_lshl_b32 s{sQI}, s{sT1}, 3
s_lshr_b32 s{sT1}, s{sFN}, 2
s_add_u32 s{sQI}, s{sQI}, s{sT1}
; H store base: ((tg*144)*4 + 2*(w%2))*1024, tg = (8tm+w)/2
s_lshl_b32 s{sT0}, s{sTM}, 3
s_add_u32 s{sT0}, s{sT0}, s{sWAVE}
s_lshr_b32 s{sT1}, s{sT0}, 1
s_mul_i32 s{sHO}, s{sT1}, {144*4096}
s_and_b32 s{sT1}, s{sWAVE}, 1
s_lshl_b32 s{sT1}, s{sT1}, 11
s_add_u32 s{sHO}, s{sHO}, s{sT1}
s_mov_b32 s{sQ}, s6
s_mov_b32 s{sQ+1}, s7
s_mov_b32 s{sQ+2}, {576*1152}
s_mov_b32 s{sQ+3}, 0x00020000
s_mov_b32 s{sSCALE}, {f32(-QSCALE / LOG2E)}
s_cmp_lt_u32 s{sQI}, 18
s_cbranch_scc1 KA_ROLE_DONE
s_mov_b32 s{sSCALE}, {f32(-1.0 / LOG2E)}
s_mov_b32 s{sQ+2}, 0
s_cmp_gt_u32 s{sQI}, 19
s_cbranch_scc1 KA_ROLE_DONE
s_cmp_eq_u32 s{sQI}, 18
s_cselect_b32 s{sQ}, s8, s10
s_cselect_b32 s{sQ+1}, s9, s11
s_mov_b32 s{sQ+2}, {576*36}
KA_ROLE_DONE:
s_lshr_b32 s{sT2}, s{sT0}, 1
s_lshl_b32 s{sHF}, s{sT2}, 8
s_lshl_b32 s{sT2}, s{sFN}, 3
s_add_u32 s{sHF}, s{sHF}, s{sT2}
s_lshr_b32 s{sT1}, s{sT1}, 9
s_add_u32 s{sHF}, s{sHF}, s{sT1}
s_add_u32 s{sHF}, s{sHF}, {HF_OFF}
s_lshl_b32 s{sT2}, s{sFN}, 14
s_add_u32 s{sHA}, s{sHO}, s{sT2}
s_bfe_u32 s{sT1}, s{sFN}, {0x10000 + SWB}
s_lshl_b32 s{sT1}, s{sT1}, 13
s_sub_u32 s{sHB}, s{sHA}, s{sT1}
s_add_u32 s{sHA}, s{sHA}, s{sT1}
s_mov_b32 s{sF0}, 0xf0
s_and_b32 s{sT0}, s2, 7
s_lshr_b32 s{sT1}, s2, 3
s_lshr_b32 s{sTG}, s{sT1}, 3
s_lshl_b32 s{sT0}, s{sT0}, 2
s_add_u32 s{sTG}, s{sTG}, s{sT0}
s_and_b32 s{sCG}, s{sT1}, 7
s_mov_b32 s{sMSK}, 0x33333333
s_mov_b32 s{sMSK+1}, 0xcccccccc
s_cmp_lt_u32 s{sWAVE}, 4
s_cbranch_scc1 KA_MSK
s_not_b64 {sr(sMSK, 2)}, {sr(sMSK, 2)}
KA_MSK:
; pass-1 tr-read base: g=l/16,i=l%16: g*1024 + (g&1)*32 + (i/4)*64 + (i%4)*8
v_lshrrev_b32 v6, 4, v0
v_lshlrev_b32 v{vTA0}, 10, v6
v_and_b32 v6, 1, v6
v_lshl_add_u32 v{vTA0}, v6, 5, v{vTA0}
v_bfe_u32 v6, v0, 2, 2
v_lshl_add_u32 v{vTA0}, v6, 6, v{vTA0}
v_and_b32 v6, 3, v0
v_lshl_add_u32 v{vTA0}, v6, 3, v{vTA0}
v_xor_b32 v{vTA1}, 32, v{vTA0}
s_and_b32 s{sT0}, s{sWAVE}, 1
s_lshl_b32 s{sT0}, s{sT0}, 5
v_xor_b32 v{vCS}, s{sT0}, v{vTA0}
s_bfe_u32 s{sT0}, s{sWAVE}, 0x10001
s_lshl_b32 s{sT0}, s{sT0}, 13
s_lshr_b32 s{sT1}, s{sWAVE}, 2
s_lshl_b32 s{sT1}, s{sT1}, 9
s_add_u32 s{sT0}, s{sT0}, s{sT1}
v_add_u32 v{vCS}, s{sT0}, v{vCS}
; x staging read addr: t=l%16, kg=l/16: base + t*128 + ((kg ^ (t>>1))*16)
v_bfe_u32 v6, v0, 1, 3
v_lshrrev_b32 v10, 4, v0
v_xor_b32 v6, v6, v10
v_lshlrev_b32 v6, 4, v6
v_and_b32 v10, 15, v0
v_lshl_add_u32 v6, v10, 7, v6
v_add_u32 v{vXR0}, s{sXM0}, v6
v_xor_b32 v{vXR1}, 64, v{vXR0}
v_mov_b32 v{vONE}, 0x3f803f80
v_mov_b32 v{vONE+1}, 0x3f803f80
v_mov_b32 v{vONE+2}, 0x3f803f80
v_mov_b32 v{vONE+3}, 0x3f803f80
v_lshlrev_b32 v{vL16}, 4, v0
''')

    def touch(srd, nl, vmul, soff_code):
        e.raw(soff_code)
        e.i(f'v_mul_u32_u24 v{vT0}, {vmul}, v{vL16}')
        e.i(f's_mov_b32 m0, {SCR}')
        e.i(f's_mov_b64 exec, {(1 << nl) - 1:#x}')
        e.vmop(f'buffer_load_dword v{vT0}, {sr(srd)}, s{sT2} offen lds')
        e.i('s_mov_b64 exec, -1')
    GP = f'''
s_lshl_b32 s{sT0}, s2, 2
s_and_b32 s{sT1}, s{sWAVE}, 3
s_add_u32 s{sT0}, s{sT0}, s{sT1}
'''
    def t_x(c0=2):
        touch(sX, 9 - c0, 8, f'''
s_lshl_b32 s{sT0}, s2, 3
s_add_u32 s{sT0}, s{sT0}, s{sWAVE}
s_mul_i32 s{sT2}, s{sT0}, 1152
s_add_u32 s{sT2}, s{sT2}, {c0 * 128}
''')
    def t_w(row0, line):
        touch(sW, (576 - row0) // 32, 2 * 9216, GP + f'''
s_lshr_b32 s{sT1}, s{sT0}, 5
s_mul_i32 s{sT2}, s{sT1}, 9216
s_and_b32 s{sT1}, s{sT0}, 31
s_lshl_b32 s{sT1}, s{sT1}, 8
s_add_u32 s{sT2}, s{sT2}, s{sT1}
s_add_u32 s{sT2}, s{sT2}, {row0 * 9216 + line * 128}
''')
    def t_rem():
        touch(sW, 5, 8 * 9216, GP + f'''
s_lshr_b32 s{sT1}, s{sT0}, 3
s_mul_i32 s{sT2}, s{sT1}, 9216
s_and_b32 s{sT1}, s{sT0}, 7
s_lshl_b32 s{sT1}, s{sT1}, 7
s_add_u32 s{sT2}, s{sT2}, s{sT1}
s_add_u32 s{sT2}, s{sT2}, 8192
''')
    def t_q():
        touch(sRL, 3, 16384, f'''
s_mov_b32 s{sRL}, s6
s_mov_b32 s{sRL+1}, s7
s_mov_b32 s{sRL+2}, {576*1152}
s_mov_b32 s{sRL+3}, 0x00020000
s_lshl_b32 s{sT0}, s2, 3
s_add_u32 s{sT0}, s{sT0}, s{sWAVE}
s_lshl_b32 s{sT2}, s{sT0}, 7
''')
    if 'pf1' in EXP:
        t_x(); t_w(128, 0)
    def dma_reconf():
        e.raw(f'''
v_lshrrev_b32 v{vT0}, 6, v{vL16}
v_mul_u32_u24 v{vDMA}, 9216, v{vT0}
v_lshrrev_b32 v{vT0}, 4, v{vL16}
v_xor_b32 v{vT0}, v{vT0}, v{vL16}
v_and_b32 v{vT0}, 0x20, v{vT0}
v_add_u32 v{vDMA}, v{vDMA}, v{vT0}
v_and_b32 v{vT0}, 0x10, v{vL16}
v_add_u32 v{vDMA}, v{vDMA}, v{vT0}
s_and_b32 s{sT0}, s{sWAVE}, 3
s_lshr_b32 s{sT1}, s{sWAVE}, 2
s_mul_i32 s{sWM0}, s{sT1}, 12288
s_lshl_b32 s{sT1}, s{sT0}, 10
s_add_u32 s{sWM0}, s{sWM0}, s{sT1}
s_mul_i32 s{sWSO}, s{sT0}, {16*9216}
s_lshl_b32 s{sT1}, s{sFN}, 8
s_add_u32 s{sWSO}, s{sWSO}, s{sT1}
s_bfe_u32 s{sT1}, s{sFN}, {0x10000 + SWB}
s_lshl_b32 s{sT1}, s{sT1}, 7
s_sub_u32 s{sWSO}, s{sWSO}, s{sT1}
''')
    def dma_slot(p):
        c, ph = divmod(p, 3)
        base = BUF[p] * SLOT
        items = []
        if c >= 1:
            for i in range(3):
                def f(i=i):
                    e.i(f's_add_u32 m0, s{sWM0}, {base + i * 4096}')
                    e.i(f's_add_u32 s{sT2}, s{sWSO}, {(192 * ph + 64 * i) * 9216 + 64 * (c + 1)}')
                    e.vmop(f'buffer_load_dwordx4 v{vDMA}, {sr(sW)}, s{sT2} offen lds', ('W', p))
                items.append(f)
            return items
        for i in range(3):
            def f(i=i):
                e.raw(f'''
s_and_b32 s{sT0}, s{sWAVE}, 3
s_mul_i32 s{sT2}, s{sT0}, {16*9216}
s_lshl_b32 s{sT1}, s{sFN}, 5
s_add_u32 s{sT2}, s{sT2}, s{sT1}
s_add_u32 s{sT2}, s{sT2}, {(192 * ph + 64 * i) * 9216 + 8192}
s_lshl_b32 s{sT0}, s{sT0}, 10
s_add_u32 m0, s{sT0}, {base + i * 4096}
v_and_b32 v{vT0}, 0xffffffdf, v{vDMA}
s_mov_b64 exec, {sr(sMSK, 2)}
''')
                e.vmop(f'buffer_load_dwordx4 v{vT0}, {sr(sW)}, s{sT2} offen lds', ('W', p))
                e.i('s_mov_b64 exec, -1')
            items.append(f)
        def g():
            e.raw(f'''
s_cmp_eq_u32 s{sQ+2}, {576*36}
s_cbranch_scc1 KA_S{p}K
{'s_cmp_eq_u32 s%d, 0' % (sQ+2) if 'skipq' in EXP else ''}
{'s_cbranch_scc1 KA_S%dE' % p if 'skipq' in EXP else ''}
v_lshrrev_b32 v{vT0}, 6, v{vL16}
v_mul_u32_u24 v{vT0}, 1152, v{vT0}
v_and_or_b32 v{vT0}, v{vDMA}, 48, v{vT0}
s_mul_i32 s{sT2}, s{sWAVE}, {16*1152}
s_lshl_b32 s{sT1}, s{sQI}, 6
s_add_u32 s{sT2}, s{sT2}, s{sT1}
s_add_u32 s{sT2}, s{sT2}, {192 * ph * 1152}
s_lshl_b32 s{sT0}, s{sWAVE}, 10
s_add_u32 m0, s{sT0}, {base + 12288}
s_cmp_gt_u32 s{sWAVE}, 3
buffer_load_dwordx4 v{vT0}, {sr(sQ)}, s{sT2} offen lds
s_cbranch_scc1 KA_S{p}E
s_add_u32 m0, s{sT0}, {base + 12288 + 8192}
s_add_u32 s{sT2}, s{sT2}, {128 * 1152}
buffer_load_dwordx4 v{vT0}, {sr(sQ)}, s{sT2} offen lds
s_branch KA_S{p}E
KA_S{p}K:
s_lshl_b32 s{sT1}, s{sWAVE}, 4
s_and_b32 s{sT1}, s{sT1}, 32
v_lshrrev_b32 v{vT0}, 2, v{vL16}
v_and_b32 v{vT0}, 60, v{vT0}
v_xor_b32 v{vT0}, s{sT1}, v{vT0}
v_cmp_gt_u32 vcc, 36, v{vT0}
v_mov_b32 v7, 0x7fffff00
s_mul_i32 s{sT3}, s{sWAVE}, 144
v_cndmask_b32 v{vT0}, v7, v{vT0}, vcc
v_lshrrev_b32 v7, 8, v{vL16}
v_mad_u32_u24 v{vT0}, v7, 36, v{vT0}
s_lshl_b32 s{sT0}, s{sWAVE}, 8
''')
            for i in range(6):
                e.i(f's_add_u32 m0, s{sT0}, {base + 12288 + i * 2048}')
                e.i(f's_add_u32 s{sT2}, s{sT3}, {(6 * ph + i) * 8 * 144}')
                e.i(f'buffer_load_dword v{vT0}, {sr(sQ)}, s{sT2} offen lds')
            e.label(f'KA_S{p}E')
            if 'skipq' not in EXP: e.vmcount(1, ('W', p))
        items.insert(0, g)
        return items

    FR = []
    for j in range(9):
        for ksl in range(2):
            for h in range(2):
                for b in range(4):
                    FR.append((h, b, 2 * j + ksl, b & 1, (j % 4) * 16384 + (b >> 1) * 8192 + ksl * 4096 + h * 512))
    for p in range(6):
        for ksl in range(6):
            for b in range(4):
                FR.append((2 + p // 3, b, 6 * (p % 3) + ksl, b & 1, BUF[p] * SLOT + (b >> 1) * 12288 + ksl * 2048))
    for u in range(2):
        for p in (6, 7, 8):
            for ksl in range(6):
                for mat in range(2):
                    FR.append((4, 2 * mat + u, 6 * (p % 3) + ksl, u, BUF[p] * SLOT + mat * 12288 + ksl * 2048))
    NS = 720
    sched = [[] for _ in range(NS + 1)]
    pre = [[] for _ in range(361)]
    def place(items, a, b):
        n = len(items)
        for k, it in enumerate(items):
            sched[a + (k * (b - a)) // n].append(it)

    def xread(pi):
        cgp, tb = divmod(pi, 2)
        def r0():
            if 'wst' in EXP and pi in (8, 10): e.stamp()
            e.need(vm=[('x', pi)])
            if 'wst' in EXP and pi in (8, 10): e.stamp()
            e.lgop(f'ds_read_b128 {vr(X(tb, 2 * cgp))}, v{vXR0} offset:{(pi % 5) * 2048}', ('xf', tb, 2 * cgp))
        def r1(): e.lgop(f'ds_read_b128 {vr(X(tb, 2 * cgp + 1))}, v{vXR1} offset:{(pi % 5) * 2048}', ('xf', tb, 2 * cgp + 1))
        return [r0, r1]
    XRP = ENV('XRP', 18)
    for cgp in range(1, 9):
        place(xread(2 * cgp) + xread(2 * cgp + 1), 32 * (cgp - 1) + XRP, 32 * (cgp - 1) + XRP + 4)
    place(xdma(4) + wdma1(2), 0, 8)
    place(xdma(5) + xdma(6), 8, 16)
    for cgp in range(1, 7):
        its = xdma(2 * cgp + 5) + (xdma(2 * cgp + 6) if cgp < 6 else [])
        place(its, 32 * (cgp - 1) + XRP + 8, 32 * (cgp - 1) + XRP + 24)
    place(wdma1(3), 16, 24)
    for j in range(4, 9):
        jj = j - 3 if 'lead3' in EXP else j - 2
        place(wdma1(j), 32 * jj - 4, 32 * jj + 8)
    sched[32 * 7 + 2].append(dma_reconf)
    if 'pf2' in EXP:
        P2 = ENV('PF2', 80)
        sched[P2].append(t_rem); sched[P2 + 10].append(t_q); sched[P2 + 60].append(lambda: t_w(0, 1))

    SX = [vCV, vCF]; SG = [vCV + 4, vCA]
    def stat_mm(tb, ks):
        return [I(f'v_mfma_f32_16x16x32_bf16 {vr(SX[tb])}, {vr(vONE)}, {vr(X(tb, ks))}, {0 if ks == 0 else vr(SX[tb])}'),
                I(f'v_mfma_f32_16x16x32_bf16 {vr(SG[tb])}, {vr(X(tb, ks))}, {vr(X(tb, ks))}, {0 if ks == 0 else vr(SG[tb])}')]
    for ks in range(18):
        a, b = stat_mm(0, ks)
        sched[16 * ks + 2].append(a); sched[16 * ks + 6].append(b)
    def stat_fin(tb):
        T0, T1 = vC[tb], vIR2[tb]
        fin = [I(f'v_mul_f32 v{vNM[tb]}, {f32(-1.0/576)}, v{SX[tb]}')]
        for r in range(4):
            m = sum(1 << (20 * g + r) for g in range(4))
            def f(r=r, m=m):
                e.i(f's_mov_b32 vcc_lo, {m & 0xffffffff:#x}')
                e.i(f's_mov_b32 vcc_hi, {m >> 32:#x}')
                e.i(f'v_cndmask_b32 v{T0}, {0 if r == 0 else "v%d" % T0}, v{SG[tb] + r}, vcc')
            fin.append(f)
        for swap in ('v_permlane32_swap_b32', 'v_permlane16_swap_b32'):
            fin += [I(f'v_mov_b32 v{T1}, v{T0}'), I('s_nop 1'), I(f'{swap} v{T1}, v{T0}'), I('s_nop 1'), I(f'v_add_f32 v{T0}, v{T1}, v{T0}')]
        fin += [I(f'v_mul_f32 v{T1}, v{vNM[tb]}, v{vNM[tb]}'), I(f'v_mul_f32 v{T0}, {f32(1.0/576)}, v{T0}'),
                I(f'v_sub_f32 v{T0}, v{T0}, v{T1}'), I(f'v_max_f32 v{T0}, 0, v{T0}'), I(f'v_add_f32 v{T1}, {f32(1e-5)}, v{T0}'),
                I(f'v_rsq_f32 v{T0}, v{T1}'), I('s_nop 0'), I(f'v_mul_f32 v{T0}, {f32(-LOG2E)}, v{T0}')]
        return fin
    place(stat_fin(0), 282, 288)

    def cs_rd(tag, off):
        def rd():
            e.lgop(f'ds_read_b64_tr_b16 {vr(vCF, 2)}, v{vCS} offset:{off}')
            e.lgop(f'ds_read_b64_tr_b16 {vr(vCF + 2, 2)}, v{vCS} offset:{off + 256}', ('cf', tag))
        return rd
    def cs_mm(tag, first):
        def d():
            e.need(lg=[('cf', tag)])
            e.i(f'v_mfma_f32_16x16x32_bf16 {vr(vCA)}, {vr(vONE)}, {vr(vCF)}, {0 if first else vr(vCA)}')
        return d
    def cs_wr(c):
        def ad():
            e.i(f'v_lshrrev_b32 v{vT0}, 2, v{vL16}')
            e.i(f's_lshl_b32 s{sT0}, s{sWAVE}, 6')
            e.i(f's_add_u32 s{sT0}, s{sT0}, {CST + c * 512}')
            e.i(f'v_add_u32 v{vT0}, s{sT0}, v{vT0}')
            e.i(f's_mov_b64 exec, 0xffff')
            e.lgop(f'ds_write_b32 v{vT0}, v{vCA}', ('cswr', c))
            e.i(f's_mov_b64 exec, -1')
        return ad
    for j in range(9):
        for ksl in range(2):
            t = 32 * j + 1 + (8 if j < 8 else 5) * ksl
            sched[t].append(cs_rd(('p', j, ksl), (j % 4) * 16384 + ksl * 4096))
            sched[t + 4].append(cs_mm(('p', j, ksl), j == 0 and ksl == 0))
    sched[32 * 8 + 16].append(cs_wr(0))
    def cs_move(p):
        d = (BUF[p] - BUF[p - 1]) * SLOT
        return I(f'v_add_u32 v{vCS}, {d & 0xffffffff:#x}, v{vCS}')
    for p in range(6):
        s0 = 288 + 48 * p
        if p: sched[s0].append(cs_move(p))
        for i in range(3):
            sched[s0 + 11 + 6 * i].append(cs_rd((p, i), i * 2048))
            sched[s0 + 16 + 6 * i].append(cs_mm((p, i), p % 3 == 0 and i == 0))
        if p % 3 == 2: sched[s0 + 34].append(cs_wr(2 + p // 3))
    t = 576 + 10
    for p in (6, 7, 8):
        sched[t - 1].append(cs_move(p))
        for i in range(3):
            sched[t].append(cs_rd((p, i), i * 2048)); sched[t + 4].append(cs_mm((p, i), p == 6 and i == 0)); t += 5
    sched[t + 5].append(cs_wr(4))

    def dbg_srd():
        e.raw(f'''
s_mov_b32 s{sRL}, s66
s_mov_b32 s{sRL+1}, s67
s_mov_b32 s{sRL+2}, 256
s_mov_b32 s{sRL+3}, 0x00020000
''')
    def z_set():
        e.raw(f'''
s_lshl_b32 s{sT0}, s2, 3
s_add_u32 s{sT0}, s{sT0}, s{sWAVE}
s_cmp_lg_u32 s{sT0}, 0
s_cbranch_scc1 KA_NOZS
''')
        dbg_srd()
        e.raw(f'''
v_mov_b32 v{vT0}, 1
s_mov_b64 exec, 1
buffer_store_dword v{vT0}, v{vL16}, {sr(sRL)}, 0 offen sc1
s_mov_b64 exec, -1
KA_NOZS:
''')
    sched[3].append(z_set)
    def spin(lbl, dst, load, tag):
        e.need(vm=[tag])
        e.raw(f'''
s_mov_b32 s{sT3}, 0x40000
{lbl}:
v_cmp_ne_u32 vcc, 1, v{dst}
s_cmp_eq_u64 vcc, 0
s_cbranch_scc1 {lbl}_OK
s_sleep {ENV('SLP', 32)}
{load}
s_waitcnt vmcnt(0)
s_sub_u32 s{sT3}, s{sT3}, 1
s_cmp_lg_u32 s{sT3}, 0
s_cbranch_scc1 {lbl}
{lbl}_OK:
''')
    ZR = ACC(1, 2, 0)
    z_ld = f'buffer_load_dword v{ZR}, v{ZR+1}, {sr(sRL)}, 0 offen sc1'
    def z_load():
        dbg_srd()
        e.i(f'v_mov_b32 v{ZR+1}, 0')
        e.vmop(z_ld, 'z')
    if 'noz' not in EXP: sched[350].append(z_load)
    if 'noz' not in EXP: sched[410].append(lambda: spin('KA_ZS', ZR, z_ld, 'z'))
    marks = {}
    def e_set(off=EF_OFF, lbl='KA_NOES'):
        e.raw(f'''
s_cmp_lg_u32 s{sWAVE}, 0
s_cbranch_scc1 {lbl}
s_lshl_b32 s{sT0}, s2, 2
s_add_u32 s{sT0}, s{sT0}, {off}
v_mov_b32 v{vT0}, 1
s_mov_b64 exec, 1
buffer_store_dword v{vT0}, v{vL16}, {sr(sWS)}, s{sT0} offen sc1
s_mov_b64 exec, -1
{lbl}:
''')
    ER = ACC(0, 1, 0)
    e_ld = f'buffer_load_dword v{ER}, v{ER+1}, {sr(sWS)}, s{sT4} offen sc1'
    def e_load():
        e.i(f's_lshl_b32 s{sT4}, s{sWAVE}, 7')
        e.i(f's_add_u32 s{sT4}, s{sT4}, {EF_OFF}')
        e.i(f'v_lshrrev_b32 v{ER+1}, 2, v{vL16}')
        e.i(f'v_and_b32 v{ER+1}, 0x7c, v{ER+1}')
        e.vmop(e_ld, 'e')
    sched[ENV('ELD', 618)].append(e_load)
    sched[644].append(lambda: (e.stamp(), spin('KA_ES', ER, e_ld, 'e'), e.stamp()))
    def kvdma(i):
        def f():
            e.i(f's_lshl_b32 s{sT0}, s{sWAVE}, 10')
            e.i(f's_add_u32 m0, s{sT0}, {KVL0 + i * 8192}')
            e.i(f's_add_u32 s{sT2}, s{sT0}, {KV_OFF + i * 8192}')
            e.vmop(f'buffer_load_dwordx4 v{vL16}, {sr(sWS)}, s{sT2} offen sc1 lds', 'kv')
        return f
    place([kvdma(i) for i in range(5)], 650, 690)
    def qload():
        t0, t1, t2, t3 = X(0, 2), X(0, 2) + 1, X(0, 2) + 2, X(0, 2) + 3
        e.raw(f'''
s_cmp_lt_u32 s{sWAVE}, 4
s_cbranch_scc1 KA_NOQ
s_lshl_b32 s{sT0}, s{sCG}, 2
s_and_b32 s{sT1}, s{sWAVE}, 3
s_add_u32 s{sT0}, s{sT0}, s{sT1}
s_mul_i32 s{sT0}, s{sT0}, 18
s_lshl_b32 s{sT1}, s{sTG}, 12
s_add_u32 s{sT1}, s{sT1}, {Q_OFF}
v_and_b32 v{t0}, 0x1f0, v{vL16}
v_lshlrev_b32 v{t0}, 2, v{t0}
v_lshrrev_b32 v{t1}, 6, v{vL16}
v_and_b32 v{t1}, 8, v{t1}
v_add_u32 v{t1}, s{sT0}, v{t1}
''')
        for r in range(5):
            if r == 4:
                e.i(f'v_lshrrev_b32 v{t1}, 9, v{vL16}')
                e.i(f'v_lshl_add_u32 v{t0}, v{t1}, 28, v{t0}')
                e.i(f's_add_u32 s{sT0}, s{sT0}, 16')
                e.i(f'v_mov_b32 v{t1}, s{sT0}')
            e.raw(f'''
v_lshrrev_b32 v{t2}, 5, v{t1}
v_lshl_add_u32 v{t2}, v{t2}, 17, v{t0}
v_and_b32 v{t3}, 12, v{t1}
v_lshl_add_u32 v{t2}, v{t3}, 2, v{t2}
v_bfe_u32 v{t3}, v{t1}, 4, 1
v_lshl_add_u32 v{t2}, v{t3}, 3, v{t2}
v_and_b32 v{t3}, 2, v{t1}
v_lshl_add_u32 v{t2}, v{t3}, 1, v{t2}
buffer_load_dword v{16 + r}, v{t2}, {sr(sWS)}, s{sT1} offen sc1
buffer_load_dword v{24 + r}, v{t2}, {sr(sWS)}, s{sT1} offen offset:2048 sc1
v_add_u32 v{t1}, 2, v{t1}
''')
        e.raw(f'''
KA_NOQ:
v_mov_b32 v{t0}, 0
v_lshrrev_b32 v{t1}, 2, v{vL16}
v_add_u32 v{t1}, {FLG}, v{t1}
s_mov_b64 exec, 31
''')
        e.lgop(f'ds_write_b32 v{t1}, v{t0}', 'flgclr')
        e.i('s_mov_b64 exec, -1')
    sched[664].append(qload)

    RT = vCF
    def rl_dma():
        e.raw(f'''
s_lshl_b32 s{sT0}, s{sWAVE}, 8
s_add_u32 s{sT0}, s{sT0}, s2
s_mul_i32 s{sT1}, s{sT0}, 7282
s_lshr_b32 s{sT1}, s{sT1}, 16
s_mul_i32 s{sT2}, s{sT1}, 9
s_sub_u32 s{sT2}, s{sT0}, s{sT2}
s_lshl_b32 s{sRLD}, s{sT0}, 12
s_add_u32 s{sRLD}, s{sRLD}, {W2R_OFF}
s_mov_b32 s{sRL+3}, 0x00020000
s_lshl_b32 s{sT2}, s{sT2}, 7
s_lshl_b32 s{sT0}, s{sWAVE}, 12
s_add_u32 s{sT0}, s{sT0}, {XS2}
v_bfe_u32 v{RT}, v{vL16}, 7, 1
v_mul_u32_u24 v{RT}, 1152, v{RT}
v_and_b32 v{RT+1}, 0x70, v{vL16}
v_add_u32 v{RT}, v{RT}, v{RT+1}
v_bfe_u32 v{RT+1}, v{vL16}, 8, 1
v_lshrrev_b32 v{RT+2}, 9, v{vL16}
v_mul_u32_u24 v{RT+1}, 1152, v{RT+1}
v_mul_u32_u24 v{RT+2}, 1152, v{RT+2}
s_cmp_lt_u32 s{sT1}, 144
s_cbranch_scc0 KA_RLWO
s_mov_b32 s{sRL}, s20
s_mov_b32 s{sRL+1}, s21
s_mov_b32 s{sRL+2}, {4608*1152}
s_cmp_lt_u32 s{sT1}, 128
s_cselect_b32 s{sT3}, 4, 2
s_cselect_b32 s{sT4}, 4, 8
s_mul_i32 s{sT4}, s{sT4}, 1152
s_mul_i32 s{sT1}, s{sT1}, {32*1152}
s_add_u32 s{sT2}, s{sT2}, s{sT1}
v_lshl_add_u32 v{RT+3}, v{RT+1}, 1, v{RT}
v_lshl_add_u32 v{RT+3}, v{RT+2}, s{sT3}, v{RT+3}
''')
        for i in range(4):
            e.i(f's_add_u32 m0, s{sT0}, {i * 1024}')
            e.i(f's_add_u32 s{sT2}, s{sT2}, s{sT4}' if i else 's_nop 0')
            e.i(f'buffer_load_dwordx4 v{RT+3}, {sr(sRL)}, s{sT2} offen{NTR} lds')
        e.raw(f'''
s_branch KA_RLE
KA_RLWO:
s_mov_b32 s{sRL}, s12
s_mov_b32 s{sRL+1}, s13
s_cmp_lt_u32 s{sT1}, 162
s_cselect_b32 s{sRL+2}, {576*1152}, 0
s_cselect_b32 s{sRLD}, s{sRLD}, 0x7f000000
s_sub_u32 s{sT1}, s{sT1}, 144
s_lshl_b32 s{sT1}, s{sT1}, 2
''')
        for i in range(4):
            e.raw(f'''
s_add_u32 s{sT3}, s{sT1}, {i}
s_mul_i32 s{sT4}, s{sT3}, 7282
s_lshr_b32 s{sT4}, s{sT4}, 16
s_mul_i32 vcc_lo, s{sT4}, 9
s_sub_u32 s{sT3}, s{sT3}, vcc_lo
s_mul_i32 s{sT4}, s{sT4}, 72
s_lshr_b32 vcc_lo, s{sT3}, 1
s_mul_i32 vcc_lo, vcc_lo, 18
s_and_b32 vcc_hi, s{sT3}, 1
s_lshl_b32 vcc_hi, vcc_hi, 2
s_add_u32 vcc_lo, vcc_lo, vcc_hi
s_cmp_eq_u32 s{sT3}, 8
s_cselect_b32 vcc_lo, 16, vcc_lo
s_add_u32 s{sT4}, s{sT4}, vcc_lo
s_mul_i32 s{sT4}, s{sT4}, 1152
s_add_u32 s{sT4}, s{sT4}, s{sT2}
s_cmp_eq_u32 s{sT3}, 8
s_cselect_b32 vcc_lo, 18, 2
s_cselect_b32 vcc_hi, 36, 8
v_mad_u32_u24 v{RT+3}, v{RT+1}, vcc_lo, v{RT}
v_mad_u32_u24 v{RT+3}, v{RT+2}, vcc_hi, v{RT+3}
s_add_u32 m0, s{sT0}, {i * 1024}
s_nop 0
buffer_load_dwordx4 v{RT+3}, {sr(sRL)}, s{sT4} offen{NTR} lds
''')
        e.label('KA_RLE')
        e.vmcount(4, 'rl')
    sched[ENV('RLS', 515)].append(rl_dma)
    RQ = [ACC(0, 1, 0), ACC(0, 1, 1), ACC(0, 3, 0), ACC(0, 3, 1)]
    def rl_rd():
        e.need(vm=['rl'])
        e.raw(f'''
v_lshrrev_b32 v{vT0}, 8, v{vL16}
v_lshlrev_b32 v{vT0}, 10, v{vT0}
v_and_b32 v{RQ[0]}, 0xc0, v{vL16}
v_lshl_add_u32 v{vT0}, v{RQ[0]}, 1, v{vT0}
v_bfe_u32 v{RQ[0]}, v{vL16}, 4, 2
v_lshl_add_u32 v{vT0}, v{RQ[0]}, 3, v{vT0}
s_lshl_b32 s{sT0}, s{sWAVE}, 12
s_add_u32 s{sT0}, s{sT0}, {XS2}
v_add_u32 v{vT0}, s{sT0}, v{vT0}
''')
        for q in range(4):
            e.lgop(f'ds_read_b64_tr_b16 {vr(RQ[q], 2)}, v{vT0} offset:{q * 32}')
            e.lgop(f'ds_read_b64_tr_b16 {vr(RQ[q] + 2, 2)}, v{vT0} offset:{q * 32 + 512}', ('rlf', q))
    RLF = ENV('RLF', 590)
    sched[RLF].append(rl_rd)
    for q in range(4):
        def st(q=q):
            e.need(lg=[('rlf', q)])
            e.vmop(f'buffer_store_dwordx4 {vr(RQ[q])}, v{vL16}, {sr(sWS)}, s{sRLD} offen offset:{q * 1024} sc1', 'rls')
        sched[RLF + 8 + 4 * q].append(st)

    def cs_load(c, b0, b1, t0=None, t1=None):
        base = CST + (c * 512 if c >= 2 else c * 256)
        def f():
            e.i(f'v_lshrrev_b32 v{vT0}, 4, v{vL16}')
            e.i(f'v_and_b32 v{vT0}, 48, v{vT0}')
            e.i(f'v_add_u32 v{vT0}, {base}, v{vT0}')
            e.lgop(f'ds_read_b128 {vr(vCV)}, v{vT0} offset:{b0 * 64}')
            if c >= 2: e.lgop(f'ds_read_b128 {vr(t0)}, v{vT0} offset:{256 + b0 * 64}')
            e.lgop(f'ds_read_b128 {vr(vCV + 4)}, v{vT0} offset:{b1 * 64}', ('cv', c, b0))
            if c >= 2: e.lgop(f'ds_read_b128 {vr(t1)}, v{vT0} offset:{256 + b1 * 64}', ('cv', c, b0))
        def g():
            e.need(lg=[('cv', c, b0)])
            if c >= 2:
                for r in range(4): e.i(f'v_add_f32 v{vCV + r}, v{vCV + r}, v{t0 + r}')
        def h():
            if c >= 2:
                for r in range(4): e.i(f'v_add_f32 v{vCV + 4 + r}, v{vCV + 4 + r}, v{t1 + r}')
        return f, g, h
    def swiglu(c, bg, bu, tb, outs):
        buf = c & 1
        g = ACC(buf, bg, tb); u = ACC(buf, bu, tb)
        it = []
        for r in range(4): it.append(I(f'v_fma_f32 v{g + r}, v{vNM[tb]}, v{vCV + r}, v{g + r}'))
        for r in range(4): it.append(I(f'v_fma_f32 v{u + r}, v{vNM[tb]}, v{vCV + 4 + r}, v{u + r}'))
        for r in range(4): it.append(I(f'v_mul_f32 v{u + r}, v{g + r}, v{u + r}'))
        for r in range(4): it.append(I(f'v_mul_f32 v{g + r}, v{vC[tb]}, v{g + r}'))
        for r in range(4): it.append(I(f'v_exp_f32 v{g + r}, v{g + r}'))
        for r in range(4): it.append(I(f'v_fma_f32 v{g + r}, v{g + r}, v{vIR2[tb]}, v{vIR2[tb]}'))
        for r in range(4): it.append(I(f'v_rcp_f32 v{g + r}, v{g + r}'))
        for r in range(4): it.append(I(f'v_mul_f32 v{u + r}, v{g + r}, v{u + r}'))
        it.append(I(f'v_cvt_pk_bf16_f32 v{outs[0]}, v{u}, v{u + 1}'))
        it.append(I(f'v_cvt_pk_bf16_f32 v{outs[1]}, v{u + 2}, v{u + 3}'))
        return it
    def hstore(c, tb):
        def st_():
            e.i(f's_add_u32 s{sT0}, s{sHA if c < 2 else sHB}, {H_OFF + KBI[c] * 4096 + tb * 1024}')
            e.vmop(f'buffer_store_dwordx4 {vr(ACC(c & 1, 0, tb))}, v{vL16}, {sr(sWS)}, s{sT0} offen sc1', 'hs')
        return st_
    def head(c, b0, b1, s0):
        f, g, h = cs_load(c, b0, b1, vCA, vCF)
        sched[s0].append(f); sched[s0 + 5].append(g); sched[s0 + 6].append(h)
    def epi_half(c, half, with_load, tbs=(0, 1)):
        buf = c & 1
        it = []
        if with_load:
            f, g, h = cs_load(c, half, 2 + half, ACC(buf, 2, 0), ACC(buf, 2, 1))
            it += [f, NOP, NOP, NOP, NOP, g, h]
        for tb in tbs:
            o = ACC(buf, 0, tb)
            it += swiglu(c, half, 2 + half, tb, [o + 2 * half, o + 2 * half + 1])
            if half == 1: it.append(hstore(c, tb))
        return it
    def epi_special():
        it = []
        for tb in range(2):
            for b in (2, 3):
                a = ACC(0, b, tb)
                for r in range(4): it.append(I(f'v_fma_f32 v{a + r}, v{vNM[tb]}, v{vCV + 4 * (b - 2) + r}, v{a + r}'))
                def sc(a=a, tb=tb):
                    e.i(f'v_mul_f32 v{vT0}, s{sSCALE}, v{vC[tb]}')
                    for r in range(4): e.i(f'v_mul_f32 v{a + r}, v{vT0}, v{a + r}')
                it.append(sc)
                d = ACC(0, 2, tb) + 2 * (b - 2)
                it.append(I(f'v_cvt_pk_bf16_f32 v{d}, v{a}, v{a + 1}'))
                it.append(I(f'v_cvt_pk_bf16_f32 v{d + 1}, v{a + 2}, v{a + 3}'))
        def stores():
            A = lambda b, tb: ACC(0, b, tb)
            t0, t1, t2 = vCV, vCV + 1, vCV + 2
            e.raw(f'''
s_cmp_gt_u32 s{sQI}, 19
s_cbranch_scc1 KA_QKV_DONE
v_bfe_u32 v{t0}, v{vL16}, 4, 4
v_lshrrev_b32 v{t1}, 8, v{vL16}
s_lshl_b32 s{sT0}, s{sTM}, 3
s_add_u32 s{sT0}, s{sT0}, s{sWAVE}
s_cmp_lt_u32 s{sQI}, 18
s_cbranch_scc0 KA_KV
v_lshlrev_b32 v{t2}, 6, v{t0}
v_lshl_add_u32 v{t2}, v{t1}, 4, v{t2}
s_lshl_b32 s{sT1}, s{sQI}, 17
s_lshl_b32 s{sT0}, s{sT0}, 11
s_add_u32 s{sT1}, s{sT1}, s{sT0}
s_add_u32 s{sT1}, s{sT1}, {Q_OFF}
buffer_store_dwordx4 {vr(A(2,0))}, v{t2}, {sr(sWS)}, s{sT1} offen sc1
buffer_store_dwordx4 {vr(A(2,1))}, v{t2}, {sr(sWS)}, s{sT1} offen offset:1024 sc1
s_branch KA_QKV_DONE
KA_KV:
s_mul_i32 s{sT1}, s{sT0}, {REC}
s_add_u32 s{sT1}, s{sT1}, {KV_OFF}
s_mul_i32 s{sT0}, s{sWAVE}, 2048
s_add_u32 s{sT0}, s{sT0}, {4 * SLOT}
s_cmp_eq_u32 s{sQI}, 18
s_cbranch_scc0 KA_V
; K1[half=rg/2][key][ (rg%2)*8 ] , K2[key] from rg==0 lanes
v_lshrrev_b32 v{t2}, 1, v{t1}
v_lshlrev_b32 v{t2}, 9, v{t2}
v_lshl_add_u32 v{t2}, v{t0}, 4, v{t2}
v_and_b32 v{vT0}, 1, v{t1}
v_lshl_add_u32 v{t2}, v{vT0}, 3, v{t2}
v_add_u32 v{t2}, s{sT0}, v{t2}
ds_write_b64 v{t2}, {vr(A(2,0),2)}
ds_write_b64 v{t2}, {vr(A(2,1),2)} offset:256
v_lshlrev_b32 v{t2}, 2, v{t0}
v_add_u32 v{t2}, s{sT0}, v{t2}
s_mov_b64 exec, 0xffff
ds_write_b32 v{t2}, v{A(2,0)+2} offset:{K2_IN}
ds_write_b32 v{t2}, v{A(2,1)+2} offset:{K2_IN + 64}
s_mov_b64 exec, -1
s_branch KA_KVST
KA_V:
; V[kblk][half=(t/4)%2][d][j=4(t/8)+t%4] : off = half*288 + d*16 + j*2 , d = 4rg+i
s_add_u32 s{sT1}, s{sT1}, {V_IN}
v_bfe_u32 v{t2}, v{t0}, 2, 1
v_mul_u32_u24 v{t2}, 288, v{t2}
v_lshrrev_b32 v{vT0}, 3, v{t0}
v_lshl_add_u32 v{t2}, v{vT0}, 3, v{t2}
v_and_b32 v{vT0}, 3, v{t0}
v_lshl_add_u32 v{t2}, v{vT0}, 1, v{t2}
v_lshl_add_u32 v{t2}, v{t1}, 6, v{t2}
v_add_u32 v{t2}, s{sT0}, v{t2}
''')
            for tb in range(2):
                o = tb * 576
                e.i(f'ds_write_b16 v{t2}, v{A(2,tb)} offset:{o}')
                e.i(f'ds_write_b16_d16_hi v{t2}, v{A(2,tb)} offset:{o + 16}')
                e.i(f'ds_write_b16 v{t2}, v{A(2,tb)+1} offset:{o + 32}')
                e.i(f'ds_write_b16_d16_hi v{t2}, v{A(2,tb)+1} offset:{o + 48}')
            e.i('s_mov_b64 exec, 0xffff')
            for tb in range(2):
                o = tb * 576
                e.i(f'ds_write_b16 v{t2}, v{A(2,tb)+2} offset:{o + 256}')
                e.i(f'ds_write_b16_d16_hi v{t2}, v{A(2,tb)+2} offset:{o + 272}')
            e.raw(f'''
s_mov_b64 exec, -1
KA_KVST:
v_add_u32 v{t2}, s{sT0}, v{vL16}
ds_read_b128 {vr(A(2,0))}, v{t2}
ds_read_b128 {vr(A(2,1))}, v{t2} offset:1024
s_waitcnt lgkmcnt(0)
buffer_store_dwordx4 {vr(A(2,0))}, v{vL16}, {sr(sWS)}, s{sT1} offen sc1
s_mov_b64 exec, 0xff
buffer_store_dwordx4 {vr(A(2,1))}, v{vL16}, {sr(sWS)}, s{sT1} offen offset:1024 sc1
s_mov_b64 exec, -1
''')
            e.label('KA_QKV_DONE')
        it.append(stores)
        it1 = it
        it = []
        f, g, h = cs_load(2, 0, 1, ACC(0, 2, 0), ACC(0, 2, 1))
        it += [f, NOP, NOP, NOP, NOP, g, h]
        o = ACC(0, 0, 0)
        it += swiglu(2, 0, 1, 0, [o, o + 1])
        it += swiglu(2, 0, 1, 1, [o + 2, o + 3])
        def st_():
            e.raw(f'''
s_lshr_b32 s{sT0}, s{sFN}, 1
s_lshl_b32 s{sT0}, s{sT0}, 12
s_and_b32 s{sT1}, s{sFN}, 1
s_lshl_b32 s{sT1}, s{sT1}, 9
s_add_u32 s{sT0}, s{sT0}, s{sT1}
s_add_u32 s{sT0}, s{sT0}, s{sHO}
s_add_u32 s{sT0}, s{sT0}, {H_OFF + 128 * 4096}
v_permlane16_swap_b32 v{o}, v{o + 2}
v_permlane16_swap_b32 v{o + 1}, v{o + 3}
v_and_b32 v{vT0}, 0x100, v{vL16}
v_lshlrev_b32 v{vT0}, 2, v{vT0}
v_and_or_b32 v{vT0}, v{vL16}, s{sF0}, v{vT0}
v_lshrrev_b32 v{o + 4}, 1, v{vL16}
v_and_b32 v{o + 4}, 0x100, v{o + 4}
v_add_u32 v{vT0}, v{vT0}, v{o + 4}
''')
            e.vmop(f'buffer_store_dwordx4 {vr(o)}, v{vT0}, {sr(sWS)}, s{sT0} offen sc1', 'hs')
        it.append(st_)
        return it1, it
    place(epi_half(1, 0, True) + epi_half(1, 1, True), 288, 288 + 138)
    head(2, 2, 3, 432)
    sp1, sp2 = epi_special()
    place(sp1, 432 + 8, 432 + 40)
    place(sp2, 432 + 42, 432 + 138)
    sched[473].append(lambda: marks.__setitem__('e', e.mark()))
    head(3, 0, 2, 576)
    place(epi_half(3, 0, False) + epi_half(3, 1, True), 576 + 8, 576 + 72)
    head(4, 0, 2, 648)
    f, g, h = cs_load(4, 1, 3, ACC(0, 2, 0), ACC(0, 2, 1))
    place(epi_half(4, 0, False) + [f, NOP, NOP, NOP, g, h], 648 + 8, 719)

    D = NAF - 1
    def bar(vm, lg, dmas, stamp=False, span=DSP * 3, eflag=False):
        def f(n):
            e.need(vm=vm, lg=lg)
            if eflag: e.stamp()
            if eflag: e.need_mark(marks['e'])
            if eflag: e.stamp()
            e.i('s_barrier')
            if eflag: e.stamp()
            if eflag: e_set()
            if stamp or 'allstamps' in EXP: e.stamp()
            its = [it for p in dmas for it in dma_slot(p)]
            if its: place(its, 2 * n + 2, 2 * n + 2 + span)
        return f
    for j in range(1, 9):
        lg = [('xf', 1, 17)] if j == 8 else []
        if 'lead3' in EXP and j <= 5: lg = [('af', 16 * j - 1)]
        pre[16 * j - D].append(bar([('Wp', j)], lg, [0, 1] if j == 8 else [], j % 3 == 0, span=30))
    for p in range(6):
        dm = {0: [4], 1: [5], 3: [6], 4: [7], 5: [8]}.get(p, [])
        pre[144 + 24 * (p + 1) - D].append(bar([('W', p + 1)], [('cswr', 2 + p // 3)] if p % 3 == 2 else [], dm, p % 3 == 2, span=(DSP * 3 if p < 5 else 12), eflag=(p == 4)))
    pre[288 + 12 - D].append(bar([('W', 7)], [], []))
    pre[288 + 24 - D - 2].append(bar([('W', 8)], [], []))
    pre[288 + 36 - 1].append(bar([], [('cswr', 4)], [], True))

    place(dma_slot(3), 290, 326)
    cur = {0: 0, 1: 0}
    def rdA(n, r):
        c, b, ks, u, off = FR[n]
        a = vTA1 if u else vTA0
        if not (0 <= off - cur[u] <= 65535 - 256):
            nb = (off // SLOT) * SLOT
            e.i(f'v_add_u32 v{a}, {(nb - cur[u]) & 0xffffffff:#x}, v{a}')
            cur[u] = nb
        e.lgop(f'ds_read_b64_tr_b16 {vr(AF(n) + 2 * r, 2)}, v{a} offset:{off - cur[u] + r * 256}', ('af', n) if r else None)

    def window():
        e.need(lg=[('cswr', 0)])
        e.i('s_barrier')
        e.stamp()
        for it in dma_slot(2): it()
        mm = [m for ks in range(18) for m in stat_mm(1, ks)]
        va = epi_half(0, 0, True, (0,)) + epi_half(0, 1, True, (0,))
        k = 0
        for i_, m in enumerate(mm):
            m()
            while k < (i_ + 1) * (len(va) - 12) // len(mm):
                va[k](); k += 1
        e.raw(f'''
v_lshrrev_b32 v{vT0}, 8, v{vL16}
v_lshlrev_b32 v{vT0}, 9, v{vT0}
v_sub_u32 v{vTA0}, v{vTA0}, v{vT0}
v_sub_u32 v{vTA1}, v{vTA1}, v{vT0}
s_and_b32 s{sT0}, s{sWAVE}, 1
s_lshl_b32 s{sT0}, s{sT0}, 5
v_xor_b32 v{vCS}, s{sT0}, v{vTA0}
s_bfe_u32 s{sT0}, s{sWAVE}, 0x10001
s_mul_i32 s{sT0}, s{sT0}, 12288
s_lshr_b32 s{sT1}, s{sWAVE}, 2
s_mul_i32 s{sT1}, s{sT1}, 6144
s_add_u32 s{sT0}, s{sT0}, s{sT1}
s_add_u32 s{sT0}, s{sT0}, {BUF[0] * SLOT}
v_add_u32 v{vCS}, s{sT0}, v{vCS}
''')
        fin = stat_fin(1)
        rest = va[k:]
        for i_ in range(max(len(fin), len(rest))):
            if i_ < len(fin): fin[i_]()
            if i_ < len(rest): rest[i_]()
        o = ACC(0, 0, 1)
        t2 = ACC(0, 1, 1)
        for it in swiglu(0, 1, 3, 1, [t2, t2 + 1])[:8]: it()
        f, g, h = cs_load(0, 0, 2)
        f()
        for it in swiglu(0, 1, 3, 1, [t2, t2 + 1])[8:]: it()
        g()
        vb = swiglu(0, 0, 2, 1, [o, o + 1])
        for it in vb[:20]: it()
        e.need(vm=[('W', 0)])
        e.i('s_barrier')
        for n in range(144, 144 + D):
            rdA(n, 0); rdA(n, 1)
        for it in vb[20:]: it()
        e.i(f'v_mov_b32 v{o + 2}, v{t2}')
        e.i(f'v_mov_b32 v{o + 3}, v{t2 + 1}')
        hstore(0, 1)()
        e.stamp()

    e.stamp()
    for it in xread(0) + xread(1): it()
    e.need(vm=[('Wp', 0)])
    e.i('s_barrier')
    e.stamp()
    for n in range(D):
        rdA(n, 0); rdA(n, 1)
    for n in range(360):
        c, b, ks, u, off = FR[n]
        if n == 144: window()
        for f in pre[n]: f(n)
        for tb in range(2):
            e.need(lg=[('af', n)] + ([('xf', tb, ks)] if c == 0 else []))
            acc = ACC(c & 1, b, tb)
            e.i(f'v_mfma_f32_16x16x32_bf16 {vr(acc)}, {vr(AF(n))}, {vr(X(tb, ks))}, {0 if ks == 0 else vr(acc)}')
            if n + D < 360 and not (n < 144 <= n + D): rdA(n + D, tb)
            for it in sched[2 * n + tb]: it()
    e.need(vm=['kv'])
    e.drain(lg=True)
    e.i('s_barrier')
    e_set(RF_OFF, 'KA_NORS')
    e.i('s_nop 4')
    e.stamp()
    for it in epi_half(4, 1, False): it()
    e.stamp()
```

```python
from emit import *
from common import *
import os
EXP = os.environ.get('EXP', '').split(',')
import fa
FLG = fa.FLG
SP_OFF = 73728
DEPTH = int(os.environ.get('DEPTH', 4))
HSLP = int(os.environ.get('HSLP', 6))
HFT = int(os.environ.get('HFT', 1))
PRIO_A = int(os.environ.get('PRIO_A', 1))
PRIO_G = int(os.environ.get('PRIO_G', 0))

sX, sOUT, sWS = fa.sX, 28, fa.sWS
sWAVE, sTG, sCG, sODD = fa.sWAVE, fa.sTG, fa.sCG, 6
sT0, sT1, sT2, sT3 = 32, 33, 34, 35
sHO, sWM, sWSH = 45, 46, 47
sIT, sRDY, sNT, sOFFS, sFINAL = 48, 49, 50, 51, 52
sVM = 54
sW4, sINC, sMB = 7, 56, 57
sHF = fa.sHF

def gen_kb(e):
    e.raw(f'''
s_and_b32 s{sODD}, s{sCG}, 1
s_and_b32 s{sW4}, s{sWAVE}, 3
''')
    def hflag(tmp):
        e.raw(f'''
v_mov_b32 v{tmp}, 1
v_mov_b32 v{tmp+1}, 0
s_mov_b64 exec, 1
buffer_store_dword v{tmp}, v{tmp+1}, {sr(sWS)}, s{sHF} offen sc1
s_mov_b64 exec, -1
''')
    ns0 = e.nstamp
    e.i(f's_cmp_lt_u32 s{sWAVE}, 4')
    e.i('s_cbranch_scc1 KB_GEMM')
    head_lines = e.lines; e.lines = []
    e.label('KB_GEMM')

    vL16, vA, vB, vT = 0, 1, 2, 3
    F = lambda t: 4 + 4 * t
    S = lambda t: 76 + 4 * t
    BUFS = [148, 184, 220, 76, 112][:DEPTH]
    e.i(f's_setprio {PRIO_G}')
    e.drain(vm=True)
    hflag(4)
    e.stamp()
    e.i(f's_lshl_b32 s{sT0}, s{sWAVE}, 10')
    for i in range(26):
        pi = 40 + 4 * i
        e.i(f's_add_u32 m0, s{sT0}, {(KVL0 + pi * 1024) if pi < 72 else (pi - 72) * 1024}')
        e.i(f's_add_u32 s{sT2}, s{sT0}, {KV_OFF + pi * 1024}')
        e.vmop(f'buffer_load_dwordx4 v{vL16}, {sr(sWS)}, s{sT2} offen sc1 lds', ('kv', 1))
    e.raw(f'''
s_lshl_b32 s{sT2}, s{sODD}, 11
v_add_u32 v{vA}, s{sT2}, v{vL16}
v_xor_b32 v{vB}, 0x800, v{vA}
s_mul_i32 s{sHO}, s{sTG}, {144 * 4096}
s_lshl_b32 s{sT2}, s{sWAVE}, 12
s_add_u32 s{sHO}, s{sHO}, s{sT2}
s_lshr_b32 s{sT2}, s{sCG}, 1
s_mul_i32 s{sWSH}, s{sT2}, {9 * 1024}
s_mul_i32 s{sT2}, s{sWAVE}, {36 * 1024}
s_add_u32 s{sWSH}, s{sWSH}, s{sT2}
s_add_u32 s{sWSH}, s{sWSH}, {W2R_OFF}
s_mul_i32 s{sT2}, s{sODD}, {5 * 1024}
s_add_u32 s{sWM}, s{sWSH}, s{sT2}
s_add_u32 s{sWSH}, s{sWSH}, {4 * 1024}
s_lshl_b32 s{sT3}, s{sWAVE}, 2
s_add_u32 s{sT3}, s{sT3}, {FLG}
''')
    def loads(i):
        r = BUFS[i % DEPTH]
        for j in range(4):
            e.vmop(f'buffer_load_dwordx4 {vr(r + 4 * j)}, v{vA if j < 2 else vB}, {sr(sWS)}, s{sHO} offen offset:{(j & 1) * 1024} sc1', ('g', i, 0))
        for j in range(4):
            e.vmop(f'buffer_load_dwordx4 {vr(r + 16 + 4 * j)}, v{vL16}, {sr(sWS)}, s{sWM} offen offset:{j * 1024} sc1', ('g', i, j))
        e.vmop(f'buffer_load_dwordx4 {vr(r + 32)}, v{vL16}, {sr(sWS)}, s{sWSH} offen sc1', ('g', i, 4))
        e.i(f's_add_u32 s{sHO}, s{sHO}, {4 * 4096}')
        e.i(f's_add_u32 s{sWM}, s{sWM}, {4 * 36 * 1024}')
        e.i(f's_add_u32 s{sWSH}, s{sWSH}, {4 * 36 * 1024}')
    def flag(n, val):
        e.need(vm=[('kv', n)])
        e.i(f'v_mov_b32 v{vT}, s{sT3}')
        e.i(f'v_mov_b32 v{F(0)}, {val}')
        e.i('s_mov_b64 exec, 1')
        e.lgop(f'ds_write_b32 v{vT}, v{F(0)}')
        e.i('s_mov_b64 exec, -1')
    flag(1, 8)
    e.stamp()
    e.raw(f'''
s_lshl_b32 s{sT2}, s{sTG}, 8
s_add_u32 s{sT2}, s{sT2}, {HF_OFF}
v_lshrrev_b32 v{vT}, 2, v{vL16}
s_mov_b32 s{sIT}, 0x40000
s_mov_b32 s{sT0}, {RF_OFF}
KB_HP:
buffer_load_dword v{F(0)}, v{vT}, {sr(sWS)}, s{sT2} offen sc1
buffer_load_dwordx4 {vr(F(1))}, v{vL16}, {sr(sWS)}, s{sT0} offen sc1
s_waitcnt vmcnt(0)
v_and_b32 v{F(0)}, v{F(0)}, v{F(1)}
v_and_b32 v{F(1)+1}, v{F(1)+1}, v{F(1)+2}
v_and_b32 v{F(0)}, v{F(0)}, v{F(1)+3}
v_and_b32 v{F(0)}, v{F(0)}, v{F(1)+1}
v_cmp_ne_u32 vcc, 1, v{F(0)}
s_cmp_eq_u64 vcc, 0
s_cbranch_scc1 KB_HGO
s_sleep {HSLP}
s_sub_u32 s{sIT}, s{sIT}, 1
s_cmp_lg_u32 s{sIT}, 0
s_cbranch_scc1 KB_HP
KB_HGO:
''')
    e.stamp()
    e.vm = []; e.vm_done = 0
    loads(0)
    loads(1)
    for i in range(2, DEPTH - 1): loads(i)
    e.stamp()
    def mm(acc, r, first, tagf):
        for nb in range(5):
            e.need(vm=[tagf(nb)])
            for j in range(4 if nb < 4 else 2):
                t = nb * 4 + j
                e.i(f'v_mfma_f32_16x16x32_bf16 {vr(acc(t))}, {vr(r + 16 + 4 * nb)}, {vr(r + 4 * j)}, {0 if first else vr(acc(t))}')
    for i in range(36):
        if i + DEPTH - 1 < 36: loads(i + DEPTH - 1)
        mm(F, BUFS[i % DEPTH], i == 0, lambda nb, i=i: ('g', i, nb))
    e.stamp()
    WO = lambda i, nb: 148 + (i * 5 + nb) * 4
    for i in range(5):
        if i == 4:
            e.i(f's_cmp_gt_u32 s{sWAVE}, 1')
            e.i('s_cbranch_scc1 KB_WO4')
        for j in range(4):
            e.i(f'buffer_load_dwordx4 {vr(WO(i, j))}, v{vL16}, {sr(sWS)}, s{sWM} offen offset:{j * 1024} sc1')
        e.i(f'buffer_load_dwordx4 {vr(WO(i, 4))}, v{vL16}, {sr(sWS)}, s{sWSH} offen sc1')
        e.i(f's_add_u32 s{sWM}, s{sWM}, {4 * 36 * 1024}')
        e.i(f's_add_u32 s{sWSH}, s{sWSH}, {4 * 36 * 1024}')
    e.label('KB_WO4')
    e.raw(f'''
s_mul_i32 s{sT2}, s{sWAVE}, 18432
v_add_u32 v{vT}, s{sT2}, v{vL16}
s_mul_i32 s{sHO}, s{sTG}, {18 * 4096}
s_lshl_b32 s{sT2}, s{sWAVE}, 12
s_add_u32 s{sHO}, s{sHO}, s{sT2}
s_add_u32 s{sHO}, s{sHO}, {O_OFF}
s_lshl_b32 s{sT2}, s{sTG}, 8
s_add_u32 s{sT2}, s{sT2}, {OF_OFF}
s_barrier
''')
    e.stamp()
    for t in range(18):
        e.i(f'ds_write_b128 v{vT}, {vr(F(t))} offset:{t * 1024}')
    e.raw(f'''
s_waitcnt lgkmcnt(0)
s_barrier
''')
    e.stamp()
    e.raw(f'''
v_mov_b32 v{F(0)}, 1
s_lshl_b32 s{sT3}, s{sCG}, 2
v_mov_b32 v{F(0)+1}, s{sT3}
v_lshrrev_b32 v{F(0)+2}, 2, v{vL16}
s_cmp_lg_u32 s{sWAVE}, 0
s_cbranch_scc1 KB_POLL
s_mov_b64 exec, 1
buffer_store_dword v{F(0)}, v{F(0)+1}, {sr(sWS)}, s{sT2} offen sc1
KB_POLL:
s_mov_b32 s{sIT}, 0x40000
s_mov_b64 exec, 0xff
KB_POLL2:
buffer_load_dword v{F(0)+3}, v{F(0)+2}, {sr(sWS)}, s{sT2} offen sc1
s_waitcnt vmcnt(0)
v_cmp_ne_u32 vcc, 1, v{F(0)+3}
s_cmp_eq_u64 vcc, 0
s_cbranch_scc1 KB_GO
s_sleep 2
s_sub_u32 s{sIT}, s{sIT}, 1
s_cmp_lg_u32 s{sIT}, 0
s_cbranch_scc1 KB_POLL2
KB_GO:
s_mov_b64 exec, -1
''')
    e.stamp()
    OB = lambda i, j: 4 + (i * 4 + j) * 4 if i < 4 else 68 + 4 * j if j < 2 else 248 + 4 * (j - 2)
    e.vm = []; e.vm_done = 0
    e.i(f's_cmp_gt_u32 s{sWAVE}, 1')
    e.i('s_cbranch_scc1 KB_O4')
    e.i(f's_add_u32 s{sT2}, s{sHO}, {4 * 4 * 4096}')
    for j in range(4):
        e.i(f'buffer_load_dwordx4 {vr(OB(4, j))}, v{vA if j < 2 else vB}, {sr(sWS)}, s{sT2} offen offset:{(j & 1) * 1024} sc1')
    e.label('KB_O4')
    for i in range(4):
        for j in range(4):
            e.vmop(f'buffer_load_dwordx4 {vr(OB(i, j))}, v{vA if j < 2 else vB}, {sr(sWS)}, s{sHO} offen offset:{(j & 1) * 1024} sc1', ('o', i))
        e.i(f's_add_u32 s{sHO}, s{sHO}, {4 * 4096}')
    def omm(i, first):
        for nb in range(5):
            for j in range(4 if nb < 4 else 2):
                t = nb * 4 + j
                e.i(f'v_mfma_f32_16x16x32_bf16 {vr(S(t))}, {vr(WO(i, nb))}, {vr(OB(i, j))}, {0 if first else vr(S(t))}')
    for i in range(4):
        e.need(vm=[('o', i)])
        omm(i, i == 0)
        if i == 0:
            e.i(f's_cmp_gt_u32 s{sWAVE}, 1')
            e.i('s_cbranch_scc1 KB_M4')
            omm(4, False)
            e.label('KB_M4')
    e.i(f'v_add_u32 v{vT}, {SP_OFF}, v{vT}')
    e.i('s_nop 6')
    for t in range(18):
        e.i(f'ds_write_b128 v{vT}, {vr(S(t))} offset:{t * 1024}')
    e.raw('''
s_waitcnt lgkmcnt(0)
s_barrier
''')
    e.stamp(); e.stamp(True)
    e.stamp_flush(sWS, sWAVE, STAMP_A)
    e.i('s_endpgm')

    e.nstamp = ns0
    e.vm = []; e.vm_done = 0; e.lg = []; e.lg_done = 0
    vK1, vK2, vV = 1, 2, 3
    Q1 = [16, 24]; Q2 = [20, 28]
    SB = [32, 48]; P = 64; O = [72, 88]
    KF = [104, 112]; VF = [120, 128]
    t0, t1, t2, t3, t4, t5 = 4, 5, 6, 7, 8, 9
    vMX = [10, 11]
    gemm_lines = e.lines; e.lines = head_lines
    e.raw(f'''
s_setprio {PRIO_A}
v_lshrrev_b32 v0, 4, v0
v_and_b32 v{t0}, 31, v0
v_cmp_gt_u32 vcc, 32, v0
v_mov_b32 v{t4}, 0x3f803f80
v_mov_b32 v{t5}, 0x00003f80
v_cndmask_b32 v{KF[0]+5}, 0, v{t4}, vcc
v_cndmask_b32 v{KF[0]+6}, 0, v{t5}, vcc
v_mov_b32 v{KF[0]+7}, 0
v_mov_b32 v{KF[1]+5}, v{KF[0]+5}
v_mov_b32 v{KF[1]+6}, v{KF[0]+6}
v_mov_b32 v{KF[1]+7}, 0
v_mov_b32 v{Q2[0]+3}, 0
v_mov_b32 v{Q2[1]+3}, 0
v_or_b32 v{t5}, 4, v{t0}
v_cmp_eq_u32 vcc, 22, v{t5}
s_mov_b32 s{sVM}, 0x3ffff
s_mov_b32 s{sVM+1}, 0x3ffff
''')
    for r in range(16):
        e.i(f'v_cndmask_b32 v{VF[0] + r}, 0, v{t4}, vcc')
    e.raw(f'''
s_mov_b32 s{sRDY}, 2
s_mov_b32 s{sMB}, {KVL0}
s_mov_b32 s{sNT}, 1
s_mov_b32 s{sOFFS}, {f32(100.0)}
s_mov_b32 s{sFINAL}, 0
s_mov_b32 s{sIT}, 0
''')
    def check_ready(lbl):
        e.raw(f'''
s_cmp_gt_u32 s{sRDY}, s{sIT}
s_cbranch_scc1 {lbl}_OK
v_mov_b32 v{t4}, {FLG}
s_mov_b32 s{sT3}, 0x100000
{lbl}_SPIN:
ds_read_b128 v[12:15], v{t4}
s_waitcnt lgkmcnt(0)
v_min_u32 v12, v12, v13
v_min3_u32 v12, v12, v14, v15
s_nop 0
v_readfirstlane_b32 s{sRDY}, v12
s_cmp_gt_u32 s{sRDY}, s{sIT}
s_cbranch_scc1 {lbl}_OK
s_sleep 1
s_sub_u32 s{sT3}, s{sT3}, 1
s_cmp_lg_u32 s{sT3}, 0
s_cbranch_scc1 {lbl}_SPIN
{lbl}_OK:
''')
    def addr_reset():
        e.raw(f'''
v_lshl_add_u32 v{vK1}, v0, 4, s{sMB}
v_and_b32 v{t0}, 31, v0
v_lshl_add_u32 v{vK2}, v{t0}, 2, s{sMB}
v_lshrrev_b32 v{t1}, 5, v0
v_mul_u32_u24 v{vV}, 288, v{t1}
v_lshl_add_u32 v{vV}, v{t0}, 4, v{vV}
v_add_u32 v{vV}, s{sMB}, v{vV}
s_mov_b32 s{sMB}, {KVL0}
''')
    e.label('KB_MAX')
    addr_reset()
    for q in range(2):
        e.i(f'v_mov_b32 v{Q2[q] + 1}, 0')
        e.i(f'v_mov_b32 v{Q2[q] + 2}, 0')
        e.i(f'v_mov_b32 v{vMX[q]}, 0xff800000')
    e.label('KB_MAXL')
    e.raw(f'''
ds_read_b128 {vr(KF[0])}, v{vK1}
ds_read_b32 v{KF[0]+4}, v{vK2} offset:{K2_IN}
v_add_u32 v{vK1}, {REC}, v{vK1}
v_add_u32 v{vK2}, {REC}, v{vK2}
s_waitcnt lgkmcnt(0)
''')
    for q in range(2):
        e.i(f'v_mfma_f32_32x32x16_bf16 {vr(SB[q], 16)}, {vr(KF[0])}, {vr(Q1[q])}, 0')
        e.i(f'v_mfma_f32_32x32x16_bf16 {vr(SB[q], 16)}, {vr(KF[0] + 4)}, {vr(Q2[q])}, {vr(SB[q], 16)}')
    e.i('s_nop 11')
    for q in range(2):
        for r in range(0, 16, 2):
            e.i(f'v_max3_f32 v{vMX[q]}, v{SB[q] + r}, v{SB[q] + r + 1}, v{vMX[q]}')
    e.raw(f'''
s_sub_u32 s{sNT}, s{sNT}, 1
s_cmp_lg_u32 s{sNT}, 0
s_cbranch_scc1 KB_MAXL
s_mov_b32 s{sNT}, {8 * REC}
''')
    addr_reset()
    e.raw(f'''
ds_read_b128 {vr(KF[0])}, v{vK1}
ds_read_b32 v{KF[0]+4}, v{vK2} offset:{K2_IN}
s_mov_b64 exec, {sr(sVM, 2)}
ds_read_b128 {vr(VF[0])}, v{vV} offset:{V_IN}
ds_read_b128 {vr(VF[0]+4)}, v{vV} offset:{V_IN + 576}
s_mov_b64 exec, -1
''')
    for q in range(2): e.i(f'v_mov_b32 v{t0 + q}, v{vMX[q]}')
    e.i('s_nop 1')
    for q in range(2): e.i(f'v_permlane32_swap_b32 v{t0 + q}, v{vMX[q]}')
    e.i('s_nop 1')
    for q in range(2): e.i(f'v_max_f32 v{vMX[q]}, v{t0 + q}, v{vMX[q]}')
    for q in range(2): e.i(f'v_sub_f32 v{vMX[q]}, -v{vMX[q]}, s{sOFFS}')
    for q in range(2): e.i(f'v_cvt_pk_bf16_f32 v{t0 + q}, v{vMX[q]}, 0')
    for q in range(2): e.i(f'v_lshlrev_b32 v{t0 + q}, 16, v{t0 + q}')
    for q in range(2): e.i(f'v_sub_f32 v{t0 + q}, v{vMX[q]}, v{t0 + q}')
    for q in range(2): e.i(f'v_cvt_pk_bf16_f32 v{Q2[q] + 1}, v{vMX[q]}, v{t0 + q}')
    for q in range(2): e.i(f'v_and_b32 v{t2 + q}, 0xffff0000, v{Q2[q] + 1}')
    for q in range(2): e.i(f'v_sub_f32 v{t0 + q}, v{t0 + q}, v{t2 + q}')
    for q in range(2): e.i(f'v_cvt_pk_bf16_f32 v{Q2[q] + 2}, v{t0 + q}, 0')
    for r in range(32): e.i(f'v_mov_b32 v{O[0] + r}, 0')
    for r in range(4): e.i(f'v_mov_b32 v{P + 4 + r}, 0')
    e.i(f's_mov_b32 s{sIT}, 0')
    e.i('s_waitcnt lgkmcnt(0)')
    e.i(f'v_mfma_f32_32x32x16_bf16 {vr(SB[0], 16)}, {vr(KF[0])}, {vr(Q1[0])}, 0')
    e.i(f'v_mfma_f32_32x32x16_bf16 {vr(SB[0], 16)}, {vr(KF[0] + 4)}, {vr(Q2[0])}, {vr(SB[0], 16)}')
    e.i('s_nop 7')
    e.stamp()
    e.raw('.p2align 6')
    e.label('KB_LOOP')
    check_ready('KB_R1')
    e.i(f's_cmp_eq_u32 s{sIT}, 3')
    e.i(f's_cselect_b32 s{sINC}, {(-(KVL0 + 24 * REC)) & 0xffffffff:#x}, s{sNT}')
    def step(tt, q):
        kb = tt & 1
        s = SB[q]; sn = SB[q ^ 1]
        kn = KF[kb] if q == 0 else KF[kb ^ 1]
        ex = lambda r: e.i(f'v_exp_f32 v{s + r}, v{s + r}')
        cv = lambda c: e.i(f'v_cvt_pk_bf16_f32 v{P + c}, v{s + 2 * c}, v{s + 2 * c + 1}')
        off = (tt + 1) * REC
        if tt == 7:
            off = 0
            if q == 0:
                e.i(f'v_add_u32 v{vK1}, s{sINC}, v{vK1}')
                e.i(f'v_add_u32 v{vK2}, s{sINC}, v{vK2}')
            else:
                e.i(f'v_add_u32 v{vV}, s{sINC}, v{vV}')
        if q == 1: e.i('s_waitcnt lgkmcnt(0)')
        e.i(f'v_mfma_f32_32x32x16_bf16 {vr(sn, 16)}, {vr(kn)}, {vr(Q1[q ^ 1])}, 0')
        if q == 0:
            e.i(f'ds_read_b128 {vr(KF[kb ^ 1])}, v{vK1} offset:{off}')
            e.i(f'ds_read_b32 v{KF[kb ^ 1] + 4}, v{vK2} offset:{off + K2_IN}')
        else:
            e.i(f's_mov_b64 exec, {sr(sVM, 2)}')
            e.i(f'ds_read_b128 {vr(VF[kb ^ 1])}, v{vV} offset:{off + V_IN}')
            e.i(f'ds_read_b128 {vr(VF[kb ^ 1] + 4)}, v{vV} offset:{off + V_IN + 576}')
            e.i('s_mov_b64 exec, -1')
        ex(0); ex(1); ex(2); cv(0); ex(3)
        vp = VF[kb ^ 1] if q == 0 else VF[kb]
        e.i(f'v_mfma_f32_32x32x16_bf16 {vr(O[q ^ 1], 16)}, {vr(vp + 4)}, {vr(P + 4)}, {vr(O[q ^ 1], 16)}')
        ex(4); cv(1); ex(5); ex(6); cv(2); ex(7)
        e.i(f'v_mfma_f32_32x32x16_bf16 {vr(sn, 16)}, {vr(kn + 4)}, {vr(Q2[q ^ 1])}, {vr(sn, 16)}')
        ex(8); cv(3); ex(9); ex(10); cv(4); ex(11)
        if q == 0: e.i('s_waitcnt lgkmcnt(2)')
        e.i(f'v_mfma_f32_32x32x16_bf16 {vr(O[q], 16)}, {vr(VF[kb])}, {vr(P)}, {vr(O[q], 16)}')
        ex(12); cv(5); ex(13); ex(14); ex(15); cv(6); cv(7)
    for tt in range(8):
        step(tt, 0); step(tt, 1)
        if tt == HFT:
            e.i(f's_cmp_lg_u32 s{sIT}, 0')
            e.i('s_cbranch_scc1 KB_NOHF')
            e.i('s_waitcnt vmcnt(0)')
            hflag(t0)
            e.label('KB_NOHF')
    e.raw(f'''
s_add_u32 s{sIT}, s{sIT}, 1
s_cmp_lt_u32 s{sIT}, 8
s_cbranch_scc1 KB_LOOP
v_mfma_f32_32x32x16_bf16 {vr(O[1], 16)}, {vr(VF[1] + 4)}, {vr(P + 4)}, {vr(O[1], 16)}
s_waitcnt lgkmcnt(0)
s_nop 11
''')
    e.stamp()
    e.i(f'v_mov_b32 v{t0}, 0')
    for q in range(2):
        for r in range(10): e.i(f'v_fma_f32 v{t0}, v{O[q] + r}, 0, v{t0}')
    e.raw(f'''
v_max_f32 v{t1}, v{O[0]+10}, v{O[1]+10}
v_min_f32 v{t2}, v{O[0]+10}, v{O[1]+10}
v_fma_f32 v{t0}, v{O[0]+10}, 0, v{t0}
v_fma_f32 v{t0}, v{O[1]+10}, 0, v{t0}
v_cmp_neq_f32 {sr(sT0, 2)}, 0, v{t0}
v_cmp_lt_f32 vcc, {f32(2.0 ** 110)}, v{t1}
s_or_b64 {sr(sT0, 2)}, {sr(sT0, 2)}, vcc
v_cmp_gt_f32 vcc, {f32(2.0 ** -104)}, v{t2}
s_or_b64 {sr(sT0, 2)}, {sr(sT0, 2)}, vcc
s_cbranch_scc0 KB_SAFE
s_cmp_lg_u32 s{sFINAL}, 0
s_cbranch_scc1 KB_SAFE
s_mov_b32 s{sFINAL}, 1
s_mov_b32 s{sNT}, 64
s_mov_b32 s{sOFFS}, 0
s_mov_b32 s{sMB}, 0
''')
    e.raw(f'''
s_branch KB_MAX
KB_SAFE:
s_barrier
''')
    for q in range(2): e.i(f'v_rcp_f32 v{t0 + q}, v{O[q] + 10}')
    e.raw(f'''
s_mul_i32 s{sT0}, s{sCG}, 9
s_lshl_b32 s{sT1}, s{sW4}, 1
s_add_u32 s{sT1}, s{sT1}, s{sT0}
v_lshrrev_b32 v{t2}, 5, v0
v_add_u32 v{t3}, s{sT1}, v{t2}
v_lshrrev_b32 v{t4}, 2, v{t3}
v_lshlrev_b32 v{t4}, 12, v{t4}
v_and_b32 v{t3}, 3, v{t3}
v_lshl_add_u32 v{t4}, v{t3}, 8, v{t4}
v_bfe_u32 v{t3}, v0, 4, 1
v_lshlrev_b32 v{t3}, 10, v{t3}
v_and_b32 v{t5}, 15, v0
v_lshl_add_u32 v{t3}, v{t5}, 4, v{t3}
v_add_u32 v{t4}, v{t4}, v{t3}
v_lshl_add_u32 v{t3}, v{t2}, 28, v{t3}
s_mul_i32 s{sT2}, s{sTG}, {18 * 4096}
s_add_u32 s{sT2}, s{sT2}, {O_OFF}
s_add_u32 s{sT0}, s{sT0}, 8
s_lshr_b32 s{sT1}, s{sT0}, 2
s_lshl_b32 s{sT1}, s{sT1}, 12
s_and_b32 s{sT0}, s{sT0}, 3
s_lshl_b32 s{sT0}, s{sT0}, 8
s_add_u32 s{sT1}, s{sT1}, s{sT0}
s_lshl_b32 s{sT0}, s{sW4}, 2
s_add_u32 s{sT1}, s{sT1}, s{sT0}
s_add_u32 s{sT1}, s{sT1}, s{sT2}
''')
    for q in range(2):
        for r in range(10): e.i(f'v_mul_f32 v{O[q] + r}, v{t0 + q}, v{O[q] + r}')
        for c in range(5): e.i(f'v_cvt_pk_bf16_f32 v{SB[q] + c}, v{O[q] + 2 * c}, v{O[q] + 2 * c + 1}')
        e.i(f'buffer_store_dwordx4 {vr(SB[q])}, v{t4}, {sr(sWS)}, s{sT2} offen offset:{q * 2048} sc1')
        e.i(f'buffer_store_dword v{SB[q] + 4}, v{t3}, {sr(sWS)}, s{sT1} offen offset:{q * 2048} sc1')
    XR = 104
    e.raw(f'''
s_mov_b32 s{sOUT}, s64
s_mov_b32 s{sOUT+1}, s65
s_mov_b32 s{sOUT+2}, {2048 * 1152}
s_mov_b32 s{sOUT+3}, 0x00020000
; token block = (w + 2odd) % 4
s_lshl_b32 s{sT0}, s{sODD}, 1
s_add_u32 s{sT0}, s{sT0}, s{sW4}
s_and_b32 s{sT0}, s{sT0}, 3
s_lshl_b32 s{sT1}, s{sTG}, 2
s_add_u32 s{sT0}, s{sT0}, s{sT1}
s_mul_i32 s{sT0}, s{sT0}, {16 * 1152}
s_lshr_b32 s{sT1}, s{sCG}, 1
s_mul_i32 s{sT1}, s{sT1}, 288
s_add_u32 s{sT0}, s{sT0}, s{sT1}
s_add_u32 s{sT1}, s{sT0}, 128
s_cmp_gt_u32 s{sW4}, 1
s_cselect_b32 s{sT1}, 0x7f000000, s{sT1}
s_mul_i32 s{sT2}, s{sODD}, 160
s_add_u32 s{sT0}, s{sT0}, s{sT2}
v_mul_u32_u24 v{t2}, 1152, v{t5}
v_lshrrev_b32 v{t3}, 4, v0
v_lshl_add_u32 v{t2}, v{t3}, 3, v{t2}
s_waitcnt vmcnt(0)
''')
    for nb in range(4):
        e.i(f'buffer_load_dwordx2 {vr(XR + 2 * nb, 2)}, v{t2}, {sr(sX)}, s{sT0} offen offset:{nb * 32}')
    e.i(f'buffer_load_dwordx2 {vr(XR + 8, 2)}, v{t2}, {sr(sX)}, s{sT1} offen')
    e.raw(f'''
s_lshl_b32 s{sT2}, s{sW4}, 10
v_lshlrev_b32 v{t3}, 4, v0
v_add_u32 v{t3}, s{sT2}, v{t3}
v_add_u32 v{t4}, 36864, v{t3}
s_barrier
''')
    e.stamp()
    R = lambda nb, w: 116 + (nb * 4 + w) * 4
    G = lambda nb: R(nb, 0)
    R2 = lambda nb, w: 16 + (nb * 4 + w) * 4
    def red(RR):
        for nb in range(5):
            for w in range(4):
                e.lgop(f'ds_read_b128 {vr(RR(nb, w))}, v{t3 if w < 2 else t4} offset:{(w & 1) * 18432 + nb * 4096}', ('r', nb))
        for nb in range(5):
            e.need(lg=[('r', nb)])
            for r in range(4): e.i(f'v_add_f32 v{RR(nb, 0) + r}, v{RR(nb, 0) + r}, v{RR(nb, 1) + r}')
            for r in range(4): e.i(f'v_add_f32 v{RR(nb, 2) + r}, v{RR(nb, 2) + r}, v{RR(nb, 3) + r}')
            for r in range(4): e.i(f'v_add_f32 v{RR(nb, 0) + r}, v{RR(nb, 0) + r}, v{RR(nb, 2) + r}')
    red(R)
    for nb in range(5):
        for r in range(4): e.i(f'v_mul_f32 v{R(nb, 1) + r}, {f32(-LOG2E)}, v{G(nb) + r}')
        for r in range(4): e.i(f'v_exp_f32 v{R(nb, 1) + r}, v{R(nb, 1) + r}')
        for r in range(4): e.i(f'v_add_f32 v{R(nb, 1) + r}, 1.0, v{R(nb, 1) + r}')
        for r in range(4): e.i(f'v_rcp_f32 v{R(nb, 1) + r}, v{R(nb, 1) + r}')
        for r in range(4): e.i(f'v_mul_f32 v{G(nb) + r}, v{G(nb) + r}, v{R(nb, 1) + r}')
    e.i('s_waitcnt vmcnt(0)')
    for nb in range(5):
        e.i(f'v_lshlrev_b32 v{R(nb, 1)}, 16, v{XR + 2 * nb}')
        e.i(f'v_and_b32 v{R(nb, 1) + 1}, 0xffff0000, v{XR + 2 * nb}')
        e.i(f'v_lshlrev_b32 v{R(nb, 1) + 2}, 16, v{XR + 2 * nb + 1}')
        e.i(f'v_and_b32 v{R(nb, 1) + 3}, 0xffff0000, v{XR + 2 * nb + 1}')
    e.i(f'v_add_u32 v{t3}, {SP_OFF}, v{t3}')
    e.i(f'v_add_u32 v{t4}, {SP_OFF}, v{t4}')
    e.stamp()
    e.i('s_barrier')
    e.stamp()
    e.lg = []; e.lg_done = 0
    red(R2)
    for nb in range(5):
        for r in range(4): e.i(f'v_fma_f32 v{R(nb, 1) + r}, v{R2(nb, 0) + r}, v{G(nb) + r}, v{R(nb, 1) + r}')
        e.i(f'v_cvt_pk_bf16_f32 v{R(nb, 2)}, v{R(nb, 1)}, v{R(nb, 1) + 1}')
        e.i(f'v_cvt_pk_bf16_f32 v{R(nb, 2) + 1}, v{R(nb, 1) + 2}, v{R(nb, 1) + 3}')
        if nb < 4:
            e.i(f'buffer_store_dwordx2 {vr(R(nb, 2), 2)}, v{t2}, {sr(sOUT)}, s{sT0} offen offset:{nb * 32}')
        else:
            e.i(f'buffer_store_dwordx2 {vr(R(nb, 2), 2)}, v{t2}, {sr(sOUT)}, s{sT1} offen')
    if STAMPS: e.drain(vm=True)
    e.stamp(); e.stamp(True)
    e.stamp_flush(sWS, sWAVE, STAMP_A)
    e.label('KB_END')
    e.i('s_endpgm')
    e.lines += gemm_lines
```

```python
import sys
from emit import *
from common import *
import fa, fb
NAME = 'recurrent_scan__grouped_kv_mqa__glu_gated_swiglu__prompt_kernel'
HDR = open('recurrent_scan__grouped_kv_mqa__glu_gated_swiglu__prompt.s.ref').read().split('; Override launch')[0]
e = Emit(); e.stamps_on = STAMPS
e.skip_dma = 'nodma' in fa.EXP; e.skip_wait = 'nowait' in fa.EXP or e.skip_dma
fa.gen_ka(e, NAME)
fb.gen_kb(e)
s = HDR + f'; @launch grid=(256,1,1) block=(512,1,1) lds={fa.KA_LDS}\n'
s += '.amdgcn_target "amdgcn-amd-amdhsa--gfx950"\n.text\n' + e.text()
s += f'''.section .rodata,"a"
.p2align 6
.amdhsa_kernel {NAME}
  .amdhsa_next_free_vgpr 256
  .amdhsa_next_free_sgpr {102 if STAMPS else 68}
  .amdhsa_accum_offset 256
  .amdhsa_group_segment_fixed_size 0
  .amdhsa_kernarg_size 96
  .amdhsa_user_sgpr_count 2
  .amdhsa_user_sgpr_kernarg_segment_ptr 1
  .amdhsa_system_sgpr_workgroup_id_x 1
.end_amdhsa_kernel
'''
open(sys.argv[1], 'w').write(s)
```

```python
from emit import *
from common import *
import os
EXP = os.environ.get('EXP', '').split(',')
ENV = lambda k, d: int(os.environ.get(k, d))

SLOT = 24576
XS = 3 * SLOT
XS2 = 5 * SLOT
CST = XS2 + 32768
SCR = CST + 2560
FLG = SCR + 256
KA_LDS = FLG + 64
BUF = [3, 4, 0, 1, 2, 3, 0, 1, 2]

vL16, vTA0, vTA1, vCS, vDMA, vT0 = 0, 1, 2, 3, 4, 5
vCF = 8
vXG0, vXG1, vXR0, vXR1 = 12, 13, 14, 15
vNM = [12, 13]; vC = [14, 15]; vIR2 = [6, 7]
def X(tb, ks): return 16 + (ks * 2 + tb) * 4
def ACC(buf, b, tb): return 160 + buf * 32 + (b * 2 + tb) * 4
NAF = 4
def AF(n): return 224 + (n % NAF) * 4
vONE = 240; vCA = 244
vCV = 248
MAPPING = ENV('MAPPING', 0)
DSP = ENV('DSP', 16)
RLPOS = ENV('RLPOS', 0)
NTR = ' nt'
NTW = '' if 'nontw' in EXP else ' nt'
NTX = ' nt' if 'ntx' in EXP else ''
sX, sW, sQ, sWS, sRL = 24, 28, 32, 36, 40
sWAVE, sTM, sFN, sQI = 44, 45, 46, 47
sXO = [48, 49, 50, 51]
sWM0, sWSO, sT0, sT1, sXM0, sHO, sSCALE, sT2 = 52, 53, 54, 55, 56, 57, 58, 59
sT3, sT4 = 60, 61
sRLD = 62
sHF = 63
sHA, sHB = 8, 9
sF0 = 10
vOA, vOC = 36, 37
vRF = 48
sOA, sOC = 50, 51
SWB = ENV('SWB', 0)
sTG, sCG = 4, 5
sMSK = 14
KBI = {0: 0, 1: 1, 3: 2, 4: 3}

def gen_ka(e, name):
    I = lambda s: (lambda: e.i(s))
    NOP = lambda: None
    M2 = ENV('MAP2', 0)
    MAP2 = f'''s_lshr_b32 s{sTG}, s{sT1}, {3 - M2}
s_lshr_b32 s{sT2}, s{sT0}, {M2}
s_lshl_b32 s{sT2}, s{sT2}, {2 + M2}
s_add_u32 s{sTG}, s{sTG}, s{sT2}
s_and_b32 s{sCG}, s{sT1}, {(8 >> M2) - 1}
s_and_b32 s{sT0}, s{sT0}, {(1 << M2) - 1}
s_lshl_b32 s{sT0}, s{sT0}, {3 - M2}
s_add_u32 s{sCG}, s{sCG}, s{sT0}'''
    LT = 3 - MAPPING
    e.raw(f'''
.p2align 8
.globl {name}
.type {name},@function
{name}:
{'s_memrealtime s[70:71]' if STAMPS else ''}
s_cmp_ge_u32 s2, 256
s_cbranch_scc1 KB_END
s_load_dwordx8 s[4:11], s[0:1], 0
s_load_dwordx2 s[12:13], s[0:1], 32
s_load_dwordx4 s[16:19], s[0:1], 48
s_load_dwordx2 s[20:21], s[0:1], 64
s_load_dwordx2 s[22:23], s[0:1], 88
s_load_dwordx4 s[64:67], s[0:1], 72
v_lshrrev_b32 v1, 6, v0
v_and_b32 v0, 63, v0
v_readfirstlane_b32 s{sWAVE}, v1
s_and_b32 s{sT0}, s2, 7
s_lshr_b32 s{sT1}, s2, 3
s_lshr_b32 s{sTM}, s{sT1}, {5 - LT}
s_and_b32 s{sT2}, s{sT0}, {(1 << MAPPING) - 1}
s_lshl_b32 s{sT2}, s{sT2}, {LT}
s_add_u32 s{sTM}, s{sTM}, s{sT2}
s_and_b32 s{sT1}, s{sT1}, {(1 << (5 - LT)) - 1}
s_lshr_b32 s{sT0}, s{sT0}, {MAPPING}
s_lshl_b32 s{sFN}, s{sT0}, {5 - LT}
s_add_u32 s{sFN}, s{sFN}, s{sT1}
; x DMA source: row=l/8, pos=l%8 : row*1152 + ((pos ^ (row>>1))*16)
v_lshrrev_b32 v6, 4, v0
v_and_b32 v10, 7, v0
v_xor_b32 v6, v6, v10
v_lshrrev_b32 v10, 3, v0
v_mul_u32_u24 v{vXG0}, 1152, v10
v_lshl_add_u32 v{vXG0}, v6, 4, v{vXG0}
v_xor_b32 v{vXG1}, 64, v{vXG0}
s_mul_i32 s{sXM0}, s{sWAVE}, 10240
s_add_u32 s{sXM0}, s{sXM0}, {XS}
s_lshl_b32 s{sT0}, s{sTM}, 3
s_add_u32 s{sT0}, s{sT0}, s{sWAVE}
s_mul_i32 s{sXO[0]}, s{sT0}, {32*1152}
s_add_u32 s{sXO[1]}, s{sXO[0]}, {8*1152}
s_add_u32 s{sXO[2]}, s{sXO[0]}, {16*1152}
s_add_u32 s{sXO[3]}, s{sXO[0]}, {24*1152}
; pass-1 W DMA source: h=l/32, row=(l%32)/4, sigma=(l%4)^(2*(w&1)) : row*9216 + h*64 + sigma*16
s_lshl_b32 s{sT1}, s{sWAVE}, 1
s_and_b32 s{sT1}, s{sT1}, 2
v_bfe_u32 v8, v0, 2, 3
v_mul_u32_u24 v{vDMA}, 9216, v8
v_and_b32 v6, 3, v0
v_xor_b32 v6, s{sT1}, v6
v_lshl_add_u32 v{vDMA}, v6, 4, v{vDMA}
v_lshrrev_b32 v6, 5, v0
v_lshl_add_u32 v{vDMA}, v6, 6, v{vDMA}
s_and_b32 s{sT0}, s{sWAVE}, 3
s_lshr_b32 s{sT1}, s{sWAVE}, 2
s_lshl_b32 s{sWM0}, s{sT1}, 13
s_lshl_b32 s{sT1}, s{sT0}, 10
s_add_u32 s{sWM0}, s{sWM0}, s{sT1}
s_mul_i32 s{sWSO}, s{sT0}, {8*9216}
s_lshl_b32 s{sT1}, s{sFN}, 8
s_add_u32 s{sWSO}, s{sWSO}, s{sT1}
s_bfe_u32 s{sT1}, s{sFN}, {0x10000 + SWB}
s_lshl_b32 s{sT1}, s{sT1}, 7
s_add_u32 s{sWSO}, s{sWSO}, s{sT1}
s_cmp_lt_u32 s{sWAVE}, 4
s_waitcnt lgkmcnt(0)
s_mov_b32 s{sX}, s4
s_mov_b32 s{sX+1}, s5
s_mov_b32 s{sX+2}, {2048*1152}
s_mov_b32 s{sX+3}, 0x00020000
s_cselect_b32 s{sW}, s16, s18
s_cselect_b32 s{sW+1}, s17, s19
s_mov_b32 s{sW+2}, {576*9216}
s_mov_b32 s{sW+3}, 0x00020000
s_mov_b32 s{sWS}, s22
s_mov_b32 s{sWS+1}, s23
s_mov_b32 s{sWS+2}, {WS_BYTES}
s_mov_b32 s{sWS+3}, 0x00020000
s_cmp_lg_u32 s2, 0
s_cbranch_scc1 KA_NOZ
s_mul_i32 s{sT0}, s{sWAVE}, 3072
s_add_u32 s{sT0}, s{sT0}, {FLAG_OFF}
v_lshlrev_b32 v6, 4, v0
v_mov_b32 v8, 0
v_mov_b32 v9, 0
v_mov_b32 v10, 0
v_mov_b32 v11, 0
buffer_store_dwordx4 v[8:11], v6, {sr(sWS)}, s{sT0} offen sc1
buffer_store_dwordx4 v[8:11], v6, {sr(sWS)}, s{sT0} offen offset:1024 sc1
buffer_store_dwordx4 v[8:11], v6, {sr(sWS)}, s{sT0} offen offset:2048 sc1
KA_NOZ:
''')
    if STAMPS: e.nstamp = 1
    e.stamp(True)
    def xdma(pi):
        cgp, tb = divmod(pi, 2)
        items = []
        for h in range(2):
            def f(h=h):
                if pi >= 5 and h == 0:
                    pc, pt = divmod(pi - 5, 2)
                    e.need(lg=[('xf', pt, 2 * pc + 1)])
                e.i(f's_add_u32 m0, s{sXM0}, {(pi % 5) * 2048 + h * 1024 - cgp * 128}')
                e.i('s_nop 0')
                e.vmop(f'buffer_load_dwordx4 v{vXG1 if h else vXG0}, {sr(sX)}, s{sXO[2 * tb + h]} offen offset:{cgp * 128}{NTX} lds', ('x', pi))
            items.append(f)
        return items
    def wdma1(j):
        items = []
        for i in range(2):
            def f(i=i):
                e.i(f's_add_u32 m0, s{sWM0}, {(j % 4) * 16384 + i * 4096}')
                e.i(f's_add_u32 s{sT2}, s{sWSO}, {(64 * j + 32 * i) * 9216}')
                e.vmop(f'buffer_load_dwordx4 v{vDMA}, {sr(sW)}, s{sT2} offen{NTW} lds', ('Wp', j))
            items.append(f)
        return items
    for it in xdma(0) + wdma1(0) + xdma(1): it()
    if 'pst' in EXP: e.stamp()
    e.i('s_barrier')
    for it in xdma(2) + wdma1(1) + xdma(3): it()
    if 'pst' in EXP: e.stamp()
    e.raw(f'''
s_and_b32 s{sT1}, s{sFN}, 3
s_lshl_b32 s{sQI}, s{sT1}, 3
s_lshr_b32 s{sT1}, s{sFN}, 2
s_xor_b32 s{sT1}, s{sT1}, 4
s_add_u32 s{sQI}, s{sQI}, s{sT1}
; H store base: ((tg*144)*4 + 2*(w%2))*1024, tg = (8tm+w)/2
s_lshl_b32 s{sT0}, s{sTM}, 3
s_add_u32 s{sT0}, s{sT0}, s{sWAVE}
s_lshr_b32 s{sT1}, s{sT0}, 1
s_mul_i32 s{sHO}, s{sT1}, {144*4096}
s_and_b32 s{sT1}, s{sWAVE}, 1
s_lshl_b32 s{sT1}, s{sT1}, 11
s_add_u32 s{sHO}, s{sHO}, s{sT1}
s_mov_b32 s{sQ}, s6
s_mov_b32 s{sQ+1}, s7
s_mov_b32 s{sQ+2}, {576*1152}
s_mov_b32 s{sQ+3}, 0x00020000
s_mov_b32 s{sSCALE}, {f32(-QSCALE / LOG2E)}
s_cmp_lt_u32 s{sQI}, 18
s_cbranch_scc1 KA_ROLE_DONE
s_mov_b32 s{sSCALE}, {f32(-1.0 / LOG2E)}
s_mov_b32 s{sQ+2}, 0
s_cmp_gt_u32 s{sQI}, 19
s_cbranch_scc1 KA_ROLE_DONE
s_cmp_eq_u32 s{sQI}, 18
s_cselect_b32 s{sQ}, s8, s10
s_cselect_b32 s{sQ+1}, s9, s11
s_mov_b32 s{sQ+2}, {576*36}
KA_ROLE_DONE:
s_lshr_b32 s{sT2}, s{sT0}, 1
s_lshl_b32 s{sHF}, s{sT2}, 8
s_lshl_b32 s{sT2}, s{sFN}, 3
s_add_u32 s{sHF}, s{sHF}, s{sT2}
s_lshr_b32 s{sT1}, s{sT1}, 9
s_add_u32 s{sHF}, s{sHF}, s{sT1}
s_add_u32 s{sHF}, s{sHF}, {HF_OFF}
s_lshl_b32 s{sT2}, s{sFN}, 14
s_add_u32 s{sHA}, s{sHO}, s{sT2}
s_bfe_u32 s{sT1}, s{sFN}, {0x10000 + SWB}
s_lshl_b32 s{sT1}, s{sT1}, 13
s_sub_u32 s{sHB}, s{sHA}, s{sT1}
s_add_u32 s{sHA}, s{sHA}, s{sT1}
s_mov_b32 s{sF0}, 0xf0
s_and_b32 s{sT0}, s2, 7
s_lshr_b32 s{sT1}, s2, 3
{MAP2}
s_mov_b32 s{sMSK}, 0x33333333
s_mov_b32 s{sMSK+1}, 0xcccccccc
s_cmp_lt_u32 s{sWAVE}, 4
s_cbranch_scc1 KA_MSK
s_not_b64 {sr(sMSK, 2)}, {sr(sMSK, 2)}
{'s_setprio 1' if 'prio' in EXP else ''}
KA_MSK:
{'s_setprio 1' if 'prioall' in EXP else ''}
; pass-1 tr-read base: g=l/16,i=l%16: g*1024 + (g&1)*32 + (i/4)*64 + (i%4)*8
v_lshrrev_b32 v6, 4, v0
v_lshlrev_b32 v{vTA0}, 10, v6
v_and_b32 v6, 1, v6
v_lshl_add_u32 v{vTA0}, v6, 5, v{vTA0}
v_bfe_u32 v6, v0, 2, 2
v_lshl_add_u32 v{vTA0}, v6, 6, v{vTA0}
v_and_b32 v6, 3, v0
v_lshl_add_u32 v{vTA0}, v6, 3, v{vTA0}
v_xor_b32 v{vTA1}, 32, v{vTA0}
s_and_b32 s{sT0}, s{sWAVE}, 1
s_lshl_b32 s{sT0}, s{sT0}, 5
v_xor_b32 v{vCS}, s{sT0}, v{vTA0}
s_bfe_u32 s{sT0}, s{sWAVE}, 0x10001
s_lshl_b32 s{sT0}, s{sT0}, 13
s_lshr_b32 s{sT1}, s{sWAVE}, 2
s_lshl_b32 s{sT1}, s{sT1}, 9
s_add_u32 s{sT0}, s{sT0}, s{sT1}
v_add_u32 v{vCS}, s{sT0}, v{vCS}
; x staging read addr: t=l%16, kg=l/16: base + t*128 + ((kg ^ (t>>1))*16)
v_bfe_u32 v6, v0, 1, 3
v_lshrrev_b32 v10, 4, v0
v_xor_b32 v6, v6, v10
v_lshlrev_b32 v6, 4, v6
v_and_b32 v10, 15, v0
v_lshl_add_u32 v6, v10, 7, v6
v_add_u32 v{vXR0}, s{sXM0}, v6
v_xor_b32 v{vXR1}, 64, v{vXR0}
v_mov_b32 v{vONE}, 0x3f803f80
v_mov_b32 v{vONE+1}, 0x3f803f80
v_mov_b32 v{vONE+2}, 0x3f803f80
v_mov_b32 v{vONE+3}, 0x3f803f80
v_lshlrev_b32 v{vL16}, 4, v0
''')

    def o_init():
        e.raw(f'''
s_mul_i32 s{sT0}, s2, 9216
s_lshl_b32 s{sT1}, s{sWAVE}, 10
s_add_u32 s{sT0}, s{sT0}, s{sT1}
s_add_u32 s{sT0}, s{sT0}, {O_OFF}
v_mov_b32 v{ACC(1, 3, 1)}, -1
v_mov_b32 v{ACC(1, 3, 1)+1}, -1
v_mov_b32 v{ACC(1, 3, 1)+2}, -1
v_mov_b32 v{ACC(1, 3, 1)+3}, -1
s_cmp_lg_u32 s{sWAVE}, 7
buffer_store_dwordx4 {vr(ACC(1, 3, 1))}, v{vL16}, {sr(sWS)}, s{sT0} offen sc1
s_cbranch_scc1 KA_NOO
buffer_store_dwordx4 {vr(ACC(1, 3, 1))}, v{vL16}, {sr(sWS)}, s{sT0} offen offset:1024 sc1
KA_NOO:
''')
        e.vmcount(1, 'oi')
    o_init()
    def touch(srd, nl, vmul, soff_code):
        e.raw(soff_code)
        e.i(f'v_mul_u32_u24 v{vT0}, {vmul}, v{vL16}')
        e.i(f's_mov_b32 m0, {SCR}')
        e.i(f's_mov_b64 exec, {(1 << nl) - 1:#x}')
        e.vmop(f'buffer_load_dword v{vT0}, {sr(srd)}, s{sT2} offen lds')
        e.i('s_mov_b64 exec, -1')
    GP = f'''
s_lshl_b32 s{sT0}, s2, 2
s_and_b32 s{sT1}, s{sWAVE}, 3
s_add_u32 s{sT0}, s{sT0}, s{sT1}
'''
    def t_x(c0=2):
        touch(sX, 9 - c0, 8, f'''
s_lshl_b32 s{sT0}, s2, 3
s_add_u32 s{sT0}, s{sT0}, s{sWAVE}
s_mul_i32 s{sT2}, s{sT0}, 1152
s_add_u32 s{sT2}, s{sT2}, {c0 * 128}
''')
    def t_w(row0, line):
        touch(sW, (576 - row0) // 32, 2 * 9216, GP + f'''
s_lshr_b32 s{sT1}, s{sT0}, 5
s_mul_i32 s{sT2}, s{sT1}, 9216
s_and_b32 s{sT1}, s{sT0}, 31
s_lshl_b32 s{sT1}, s{sT1}, 8
s_add_u32 s{sT2}, s{sT2}, s{sT1}
s_add_u32 s{sT2}, s{sT2}, {row0 * 9216 + line * 128}
''')
    def t_rem():
        touch(sW, 5, 8 * 9216, GP + f'''
s_lshr_b32 s{sT1}, s{sT0}, 3
s_mul_i32 s{sT2}, s{sT1}, 9216
s_and_b32 s{sT1}, s{sT0}, 7
s_lshl_b32 s{sT1}, s{sT1}, 7
s_add_u32 s{sT2}, s{sT2}, s{sT1}
s_add_u32 s{sT2}, s{sT2}, 8192
''')
    def t_q():
        touch(sRL, 3, 16384, f'''
s_mov_b32 s{sRL}, s6
s_mov_b32 s{sRL+1}, s7
s_mov_b32 s{sRL+2}, {576*1152}
s_mov_b32 s{sRL+3}, 0x00020000
s_lshl_b32 s{sT0}, s2, 3
s_add_u32 s{sT0}, s{sT0}, s{sWAVE}
s_lshl_b32 s{sT2}, s{sT0}, 7
''')
    if 'pf1' in EXP:
        t_x(); t_w(128, 0)
    def dma_reconf():
        e.raw(f'''
v_lshrrev_b32 v{vT0}, 6, v{vL16}
v_mul_u32_u24 v{vDMA}, 9216, v{vT0}
v_lshrrev_b32 v{vT0}, 4, v{vL16}
v_xor_b32 v{vT0}, v{vT0}, v{vL16}
v_and_b32 v{vT0}, 0x20, v{vT0}
v_add_u32 v{vDMA}, v{vDMA}, v{vT0}
v_and_b32 v{vT0}, 0x10, v{vL16}
v_add_u32 v{vDMA}, v{vDMA}, v{vT0}
s_and_b32 s{sT0}, s{sWAVE}, 3
s_lshr_b32 s{sT1}, s{sWAVE}, 2
s_mul_i32 s{sWM0}, s{sT1}, 12288
s_lshl_b32 s{sT1}, s{sT0}, 10
s_add_u32 s{sWM0}, s{sWM0}, s{sT1}
s_mul_i32 s{sWSO}, s{sT0}, {16*9216}
s_lshl_b32 s{sT1}, s{sFN}, 8
s_add_u32 s{sWSO}, s{sWSO}, s{sT1}
s_bfe_u32 s{sT1}, s{sFN}, {0x10000 + SWB}
s_lshl_b32 s{sT1}, s{sT1}, 7
s_sub_u32 s{sWSO}, s{sWSO}, s{sT1}
''')
    def dma_slot(p):
        c, ph = divmod(p, 3)
        base = BUF[p] * SLOT
        items = []
        if c >= 1:
            for i in range(3):
                def f(i=i):
                    e.i(f's_add_u32 m0, s{sWM0}, {base + i * 4096}')
                    e.i(f's_add_u32 s{sT2}, s{sWSO}, {(192 * ph + 64 * i) * 9216 + 64 * (c + 1)}')
                    e.vmop(f'buffer_load_dwordx4 v{vDMA}, {sr(sW)}, s{sT2} offen lds', ('W', p))
                items.append(f)
            return items
        for i in range(3):
            def f(i=i):
                e.raw(f'''
s_and_b32 s{sT0}, s{sWAVE}, 3
s_mul_i32 s{sT2}, s{sT0}, {16*9216}
s_lshl_b32 s{sT1}, s{sFN}, 5
s_add_u32 s{sT2}, s{sT2}, s{sT1}
s_add_u32 s{sT2}, s{sT2}, {(192 * ph + 64 * i) * 9216 + 8192}
s_lshl_b32 s{sT0}, s{sT0}, 10
s_add_u32 m0, s{sT0}, {base + i * 4096}
v_and_b32 v{vT0}, 0xffffffdf, v{vDMA}
s_mov_b64 exec, {sr(sMSK, 2)}
''')
                e.vmop(f'buffer_load_dwordx4 v{vT0}, {sr(sW)}, s{sT2} offen lds', ('W', p))
                e.i('s_mov_b64 exec, -1')
            items.append(f)
        def g():
            e.raw(f'''
s_cmp_eq_u32 s{sQ+2}, {576*36}
s_cbranch_scc1 KA_S{p}K
{'s_cmp_eq_u32 s%d, 0' % (sQ+2) if 'skipq' in EXP else ''}
{'s_cbranch_scc1 KA_S%dE' % p if 'skipq' in EXP else ''}
v_lshrrev_b32 v{vT0}, 6, v{vL16}
v_mul_u32_u24 v{vT0}, 1152, v{vT0}
v_and_or_b32 v{vT0}, v{vDMA}, 48, v{vT0}
s_mul_i32 s{sT2}, s{sWAVE}, {16*1152}
s_lshl_b32 s{sT1}, s{sQI}, 6
s_add_u32 s{sT2}, s{sT2}, s{sT1}
s_add_u32 s{sT2}, s{sT2}, {192 * ph * 1152}
s_lshl_b32 s{sT0}, s{sWAVE}, 10
s_add_u32 m0, s{sT0}, {base + 12288}
s_cmp_gt_u32 s{sWAVE}, 3
buffer_load_dwordx4 v{vT0}, {sr(sQ)}, s{sT2} offen lds
s_cbranch_scc1 KA_S{p}E
s_add_u32 m0, s{sT0}, {base + 12288 + 8192}
s_add_u32 s{sT2}, s{sT2}, {128 * 1152}
buffer_load_dwordx4 v{vT0}, {sr(sQ)}, s{sT2} offen lds
s_branch KA_S{p}E
KA_S{p}K:
s_lshl_b32 s{sT1}, s{sWAVE}, 4
s_and_b32 s{sT1}, s{sT1}, 32
v_lshrrev_b32 v{vT0}, 2, v{vL16}
v_and_b32 v{vT0}, 60, v{vT0}
v_xor_b32 v{vT0}, s{sT1}, v{vT0}
v_cmp_gt_u32 vcc, 36, v{vT0}
v_mov_b32 v7, 0x7fffff00
s_mul_i32 s{sT3}, s{sWAVE}, 144
v_cndmask_b32 v{vT0}, v7, v{vT0}, vcc
v_lshrrev_b32 v7, 8, v{vL16}
v_mad_u32_u24 v{vT0}, v7, 36, v{vT0}
s_lshl_b32 s{sT0}, s{sWAVE}, 8
''')
            for i in range(6):
                e.i(f's_add_u32 m0, s{sT0}, {base + 12288 + i * 2048}')
                e.i(f's_add_u32 s{sT2}, s{sT3}, {(6 * ph + i) * 8 * 144}')
                e.i(f'buffer_load_dword v{vT0}, {sr(sQ)}, s{sT2} offen lds')
            e.label(f'KA_S{p}E')
            if 'skipq' not in EXP: e.vmcount(1, ('W', p))
        items.insert(0, g)
        return items

    FR = []
    for j in range(9):
        for ksl in range(2):
            for h in range(2):
                for b in range(4):
                    FR.append((h, b, 2 * j + ksl, b & 1, (j % 4) * 16384 + (b >> 1) * 8192 + ksl * 4096 + h * 512))
    for p in range(6):
        for ksl in range(6):
            for b in range(4):
                FR.append((2 + p // 3, b, 6 * (p % 3) + ksl, b & 1, BUF[p] * SLOT + (b >> 1) * 12288 + ksl * 2048))
    for u in range(2):
        for p in (6, 7, 8):
            for ksl in range(6):
                for mat in range(2):
                    FR.append((4, 2 * mat + u, 6 * (p % 3) + ksl, u, BUF[p] * SLOT + mat * 12288 + ksl * 2048))
    NS = 720
    sched = [[] for _ in range(NS + 1)]
    pre = [[] for _ in range(361)]
    def place(items, a, b):
        n = len(items)
        for k, it in enumerate(items):
            sched[a + (k * (b - a)) // n].append(it)

    def xread(pi):
        cgp, tb = divmod(pi, 2)
        def r0():
            if 'wst' in EXP and pi in (8, 10): e.stamp()
            e.need(vm=[('x', pi)])
            if 'wst' in EXP and pi in (8, 10): e.stamp()
            e.lgop(f'ds_read_b128 {vr(X(tb, 2 * cgp))}, v{vXR0} offset:{(pi % 5) * 2048}', ('xf', tb, 2 * cgp))
        def r1(): e.lgop(f'ds_read_b128 {vr(X(tb, 2 * cgp + 1))}, v{vXR1} offset:{(pi % 5) * 2048}', ('xf', tb, 2 * cgp + 1))
        return [r0, r1]
    XRP = ENV('XRP', 18)
    for cgp in range(1, 9):
        place(xread(2 * cgp) + xread(2 * cgp + 1), 32 * (cgp - 1) + XRP, 32 * (cgp - 1) + XRP + 4)
    place(xdma(4) + wdma1(2), 0, 8)
    place(xdma(5) + xdma(6), 8, 16)
    for cgp in range(1, 7):
        its = xdma(2 * cgp + 5) + (xdma(2 * cgp + 6) if cgp < 6 else [])
        place(its, 32 * (cgp - 1) + XRP + 8, 32 * (cgp - 1) + XRP + 24)
    place(wdma1(3), 16, 24)
    for j in range(4, 9):
        jj = j - 3 if 'lead3' in EXP else j - 2
        place(wdma1(j), 32 * jj - 4, 32 * jj + 8)
    sched[32 * 7 + 2].append(dma_reconf)
    if 'nopf2' not in EXP:
        P2 = ENV('PF2', 80)
        sched[P2].append(t_rem); sched[P2 + 40].append(t_q)
        def t_kv():
            e.i(f's_cmp_lg_u32 s{sQ+2}, {576*36}')
            e.i('s_cbranch_scc1 KA_NOTKV')
            touch(sQ, 21, 8, f's_mul_i32 s{sT2}, s{sWAVE}, {21 * 128}')
            e.vm.pop()
            e.label('KA_NOTKV')
        sched[P2 + 70].append(t_kv)
        NTC = ENV('NTC', 2)
        assert MAPPING == 0
        for k in range(NTC):
            n_ = 18 // NTC
            def t_c(k=k, n_=n_):
                touch(sW, n_, 576, f'''
s_mul_i32 s{sT0}, s{sTM}, 72
s_and_b32 s{sT1}, s{sWAVE}, 3
s_mul_i32 s{sT1}, s{sT1}, 18
s_add_u32 s{sT0}, s{sT0}, s{sT1}
s_mul_i32 s{sT2}, s{sT0}, 9216
s_lshl_b32 s{sT1}, s{sFN}, 8
s_add_u32 s{sT2}, s{sT2}, s{sT1}
s_bfe_u32 s{sT1}, s{sFN}, {0x10000 + SWB}
s_lshl_b32 s{sT1}, s{sT1}, 7
s_sub_u32 s{sT2}, s{sT2}, s{sT1}
s_add_u32 s{sT2}, s{sT2}, {128 + k * n_ * 9216}
''')
            sched[ENV('TC0', 200) + k * ENV('TCS', 30)].append(t_c)

    SX = [vCV, vCF]; SG = [vCV + 4, vCA]
    def stat_mm(tb, ks):
        return [I(f'v_mfma_f32_16x16x32_bf16 {vr(SX[tb])}, {vr(vONE)}, {vr(X(tb, ks))}, {0 if ks == 0 else vr(SX[tb])}'),
                I(f'v_mfma_f32_16x16x32_bf16 {vr(SG[tb])}, {vr(X(tb, ks))}, {vr(X(tb, ks))}, {0 if ks == 0 else vr(SG[tb])}')]
    for ks in range(18):
        a, b = stat_mm(0, ks)
        sched[16 * ks + 2].append(a); sched[16 * ks + 6].append(b)
    def stat_fin(tb):
        T0, T1 = vC[tb], vIR2[tb]
        fin = [I(f'v_mul_f32 v{vNM[tb]}, {f32(-1.0/576)}, v{SX[tb]}')]
        for r in range(4):
            m = sum(1 << (20 * g + r) for g in range(4))
            def f(r=r, m=m):
                e.i(f's_mov_b32 vcc_lo, {m & 0xffffffff:#x}')
                e.i(f's_mov_b32 vcc_hi, {m >> 32:#x}')
                e.i(f'v_cndmask_b32 v{T0}, {0 if r == 0 else "v%d" % T0}, v{SG[tb] + r}, vcc')
            fin.append(f)
        for swap in ('v_permlane32_swap_b32', 'v_permlane16_swap_b32'):
            fin += [I(f'v_mov_b32 v{T1}, v{T0}'), I('s_nop 1'), I(f'{swap} v{T1}, v{T0}'), I('s_nop 1'), I(f'v_add_f32 v{T0}, v{T1}, v{T0}')]
        fin += [I(f'v_mul_f32 v{T1}, v{vNM[tb]}, v{vNM[tb]}'), I(f'v_mul_f32 v{T0}, {f32(1.0/576)}, v{T0}'),
                I(f'v_sub_f32 v{T0}, v{T0}, v{T1}'), I(f'v_max_f32 v{T0}, 0, v{T0}'), I(f'v_add_f32 v{T1}, {f32(1e-5)}, v{T0}'),
                I(f'v_rsq_f32 v{T0}, v{T1}'), I('s_nop 0'), I(f'v_mul_f32 v{T0}, {f32(-LOG2E)}, v{T0}')]
        return fin
    place(stat_fin(0), 282, 288)

    def cs_rd(tag, off):
        def rd():
            e.lgop(f'ds_read_b64_tr_b16 {vr(vCF, 2)}, v{vCS} offset:{off}')
            e.lgop(f'ds_read_b64_tr_b16 {vr(vCF + 2, 2)}, v{vCS} offset:{off + 256}', ('cf', tag))
        return rd
    def cs_mm(tag, first):
        def d():
            e.need(lg=[('cf', tag)])
            e.i(f'v_mfma_f32_16x16x32_bf16 {vr(vCA)}, {vr(vONE)}, {vr(vCF)}, {0 if first else vr(vCA)}')
        return d
    def cs_wr(c):
        def ad():
            e.i(f'v_lshrrev_b32 v{vT0}, 2, v{vL16}')
            e.i(f's_lshl_b32 s{sT0}, s{sWAVE}, 6')
            e.i(f's_add_u32 s{sT0}, s{sT0}, {CST + c * 512}')
            e.i(f'v_add_u32 v{vT0}, s{sT0}, v{vT0}')
            e.i(f's_mov_b64 exec, 0xffff')
            e.lgop(f'ds_write_b32 v{vT0}, v{vCA}', ('cswr', c))
            e.i(f's_mov_b64 exec, -1')
        return ad
    for j in range(9):
        for ksl in range(2):
            t = 32 * j + 1 + (8 if j < 8 else 5) * ksl
            sched[t].append(cs_rd(('p', j, ksl), (j % 4) * 16384 + ksl * 4096))
            sched[t + 4].append(cs_mm(('p', j, ksl), j == 0 and ksl == 0))
    sched[32 * 8 + 16].append(cs_wr(0))
    def cs_move(p):
        d = (BUF[p] - BUF[p - 1]) * SLOT
        return I(f'v_add_u32 v{vCS}, {d & 0xffffffff:#x}, v{vCS}')
    for p in range(6):
        s0 = 288 + 48 * p
        if p: sched[s0].append(cs_move(p))
        for i in range(3):
            sched[s0 + 11 + 6 * i].append(cs_rd((p, i), i * 2048))
            sched[s0 + 16 + 6 * i].append(cs_mm((p, i), p % 3 == 0 and i == 0))
        if p % 3 == 2: sched[s0 + 34].append(cs_wr(2 + p // 3))
    t = 576 + 10
    for p in (6, 7, 8):
        sched[t - 1].append(cs_move(p))
        for i in range(3):
            sched[t].append(cs_rd((p, i), i * 2048)); sched[t + 4].append(cs_mm((p, i), p == 6 and i == 0)); t += 5
    sched[t + 5].append(cs_wr(4))

    def dbg_srd():
        e.raw(f'''
s_mov_b32 s{sRL}, s66
s_mov_b32 s{sRL+1}, s67
s_mov_b32 s{sRL+2}, 256
s_mov_b32 s{sRL+3}, 0x00020000
''')
    def z_set():
        e.raw(f'''
s_lshl_b32 s{sT0}, s2, 3
s_add_u32 s{sT0}, s{sT0}, s{sWAVE}
s_cmp_lg_u32 s{sT0}, 0
s_cbranch_scc1 KA_NOZS
''')
        dbg_srd()
        e.raw(f'''
v_mov_b32 v{vT0}, 1
s_mov_b64 exec, 1
buffer_store_dword v{vT0}, v{vL16}, {sr(sRL)}, 0 offen sc1
s_mov_b64 exec, -1
KA_NOZS:
''')
    sched[3].append(z_set)
    def spin(lbl, dst, load, tag):
        e.need(vm=[tag])
        e.raw(f'''
s_mov_b32 s{sT3}, 0x40000
{lbl}:
v_cmp_ne_u32 vcc, 1, v{dst}
s_cmp_eq_u64 vcc, 0
s_cbranch_scc1 {lbl}_OK
s_sleep {ENV('SLP', 32)}
{load}
s_waitcnt vmcnt(0)
s_sub_u32 s{sT3}, s{sT3}, 1
s_cmp_lg_u32 s{sT3}, 0
s_cbranch_scc1 {lbl}
{lbl}_OK:
''')
    ZR = ACC(1, 2, 0)
    z_ld = f'buffer_load_dword v{ZR}, v{ZR+1}, {sr(sRL)}, 0 offen sc1'
    def z_load():
        dbg_srd()
        e.i(f'v_mov_b32 v{ZR+1}, 0')
        e.vmop(z_ld, 'z')
    if 'noz' not in EXP: sched[350].append(z_load)
    if 'noz' not in EXP: sched[410].append(lambda: spin('KA_ZS', ZR, z_ld, 'z'))
    marks = {}
    def e_set(off=EF_OFF, lbl='KA_NOES'):
        e.raw(f'''
s_cmp_lg_u32 s{sWAVE}, 0
s_cbranch_scc1 {lbl}
s_lshl_b32 s{sT0}, s2, 2
s_add_u32 s{sT0}, s{sT0}, {off}
v_mov_b32 v{vT0}, 1
s_mov_b64 exec, 1
buffer_store_dword v{vT0}, v{vL16}, {sr(sWS)}, s{sT0} offen sc1
s_mov_b64 exec, -1
{lbl}:
''')
    ER = ACC(0, 1, 0)
    e_ld = f'buffer_load_dword v{ER}, v{ER+1}, {sr(sWS)}, s{sT4} offen sc1'
    def e_load():
        e.i(f's_lshl_b32 s{sT4}, s{sWAVE}, 7')
        e.i(f's_add_u32 s{sT4}, s{sT4}, {EF_OFF}')
        e.i(f'v_lshrrev_b32 v{ER+1}, 2, v{vL16}')
        e.i(f'v_and_b32 v{ER+1}, 0x7c, v{ER+1}')
        e.vmop(e_ld, 'e')
    sched[ENV('ELD', 618)].append(e_load)
    sched[644].append(lambda: spin('KA_ES', ER, e_ld, 'e'))
    def kvdma(i):
        def f():
            e.i(f's_lshl_b32 s{sT0}, s{sWAVE}, 10')
            e.i(f's_add_u32 m0, s{sT0}, {KVL0 + i * 8192}')
            e.i(f's_add_u32 s{sT2}, s{sT0}, {KV_OFF + i * 8192}')
            e.vmop(f'buffer_load_dwordx4 v{vL16}, {sr(sWS)}, s{sT2} offen sc1 lds', 'kv')
        return f
    place([kvdma(i) for i in range(9)], 648, 700)
    def qpiece(r):
        t0, t1, t2, t3 = X(0, 2), X(0, 2) + 1, X(0, 2) + 2, X(0, 2) + 3
        def f():
            e.raw(f'''
s_cmp_lt_u32 s{sWAVE}, 4
s_cbranch_scc1 KA_NOQ{r}
s_lshl_b32 s{sT0}, s{sCG}, 2
s_and_b32 s{sT1}, s{sWAVE}, 3
s_add_u32 s{sT0}, s{sT0}, s{sT1}
s_mul_i32 s{sT0}, s{sT0}, 18
s_add_u32 s{sT0}, s{sT0}, {4 * r}
s_lshl_b32 s{sT1}, s{sTG}, 12
s_add_u32 s{sT1}, s{sT1}, {Q_OFF}
v_and_b32 v{t0}, 0x1f0, v{vL16}
v_lshlrev_b32 v{t0}, 2, v{t0}
v_lshrrev_b32 v{t1}, 6, v{vL16}
v_and_b32 v{t1}, 8, v{t1}
v_add_u32 v{t1}, s{sT0}, v{t1}
v_lshrrev_b32 v{t2}, 5, v{t1}
v_lshl_add_u32 v{t2}, v{t2}, 17, v{t0}
v_and_b32 v{t3}, 12, v{t1}
v_lshl_add_u32 v{t2}, v{t3}, 2, v{t2}
v_bfe_u32 v{t3}, v{t1}, 4, 1
v_lshl_add_u32 v{t2}, v{t3}, 3, v{t2}
buffer_load_dwordx2 {vr(16 + 2 * r, 2)}, v{t2}, {sr(sWS)}, s{sT1} offen sc1
buffer_load_dwordx2 {vr(24 + 2 * r, 2)}, v{t2}, {sr(sWS)}, s{sT1} offen offset:2048 sc1
KA_NOQ{r}:
''')
        return f
    for r in range(3): sched[662 + 10 * r].append(qpiece(r))
    def qload():
        t0, t1, t2, t3 = X(0, 2), X(0, 2) + 1, X(0, 2) + 2, X(0, 2) + 3
        e.raw(f'''
s_cmp_lt_u32 s{sWAVE}, 4
s_cbranch_scc1 KA_NOQ
''')
        e.raw(f'''
s_mul_i32 s{sT0}, s{sCG}, 9
s_and_b32 s{sT2}, s{sWAVE}, 3
s_lshl_b32 s{sT1}, s{sT2}, 1
s_add_u32 s{sT1}, s{sT1}, s{sT0}
v_lshrrev_b32 v{t2}, 9, v{vL16}
v_add_u32 v{t3}, s{sT1}, v{t2}
v_lshrrev_b32 v{vOA}, 2, v{t3}
v_lshlrev_b32 v{vOA}, 12, v{vOA}
v_and_b32 v{t3}, 3, v{t3}
v_lshl_add_u32 v{vOA}, v{t3}, 8, v{vOA}
v_and_b32 v{t3}, 0x100, v{vL16}
v_lshlrev_b32 v{t3}, 2, v{t3}
v_and_or_b32 v{t3}, v{vL16}, s{sF0}, v{t3}
v_add_u32 v{vOA}, v{vOA}, v{t3}
v_lshl_add_u32 v{vOC}, v{t2}, 28, v{t3}
s_mul_i32 s{sOA}, s{sTG}, {18 * 4096}
s_add_u32 s{sOA}, s{sOA}, {O_OFF}
s_add_u32 s{sT0}, s{sT0}, 8
s_lshr_b32 s{sT1}, s{sT0}, 2
s_lshl_b32 s{sT1}, s{sT1}, 12
s_and_b32 s{sT0}, s{sT0}, 3
s_lshl_b32 s{sT0}, s{sT0}, 8
s_add_u32 s{sT1}, s{sT1}, s{sT0}
s_lshl_b32 s{sT0}, s{sT2}, 2
s_add_u32 s{sT1}, s{sT1}, s{sT0}
s_add_u32 s{sOC}, s{sT1}, s{sOA}
KA_NOQ:
v_mov_b32 v{t0}, 0
v_lshrrev_b32 v{t1}, 2, v{vL16}
v_add_u32 v{t1}, {FLG}, v{t1}
s_mov_b64 exec, 0xffff
''')
        e.lgop(f'ds_write_b32 v{t1}, v{t0}', 'flgclr')
        e.i('s_mov_b64 exec, -1')
    sched[692].append(qload)
    def rf_load():
        e.i(f's_mov_b32 s{sT4}, {RF_OFF}')
        e.vmop(f'buffer_load_dwordx4 {vr(vRF)}, v{vL16}, {sr(sWS)}, s{sT4} offen sc1', 'rf')

    RT = vCF
    def rl_dma():
        e.raw(f'''
s_lshl_b32 s{sT0}, s{sWAVE}, 8
s_add_u32 s{sT0}, s{sT0}, s2
s_mul_i32 s{sT1}, s{sT0}, 7282
s_lshr_b32 s{sT1}, s{sT1}, 16
s_mul_i32 s{sT2}, s{sT1}, 9
s_sub_u32 s{sT2}, s{sT0}, s{sT2}
s_lshl_b32 s{sRLD}, s{sT0}, 12
s_add_u32 s{sRLD}, s{sRLD}, {W2R_OFF}
s_mov_b32 s{sRL+3}, 0x00020000
s_lshl_b32 s{sT2}, s{sT2}, 7
s_lshl_b32 s{sT0}, s{sWAVE}, 12
s_add_u32 s{sT0}, s{sT0}, {XS2}
v_bfe_u32 v{RT}, v{vL16}, 7, 1
v_mul_u32_u24 v{RT}, 1152, v{RT}
v_and_b32 v{RT+1}, 0x70, v{vL16}
v_add_u32 v{RT}, v{RT}, v{RT+1}
v_bfe_u32 v{RT+1}, v{vL16}, 8, 1
v_lshrrev_b32 v{RT+2}, 9, v{vL16}
v_mul_u32_u24 v{RT+1}, 1152, v{RT+1}
v_mul_u32_u24 v{RT+2}, 1152, v{RT+2}
s_cmp_lt_u32 s{sT1}, 144
s_cbranch_scc0 KA_RLWO
s_mov_b32 s{sRL}, s20
s_mov_b32 s{sRL+1}, s21
s_mov_b32 s{sRL+2}, {4608*1152}
s_cmp_lt_u32 s{sT1}, 128
s_cselect_b32 s{sT3}, 4, 2
s_cselect_b32 s{sT4}, 4, 8
s_mul_i32 s{sT4}, s{sT4}, 1152
s_mul_i32 s{sT1}, s{sT1}, {32*1152}
s_add_u32 s{sT2}, s{sT2}, s{sT1}
v_lshl_add_u32 v{RT+3}, v{RT+1}, 1, v{RT}
v_lshl_add_u32 v{RT+3}, v{RT+2}, s{sT3}, v{RT+3}
''')
        for i in range(4):
            e.i(f's_add_u32 m0, s{sT0}, {i * 1024}')
            e.i(f's_add_u32 s{sT2}, s{sT2}, s{sT4}' if i else 's_nop 0')
            e.i(f'buffer_load_dwordx4 v{RT+3}, {sr(sRL)}, s{sT2} offen{NTR} lds')
        e.raw(f'''
s_branch KA_RLE
KA_RLWO:
s_mov_b32 s{sRL}, s12
s_mov_b32 s{sRL+1}, s13
s_cmp_lt_u32 s{sT1}, 162
s_cselect_b32 s{sRL+2}, {576*1152}, 0
s_cselect_b32 s{sRLD}, s{sRLD}, 0x7f000000
s_sub_u32 s{sT1}, s{sT1}, 144
s_lshl_b32 s{sT1}, s{sT1}, 2
''')
        for i in range(4):
            e.raw(f'''
s_add_u32 s{sT3}, s{sT1}, {i}
s_mul_i32 s{sT4}, s{sT3}, 7282
s_lshr_b32 s{sT4}, s{sT4}, 16
s_mul_i32 vcc_lo, s{sT4}, 9
s_sub_u32 s{sT3}, s{sT3}, vcc_lo
s_mul_i32 s{sT4}, s{sT4}, 72
s_lshr_b32 vcc_lo, s{sT3}, 1
s_mul_i32 vcc_lo, vcc_lo, 18
s_and_b32 vcc_hi, s{sT3}, 1
s_lshl_b32 vcc_hi, vcc_hi, 2
s_add_u32 vcc_lo, vcc_lo, vcc_hi
s_cmp_eq_u32 s{sT3}, 8
s_cselect_b32 vcc_lo, 16, vcc_lo
s_add_u32 s{sT4}, s{sT4}, vcc_lo
s_mul_i32 s{sT4}, s{sT4}, 1152
s_add_u32 s{sT4}, s{sT4}, s{sT2}
s_cmp_eq_u32 s{sT3}, 8
s_cselect_b32 vcc_lo, 18, 2
s_cselect_b32 vcc_hi, 36, 8
v_mad_u32_u24 v{RT+3}, v{RT+1}, vcc_lo, v{RT}
v_mad_u32_u24 v{RT+3}, v{RT+2}, vcc_hi, v{RT+3}
s_add_u32 m0, s{sT0}, {i * 1024}
s_nop 0
buffer_load_dwordx4 v{RT+3}, {sr(sRL)}, s{sT4} offen{NTR} lds
''')
        e.label('KA_RLE')
        e.vmcount(4, 'rl')
    sched[ENV('RLS', 515)].append(rl_dma)
    RQ = [ACC(0, 1, 0), ACC(0, 1, 1), ACC(0, 3, 0), ACC(0, 3, 1)]
    def rl_rd():
        e.need(vm=['rl'])
        e.raw(f'''
v_lshrrev_b32 v{vT0}, 8, v{vL16}
v_lshlrev_b32 v{vT0}, 10, v{vT0}
v_and_b32 v{RQ[0]}, 0xc0, v{vL16}
v_lshl_add_u32 v{vT0}, v{RQ[0]}, 1, v{vT0}
v_bfe_u32 v{RQ[0]}, v{vL16}, 4, 2
v_lshl_add_u32 v{vT0}, v{RQ[0]}, 3, v{vT0}
s_lshl_b32 s{sT0}, s{sWAVE}, 12
s_add_u32 s{sT0}, s{sT0}, {XS2}
v_add_u32 v{vT0}, s{sT0}, v{vT0}
''')
        for q in range(4):
            e.lgop(f'ds_read_b64_tr_b16 {vr(RQ[q], 2)}, v{vT0} offset:{q * 32}')
            e.lgop(f'ds_read_b64_tr_b16 {vr(RQ[q] + 2, 2)}, v{vT0} offset:{q * 32 + 512}', ('rlf', q))
    RLF = ENV('RLF', 590)
    sched[RLF].append(rl_rd)
    for q in range(4):
        def st(q=q):
            e.need(lg=[('rlf', q)])
            e.vmop(f'buffer_store_dwordx4 {vr(RQ[q])}, v{vL16}, {sr(sWS)}, s{sRLD} offen offset:{q * 1024} sc1', 'rls')
        sched[RLF + 8 + 4 * q].append(st)

    def cs_load(c, b0, b1, t0=None, t1=None):
        base = CST + (c * 512 if c >= 2 else c * 256)
        def f():
            e.i(f'v_lshrrev_b32 v{vT0}, 4, v{vL16}')
            e.i(f'v_and_b32 v{vT0}, 48, v{vT0}')
            e.i(f'v_add_u32 v{vT0}, {base}, v{vT0}')
            e.lgop(f'ds_read_b128 {vr(vCV)}, v{vT0} offset:{b0 * 64}')
            if c >= 2: e.lgop(f'ds_read_b128 {vr(t0)}, v{vT0} offset:{256 + b0 * 64}')
            e.lgop(f'ds_read_b128 {vr(vCV + 4)}, v{vT0} offset:{b1 * 64}', ('cv', c, b0))
            if c >= 2: e.lgop(f'ds_read_b128 {vr(t1)}, v{vT0} offset:{256 + b1 * 64}', ('cv', c, b0))
        def g():
            e.need(lg=[('cv', c, b0)])
            if c >= 2:
                for r in range(4): e.i(f'v_add_f32 v{vCV + r}, v{vCV + r}, v{t0 + r}')
        def h():
            if c >= 2:
                for r in range(4): e.i(f'v_add_f32 v{vCV + 4 + r}, v{vCV + 4 + r}, v{t1 + r}')
        return f, g, h
    def swiglu(c, bg, bu, tb, outs):
        buf = c & 1
        g = ACC(buf, bg, tb); u = ACC(buf, bu, tb)
        it = []
        for r in range(4): it.append(I(f'v_fma_f32 v{g + r}, v{vNM[tb]}, v{vCV + r}, v{g + r}'))
        for r in range(4): it.append(I(f'v_fma_f32 v{u + r}, v{vNM[tb]}, v{vCV + 4 + r}, v{u + r}'))
        for r in range(4): it.append(I(f'v_mul_f32 v{u + r}, v{g + r}, v{u + r}'))
        for r in range(4): it.append(I(f'v_mul_f32 v{g + r}, v{vC[tb]}, v{g + r}'))
        for r in range(4): it.append(I(f'v_exp_f32 v{g + r}, v{g + r}'))
        for r in range(4): it.append(I(f'v_fma_f32 v{g + r}, v{g + r}, v{vIR2[tb]}, v{vIR2[tb]}'))
        for r in range(4): it.append(I(f'v_rcp_f32 v{g + r}, v{g + r}'))
        for r in range(4): it.append(I(f'v_mul_f32 v{u + r}, v{g + r}, v{u + r}'))
        it.append(I(f'v_cvt_pk_bf16_f32 v{outs[0]}, v{u}, v{u + 1}'))
        it.append(I(f'v_cvt_pk_bf16_f32 v{outs[1]}, v{u + 2}, v{u + 3}'))
        return it
    def hstore(c, tb):
        def st_():
            e.i(f's_add_u32 s{sT0}, s{sHA if c < 2 else sHB}, {H_OFF + KBI[c] * 4096 + tb * 1024}')
            e.vmop(f'buffer_store_dwordx4 {vr(ACC(c & 1, 0, tb))}, v{vL16}, {sr(sWS)}, s{sT0} offen sc1', 'hs')
        return st_
    def head(c, b0, b1, s0):
        f, g, h = cs_load(c, b0, b1, vCA, vCF)
        sched[s0].append(f); sched[s0 + 5].append(g); sched[s0 + 6].append(h)
    def epi_half(c, half, with_load, tbs=(0, 1)):
        buf = c & 1
        it = []
        if with_load:
            f, g, h = cs_load(c, half, 2 + half, ACC(buf, 2, 0), ACC(buf, 2, 1))
            it += [f, NOP, NOP, NOP, NOP, g, h]
        for tb in tbs:
            o = ACC(buf, 0, tb)
            it += swiglu(c, half, 2 + half, tb, [o + 2 * half, o + 2 * half + 1])
            if half == 1: it.append(hstore(c, tb))
        return it
    def epi_special():
        it = []
        for tb in range(2):
            for b in (2, 3):
                a = ACC(0, b, tb)
                for r in range(4): it.append(I(f'v_fma_f32 v{a + r}, v{vNM[tb]}, v{vCV + 4 * (b - 2) + r}, v{a + r}'))
                def sc(a=a, tb=tb):
                    e.i(f'v_mul_f32 v{vT0}, s{sSCALE}, v{vC[tb]}')
                    for r in range(4): e.i(f'v_mul_f32 v{a + r}, v{vT0}, v{a + r}')
                it.append(sc)
                d = ACC(0, 2, tb) + 2 * (b - 2)
                it.append(I(f'v_cvt_pk_bf16_f32 v{d}, v{a}, v{a + 1}'))
                it.append(I(f'v_cvt_pk_bf16_f32 v{d + 1}, v{a + 2}, v{a + 3}'))
        def stores():
            A = lambda b, tb: ACC(0, b, tb)
            t0, t1, t2 = vCV, vCV + 1, vCV + 2
            e.raw(f'''
s_cmp_gt_u32 s{sQI}, 19
s_cbranch_scc1 KA_QKV_DONE
v_bfe_u32 v{t0}, v{vL16}, 4, 4
v_lshrrev_b32 v{t1}, 8, v{vL16}
s_lshl_b32 s{sT0}, s{sTM}, 3
s_add_u32 s{sT0}, s{sT0}, s{sWAVE}
s_cmp_lt_u32 s{sQI}, 18
s_cbranch_scc0 KA_KV
v_lshlrev_b32 v{t2}, 6, v{t0}
v_lshl_add_u32 v{t2}, v{t1}, 4, v{t2}
s_lshl_b32 s{sT1}, s{sQI}, 17
s_lshl_b32 s{sT0}, s{sT0}, 11
s_add_u32 s{sT1}, s{sT1}, s{sT0}
s_add_u32 s{sT1}, s{sT1}, {Q_OFF}
buffer_store_dwordx4 {vr(A(2,0))}, v{t2}, {sr(sWS)}, s{sT1} offen sc1
buffer_store_dwordx4 {vr(A(2,1))}, v{t2}, {sr(sWS)}, s{sT1} offen offset:1024 sc1
s_branch KA_QKV_DONE
KA_KV:
s_mul_i32 s{sT1}, s{sT0}, {REC}
s_add_u32 s{sT1}, s{sT1}, {KV_OFF}
s_mul_i32 s{sT0}, s{sWAVE}, 2048
s_add_u32 s{sT0}, s{sT0}, {4 * SLOT}
s_cmp_eq_u32 s{sQI}, 18
s_cbranch_scc0 KA_V
; K1[half=rg/2][key][ (rg%2)*8 ] , K2[key] from rg==0 lanes
v_lshrrev_b32 v{t2}, 1, v{t1}
v_lshlrev_b32 v{t2}, 9, v{t2}
v_lshl_add_u32 v{t2}, v{t0}, 4, v{t2}
v_and_b32 v{vT0}, 1, v{t1}
v_lshl_add_u32 v{t2}, v{vT0}, 3, v{t2}
v_add_u32 v{t2}, s{sT0}, v{t2}
ds_write_b64 v{t2}, {vr(A(2,0),2)}
ds_write_b64 v{t2}, {vr(A(2,1),2)} offset:256
v_lshlrev_b32 v{t2}, 2, v{t0}
v_add_u32 v{t2}, s{sT0}, v{t2}
s_mov_b64 exec, 0xffff
ds_write_b32 v{t2}, v{A(2,0)+2} offset:{K2_IN}
ds_write_b32 v{t2}, v{A(2,1)+2} offset:{K2_IN + 64}
s_mov_b64 exec, -1
s_branch KA_KVST
KA_V:
; V[kblk][half=(t/4)%2][d][j=4(t/8)+t%4] : off = half*288 + d*16 + j*2 , d = 4rg+i
s_add_u32 s{sT1}, s{sT1}, {V_IN}
v_bfe_u32 v{t2}, v{t0}, 2, 1
v_mul_u32_u24 v{t2}, 288, v{t2}
v_lshrrev_b32 v{vT0}, 3, v{t0}
v_lshl_add_u32 v{t2}, v{vT0}, 3, v{t2}
v_and_b32 v{vT0}, 3, v{t0}
v_lshl_add_u32 v{t2}, v{vT0}, 1, v{t2}
v_lshl_add_u32 v{t2}, v{t1}, 6, v{t2}
v_add_u32 v{t2}, s{sT0}, v{t2}
''')
            for tb in range(2):
                o = tb * 576
                e.i(f'ds_write_b16 v{t2}, v{A(2,tb)} offset:{o}')
                e.i(f'ds_write_b16_d16_hi v{t2}, v{A(2,tb)} offset:{o + 16}')
                e.i(f'ds_write_b16 v{t2}, v{A(2,tb)+1} offset:{o + 32}')
                e.i(f'ds_write_b16_d16_hi v{t2}, v{A(2,tb)+1} offset:{o + 48}')
            e.i('s_mov_b64 exec, 0xffff')
            for tb in range(2):
                o = tb * 576
                e.i(f'ds_write_b16 v{t2}, v{A(2,tb)+2} offset:{o + 256}')
                e.i(f'ds_write_b16_d16_hi v{t2}, v{A(2,tb)+2} offset:{o + 272}')
            e.raw(f'''
s_mov_b64 exec, -1
KA_KVST:
v_add_u32 v{t2}, s{sT0}, v{vL16}
ds_read_b128 {vr(A(2,0))}, v{t2}
ds_read_b128 {vr(A(2,1))}, v{t2} offset:1024
s_waitcnt lgkmcnt(0)
buffer_store_dwordx4 {vr(A(2,0))}, v{vL16}, {sr(sWS)}, s{sT1} offen sc1
s_mov_b64 exec, 0xff
buffer_store_dwordx4 {vr(A(2,1))}, v{vL16}, {sr(sWS)}, s{sT1} offen offset:1024 sc1
s_mov_b64 exec, -1
''')
            e.label('KA_QKV_DONE')
        it.append(stores)
        it1 = it
        it = []
        f, g, h = cs_load(2, 0, 1, ACC(0, 2, 0), ACC(0, 2, 1))
        it += [f, NOP, NOP, NOP, NOP, g, h]
        o = ACC(0, 0, 0)
        it += swiglu(2, 0, 1, 0, [o, o + 1])
        it += swiglu(2, 0, 1, 1, [o + 2, o + 3])
        def st_():
            e.raw(f'''
s_lshr_b32 s{sT0}, s{sFN}, 1
s_lshl_b32 s{sT0}, s{sT0}, 12
s_and_b32 s{sT1}, s{sFN}, 1
s_lshl_b32 s{sT1}, s{sT1}, 9
s_add_u32 s{sT0}, s{sT0}, s{sT1}
s_add_u32 s{sT0}, s{sT0}, s{sHO}
s_add_u32 s{sT0}, s{sT0}, {H_OFF + 128 * 4096}
v_permlane16_swap_b32 v{o}, v{o + 2}
v_permlane16_swap_b32 v{o + 1}, v{o + 3}
v_and_b32 v{vT0}, 0x100, v{vL16}
v_lshlrev_b32 v{vT0}, 2, v{vT0}
v_and_or_b32 v{vT0}, v{vL16}, s{sF0}, v{vT0}
v_lshrrev_b32 v{o + 4}, 1, v{vL16}
v_and_b32 v{o + 4}, 0x100, v{o + 4}
v_add_u32 v{vT0}, v{vT0}, v{o + 4}
''')
            e.vmop(f'buffer_store_dwordx4 {vr(o)}, v{vT0}, {sr(sWS)}, s{sT0} offen sc1', 'hs')
        it.append(st_)
        return it1, it
    place(epi_half(1, 0, True) + epi_half(1, 1, True), 288, 288 + 138)
    head(2, 2, 3, 432)
    sp1, sp2 = epi_special()
    place(sp1, 432 + 8, 432 + 40)
    place(sp2, 432 + 42, 432 + 138)
    sched[473].append(lambda: marks.__setitem__('e', e.mark()))
    head(3, 0, 2, 576)
    E4 = ENV('E4', 670)
    place(epi_half(3, 0, False) + epi_half(3, 1, True), 576 + 8, E4)
    head(4, 0, 2, E4)
    f, g, h = cs_load(4, 1, 3, ACC(0, 2, 0), ACC(0, 2, 1))
    place(epi_half(4, 0, False) + [f, NOP, NOP, NOP, g, h], E4 + 7, 719)

    D = NAF - 1
    def bar(vm, lg, dmas, stamp=False, span=DSP * 3, eflag=False):
        def f(n):
            e.need(vm=vm, lg=lg)
            if eflag == 1: e.need_mark(marks['e'])
            e.i('s_barrier')
            if eflag == 1: e_set()
            if eflag == 2: e_set(RF_OFF, 'KA_NORS')
            if stamp or 'allstamps' in EXP: e.stamp()
            its = [it for p in dmas for it in dma_slot(p)]
            if its: place(its, 2 * n + 2, 2 * n + 2 + span)
        return f
    for j in range(1, 9):
        lg = [('xf', 1, 17)] if j == 8 else []
        if 'lead3' in EXP and j <= 5: lg = [('af', 16 * j - 1)]
        pre[16 * j - D].append(bar([('Wp', j)], lg, [0, 1] if j == 8 else [], j % 3 == 0, span=30))
    for p in range(6):
        dm = {0: [4], 1: [5], 3: [6], 4: [7], 5: [8]}.get(p, [])
        pre[144 + 24 * (p + 1) - D].append(bar([('W', p + 1)], [('cswr', 2 + p // 3)] if p % 3 == 2 else [], dm, p % 3 == 2, span=(DSP * 3 if p < 5 else 12), eflag=int(p == 4)))
    pre[288 + 12 - D].append(bar([('W', 7)], [], []))
    pre[288 + 24 - D - 2].append(bar([('W', 8)], [], []))
    pre[288 + 36 - 1].append(bar(['rls'], [('cswr', 4)], [], True, eflag=2))

    place(dma_slot(3), 290, 326)
    cur = {0: 0, 1: 0}
    def rdA(n, r):
        c, b, ks, u, off = FR[n]
        a = vTA1 if u else vTA0
        if not (0 <= off - cur[u] <= 65535 - 256):
            nb = (off // SLOT) * SLOT
            e.i(f'v_add_u32 v{a}, {(nb - cur[u]) & 0xffffffff:#x}, v{a}')
            cur[u] = nb
        e.lgop(f'ds_read_b64_tr_b16 {vr(AF(n) + 2 * r, 2)}, v{a} offset:{off - cur[u] + r * 256}', ('af', n) if r else None)

    def window():
        e.need(lg=[('cswr', 0)])
        e.i('s_barrier')
        e.stamp()
        for it in dma_slot(2): it()
        mm = [m for ks in range(18) for m in stat_mm(1, ks)]
        va = epi_half(0, 0, True, (0,)) + epi_half(0, 1, True, (0,))
        k = 0
        for i_, m in enumerate(mm):
            m()
            while k < (i_ + 1) * (len(va) - 12) // len(mm):
                va[k](); k += 1
        e.raw(f'''
v_lshrrev_b32 v{vT0}, 8, v{vL16}
v_lshlrev_b32 v{vT0}, 9, v{vT0}
v_sub_u32 v{vTA0}, v{vTA0}, v{vT0}
v_sub_u32 v{vTA1}, v{vTA1}, v{vT0}
s_and_b32 s{sT0}, s{sWAVE}, 1
s_lshl_b32 s{sT0}, s{sT0}, 5
v_xor_b32 v{vCS}, s{sT0}, v{vTA0}
s_bfe_u32 s{sT0}, s{sWAVE}, 0x10001
s_mul_i32 s{sT0}, s{sT0}, 12288
s_lshr_b32 s{sT1}, s{sWAVE}, 2
s_mul_i32 s{sT1}, s{sT1}, 6144
s_add_u32 s{sT0}, s{sT0}, s{sT1}
s_add_u32 s{sT0}, s{sT0}, {BUF[0] * SLOT}
v_add_u32 v{vCS}, s{sT0}, v{vCS}
''')
        fin = stat_fin(1)
        rest = va[k:]
        for i_ in range(max(len(fin), len(rest))):
            if i_ < len(fin): fin[i_]()
            if i_ < len(rest): rest[i_]()
        o = ACC(0, 0, 1)
        t2 = ACC(0, 1, 1)
        for it in swiglu(0, 1, 3, 1, [t2, t2 + 1])[:8]: it()
        f, g, h = cs_load(0, 0, 2)
        f()
        for it in swiglu(0, 1, 3, 1, [t2, t2 + 1])[8:]: it()
        g()
        vb = swiglu(0, 0, 2, 1, [o, o + 1])
        for it in vb[:20]: it()
        e.need(vm=[('W', 0)])
        e.i('s_barrier')
        for n in range(144, 144 + D):
            rdA(n, 0); rdA(n, 1)
        for it in vb[20:]: it()
        e.i(f'v_mov_b32 v{o + 2}, v{t2}')
        e.i(f'v_mov_b32 v{o + 3}, v{t2 + 1}')
        hstore(0, 1)()
        e.stamp()

    e.stamp()
    for it in xread(0) + xread(1): it()
    e.need(vm=[('Wp', 0)])
    e.i('s_barrier')
    e.stamp()
    for n in range(D):
        rdA(n, 0); rdA(n, 1)
    for n in range(360):
        c, b, ks, u, off = FR[n]
        if n == 144: window()
        for f in pre[n]: f(n)
        for tb in range(2):
            e.need(lg=[('af', n)] + ([('xf', tb, ks)] if c == 0 else []))
            acc = ACC(c & 1, b, tb)
            e.i(f'v_mfma_f32_16x16x32_bf16 {vr(acc)}, {vr(AF(n))}, {vr(X(tb, ks))}, {0 if ks == 0 else vr(acc)}')
            if n + D < 360 and not (n < 144 <= n + D): rdA(n + D, tb)
            for it in sched[2 * n + tb]: it()
    e.need(vm=['kv'])
    e.drain(lg=True)
    e.i('s_barrier')
    e.raw(f'''
s_cmp_lt_u32 s{sWAVE}, 4
s_cbranch_scc1 KA_NOPR
s_setprio 1
s_branch KA_JN
KA_NOPR:
''')
    rf_load()
    e.label('KA_JN')
    e.i('s_nop 2')
    e.stamp()
    for it in epi_half(4, 1, False): it()
    e.stamp()
```

```python
from emit import *
from common import *
import os
import fa
EXP = os.environ.get('EXP', '').split(',')
ENV = lambda k, d: int(os.environ.get(k, d))
FLG = fa.FLG
FP_OFF = 73728
SP_OFF = 0
OSLP = ENV('OSLP', 4)
ODLY = ENV('ODLY', 20)
XLD = ENV('XLD', 0)
OSC = '' if 'plaino' in EXP else ' sc1'
GNOP = ENV('GNOP', 0)
DEPTH = ENV('DEPTH', 5)
HSLP = ENV('HSLP', 6)
HFT = ENV('HFT', 0)
PRIO_A = ENV('PRIO_A', 1)
PRIO_G = ENV('PRIO_G', 0)

sX, sOUT, sWS = fa.sX, 28, fa.sWS
sWAVE, sTG, sCG, sODD = fa.sWAVE, fa.sTG, fa.sCG, 6
sT0, sT1, sT2, sT3 = 32, 33, 34, 35
sHO, sWM, sWSH = 45, 46, 47
sIT, sRDY = 48, 49
sVM = 54
sW4, sINC, sREC8 = 7, 56, 57
sHF = fa.sHF
sKV = 58

def gen_kb(e):
    e.raw(f'''
s_and_b32 s{sODD}, s{sCG}, 1
s_and_b32 s{sW4}, s{sWAVE}, 3
''')
    def hflag(tmp):
        e.raw(f'''
v_mov_b32 v{tmp}, 1
v_mov_b32 v{tmp+1}, 0
s_mov_b64 exec, 1
buffer_store_dword v{tmp}, v{tmp+1}, {sr(sWS)}, s{sHF} offen sc1
s_mov_b64 exec, -1
''')
    def post(word, val, ta, tb):
        e.raw(f'''
s_lshl_b32 s{sT3}, s{sW4}, 2
s_add_u32 s{sT3}, s{sT3}, {FLG + 16 * word}
v_mov_b32 v{ta}, s{sT3}
v_mov_b32 v{tb}, {val}
s_mov_b64 exec, 1
ds_write_b32 v{ta}, v{tb}
s_mov_b64 exec, -1
''')
    def wait4(lbl, word, ta, t4, slp):
        e.raw(f'''
v_mov_b32 v{ta}, {FLG + 16 * word}
s_mov_b32 s{sT2}, 0x400000
{lbl}:
ds_read_b128 {vr(t4)}, v{ta}
s_waitcnt lgkmcnt(0)
v_min_u32 v{t4}, v{t4}, v{t4+1}
v_min3_u32 v{t4}, v{t4}, v{t4+2}, v{t4+3}
s_nop 0
v_readfirstlane_b32 s{sT3}, v{t4}
s_cmp_lg_u32 s{sT3}, 0
s_cbranch_scc1 {lbl}_OK
s_sleep {slp}
s_sub_u32 s{sT2}, s{sT2}, 1
s_cmp_lg_u32 s{sT2}, 0
s_cbranch_scc1 {lbl}
{lbl}_OK:
''')
    ns0 = e.nstamp
    e.i(f's_cmp_lt_u32 s{sWAVE}, 4')
    e.i('s_cbranch_scc1 KB_GEMM')
    head_lines = e.lines; e.lines = []
    e.label('KB_GEMM')

    vL16, vA, vB, vT = 0, 1, 2, 3
    F = lambda t: 4 + 4 * t
    S = lambda t: 76 + 4 * t
    BUFS = {3: [148, 184, 220], 4: [76, 148, 184, 220], 5: [112, 148, 184, 220, 76]}[DEPTH]
    e.i(f's_setprio {PRIO_G}')
    assert fa.SWB == 0
    sHB, sWB = 59, 60
    def setk(code):
        e.raw(code + f'''
s_lshl_b32 s{sHO}, s{sT3}, 12
s_add_u32 s{sHO}, s{sHO}, s{sHB}
s_mul_i32 s{sWSH}, s{sT3}, {36 * 1024}
s_add_u32 s{sWSH}, s{sWSH}, s{sWB}
s_mul_i32 s{sT3}, s{sODD}, {5 * 1024}
s_add_u32 s{sWM}, s{sWSH}, s{sT3}
s_add_u32 s{sWSH}, s{sWSH}, {4 * 1024}
''')
    def poll(lbl, ld, red):
        e.raw(f'''
s_mov_b32 s{sIT}, 0x40000
{lbl}:
s_waitcnt vmcnt(0)
{red}
s_cmp_eq_u64 vcc, 0
s_cbranch_scc1 {lbl}_OK
s_sleep {HSLP}
{ld}
s_sub_u32 s{sIT}, s{sIT}, 1
s_cmp_lg_u32 s{sIT}, 0
s_cbranch_scc1 {lbl}
s_waitcnt vmcnt(0)
{lbl}_OK:
''')
    RF = fa.vRF
    rld = f'buffer_load_dwordx4 {vr(RF)}, v{vL16}, {sr(sWS)}, s{sT0} offen sc1'
    e.raw(f'''
s_mov_b32 s{sT0}, {RF_OFF}
s_lshl_b32 s{sT2}, s{sODD}, 11
v_add_u32 v{vA}, s{sT2}, v{vL16}
v_xor_b32 v{vB}, 0x800, v{vA}
s_mul_i32 s{sHB}, s{sTG}, {144 * 4096}
s_lshr_b32 s{sT2}, s{sCG}, 1
s_mul_i32 s{sWB}, s{sT2}, {9 * 1024}
s_add_u32 s{sWB}, s{sWB}, {W2R_OFF}
s_lshl_b32 s{sKV}, s{sWAVE}, 10
''')
    setk(f'''
s_lshl_b32 s{sT3}, s{sWAVE}, 1
s_and_b32 s{sT3}, s{sT3}, 4
s_add_u32 s{sT3}, s{sT3}, s{sWAVE}
''')
    rred = f'''v_and_b32 v{RF}, v{RF}, v{RF+1}
v_and_b32 v{RF+2}, v{RF+2}, v{RF+3}
v_and_b32 v{RF}, v{RF}, v{RF+2}
v_cmp_ne_u32 vcc, 1, v{RF}'''
    e.need(vm=['rf'])
    e.raw(rred + f'''
s_cmp_eq_u64 vcc, 0
s_cbranch_scc1 KB_RP2_OK
{rld}
''')
    poll('KB_RP2', rld, rred)
    e.stamp()
    e.vm = []; e.vm_done = 0; e.lg = []; e.lg_done = 0
    def loads(i):
        r = BUFS[i % DEPTH]
        for j in range(4):
            e.vmop(f'buffer_load_dwordx4 {vr(r + 4 * j)}, v{vA if j < 2 else vB}, {sr(sWS)}, s{sHO} offen offset:{(j & 1) * 1024} sc1', ('g', i, 0))
        for j in range(4):
            e.vmop(f'buffer_load_dwordx4 {vr(r + 16 + 4 * j)}, v{vL16}, {sr(sWS)}, s{sWM} offen offset:{j * 1024} sc1', ('g', i, j))
        e.vmop(f'buffer_load_dwordx4 {vr(r + 32)}, v{vL16}, {sr(sWS)}, s{sWSH} offen sc1', ('g', i, 4))
        if i == 15: setk(f's_add_u32 s{sT3}, s{sWAVE}, 128')
        elif i == 19: setk(f's_add_u32 s{sT3}, s{sWAVE}, 2')
        elif i == 35: setk(f's_add_u32 s{sT3}, s{sWAVE}, 144')
        else:
            st = 4 if 16 <= i < 19 else 8
            e.i(f's_add_u32 s{sHO}, s{sHO}, {st * 4096}')
            e.i(f's_add_u32 s{sWM}, s{sWM}, {st * 36 * 1024}')
            e.i(f's_add_u32 s{sWSH}, s{sWSH}, {st * 36 * 1024}')
    for i in range(DEPTH - 1): loads(i)
    HR = vT
    hld = f'buffer_load_dword v{HR}, v{HR}, {sr(sWS)}, s{sT1} offen sc1'
    hadr = f'v_lshrrev_b32 v{HR}, 2, v{vL16}'
    def mm(acc, r, first, tagf):
        for nb in range(5):
            e.need(vm=[tagf(nb)])
            for j in range(4 if nb < 4 else 2):
                t = nb * 4 + j
                if 'nogmm' not in EXP: e.i(f'v_mfma_f32_16x16x32_bf16 {vr(acc(t))}, {vr(r + 16 + 4 * nb)}, {vr(r + 4 * j)}, {0 if first else vr(acc(t))}')
                if GNOP: e.i(f's_nop {GNOP - 1}')
    def kvdma(i):
        e.i(f's_add_u32 m0, s{sKV}, {i * 4096}')
        e.i(f's_add_u32 s{sT2}, s{sKV}, {KV_OFF + 73728 + i * 4096}')
        e.vmop(f'buffer_load_dwordx4 v{vL16}, {sr(sWS)}, s{sT2} offen sc1 lds', 'kv2')
    WO = lambda i, nb: 148 + (i * 5 + nb) * 4
    wo_n = [0]
    def woload(k):
        i, j = divmod(k, 5)
        if k == 20:
            e.i(f's_cmp_gt_u32 s{sWAVE}, 1')
            e.i(f's_cselect_b32 s{sWM}, 0x7f000000, s{sWM}')
            e.i(f's_cselect_b32 s{sWSH}, 0x7f000000, s{sWSH}')
        if j < 4:
            e.vmop(f'buffer_load_dwordx4 {vr(WO(i, j))}, v{vL16}, {sr(sWS)}, s{sWM} offen offset:{j * 1024} sc1')
        else:
            e.vmop(f'buffer_load_dwordx4 {vr(WO(i, 4))}, v{vL16}, {sr(sWS)}, s{sWSH} offen sc1')
            e.i(f's_add_u32 s{sWM}, s{sWM}, {4 * 36 * 1024}')
            e.i(f's_add_u32 s{sWSH}, s{sWSH}, {4 * 36 * 1024}')
    for i in range(36):
        if i == 13:
            e.i(f's_lshl_b32 s{sT1}, s{sTG}, 8')
            e.i(f's_add_u32 s{sT1}, s{sT1}, {HF_OFF}')
            e.i(hadr)
            e.vmop(hld, 'hf')
        if i + DEPTH - 1 == 20:
            e.need(vm=['hf'])
            e.i(f'v_cmp_ne_u32 vcc, 1, v{HR}')
            e.i('s_cmp_eq_u64 vcc, 0')
            e.i('s_cbranch_scc1 KB_HP_OK')
            e.i(hadr)
            e.i(hld)
            poll('KB_HP', hadr + '\n' + hld, f'v_cmp_ne_u32 vcc, 1, v{HR}')
            e.stamp()
        if i + DEPTH - 1 < 36: loads(i + DEPTH - 1)
        else:
            fb_ = BUFS[(i - 1) % DEPTH]
            if fb_ >= 148:
                k0 = (fb_ - 148) // 4
                assert k0 == wo_n[0]
                for k in range(k0, min(25, k0 + 9)): woload(k)
                wo_n[0] = min(25, k0 + 9)
        if i < 6:
            for k in range(3): kvdma(3 * i + k)
        mm(F, BUFS[i % DEPTH], i == 0, lambda nb, i=i: ('g', i, nb))
        if i == 0:
            e.raw(f'''
v_mov_b32 v{vT}, 1
s_mov_b64 exec, 1
buffer_store_dword v{vT}, v{vL16}, {sr(sWS)}, s{sHF} offen sc1
s_mov_b64 exec, -1
''')
        if i == 6 + DEPTH - 1:
            e.need(vm=['kv2'])
            e.raw(f'''
s_lshl_b32 s{sT3}, s{sW4}, 2
s_add_u32 s{sT3}, s{sT3}, {FLG}
v_mov_b32 v{vT}, s{sT3}
s_mov_b64 exec, 1
ds_write_b32 v{vT}, v{vT}
s_mov_b64 exec, -1
''')
    e.i('s_setprio 2')
    for k in range(wo_n[0], 25): woload(k)
    e.stamp()
    sO = [49, 50, 51, 52, 53]
    sPEND = 55
    sFST = 56
    e.i(f's_mov_b32 s{sFST}, 0')
    e.raw(f'''
s_mul_i32 s{sT2}, s{sWAVE}, 18432
s_add_u32 s{sT2}, s{sT2}, {FP_OFF}
v_add_u32 v{vT}, s{sT2}, v{vL16}
s_mul_i32 s{sO[0]}, s{sTG}, {18 * 4096}
s_lshl_b32 s{sT2}, s{sWAVE}, 12
s_add_u32 s{sO[0]}, s{sO[0]}, s{sT2}
s_add_u32 s{sO[0]}, s{sO[0]}, {O_OFF}
s_add_u32 s{sO[1]}, s{sO[0]}, {1 * 16384}
s_add_u32 s{sO[2]}, s{sO[0]}, {2 * 16384}
s_add_u32 s{sO[3]}, s{sO[0]}, {3 * 16384}
s_add_u32 s{sO[4]}, s{sO[0]}, {4 * 16384}
s_cmp_gt_u32 s{sWAVE}, 1
s_cselect_b32 s{sPEND}, 15, 31
''')
    wait4('KB_AP', 2, 248, 252, 8)
    for t in range(18):
        e.i(f'ds_write_b128 v{vT}, {vr(F(t))} offset:{t * 1024}')
    e.i('s_waitcnt lgkmcnt(0)')
    post(1, 1, 248, 249)
    e.i('s_waitcnt lgkmcnt(0)')
    e.stamp()
    OB = lambda i, j: 4 + (i * 4 + j) * 4 if i < 4 else 68 + 4 * j if j < 2 else 248 + 4 * (j - 2)
    wait4('KB_AD', 3, 248, 252, 2)
    e.i(f's_cmp_eq_u32 s{sT2}, 0x400000')
    e.i('s_cbranch_scc1 KB_NODLY')
    e.i(f's_sleep {ODLY}')
    e.label('KB_NODLY')
    e.stamp()
    e.i(f's_mov_b32 s{sIT}, 0x100000')
    def oload(i):
        for j in range(4):
            e.i(f'buffer_load_dwordx4 {vr(OB(i, j))}, v{vA if j < 2 else vB}, {sr(sWS)}, s{sO[i]} offen offset:{(j & 1) * 1024} sc1')
    def ocheck(i, lbl):
        regs = [OB(i, j) + r for j in range(4) for r in range(4)]
        e.i(f'v_max_u32 v{vL16}, v{regs[0]}, v{regs[1]}')
        for k in range(2, 16, 2):
            e.i(f'v_max3_u32 v{vL16}, v{regs[k]}, v{regs[k + 1]}, v{vL16}')
        e.raw(f'''
v_cmp_eq_u32 vcc, -1, v{vL16}
s_cmp_eq_u64 vcc, 0
s_cbranch_scc0 {lbl}
s_bitset0_b32 s{sPEND}, {i}
s_cmp_lg_u32 s{sFST}, 0
s_cbranch_scc1 {lbl}_ACC
s_mov_b32 s{sFST}, 1
''')
        for first in (True, False):
            for nb in range(5):
                for j in range(4 if nb < 4 else 2):
                    t = nb * 4 + j
                    e.i(f'v_mfma_f32_16x16x32_bf16 {vr(S(t))}, {vr(WO(i, nb))}, {vr(OB(i, j))}, {0 if first else vr(S(t))}')
            if first:
                e.i(f's_branch {lbl}')
                e.label(f'{lbl}_ACC')
    e.label('KB_OR')
    e.i(f's_mov_b32 s{sT0}, s{sPEND}')
    for i in range(5):
        e.i(f's_bitcmp1_b32 s{sPEND}, {i}')
        e.i(f's_cbranch_scc0 KB_OL{i}')
        oload(i)
        e.label(f'KB_OL{i}')
    for i in range(5):
        e.i(f's_bitcmp1_b32 s{sPEND}, {i}')
        e.i(f's_cbranch_scc0 KB_OM{i}')
        if i < 4:
            e.i(f's_lshr_b32 s{sT1}, s{sT0}, {i + 1}')
            e.i(f's_bcnt1_i32_b32 s{sT1}, s{sT1}')
            for n in range(4 - i, 0, -1):
                e.i(f's_waitcnt vmcnt({4 * n})')
                e.i(f's_cmp_eq_u32 s{sT1}, {n}')
                e.i(f's_cbranch_scc1 KB_OC{i}')
        e.i('s_waitcnt vmcnt(0)')
        e.label(f'KB_OC{i}')
        ocheck(i, f'KB_OM{i}')
        e.label(f'KB_OM{i}')
    e.raw(f'''
s_cmp_eq_u32 s{sPEND}, 0
s_cbranch_scc1 KB_OD
s_sleep {OSLP}
s_sub_u32 s{sIT}, s{sIT}, 1
s_cmp_lg_u32 s{sIT}, 0
s_cbranch_scc1 KB_OR
KB_OD:
''')
    e.stamp()
    e.i('s_nop 4')
    e.i(f'v_add_u32 v{vT}, {(SP_OFF - FP_OFF) & 0xffffffff:#x}, v{vT}')
    for t in range(18):
        e.i(f'ds_write_b128 v{vT}, {vr(S(t))} offset:{t * 1024}')
    e.raw('''
s_waitcnt lgkmcnt(0)
s_barrier
''')
    e.stamp(); e.stamp(True)
    e.stamp_flush(sWS, sWAVE, STAMP_A)
    e.i('s_endpgm')

    e.nstamp = ns0
    e.vm = []; e.vm_done = 0; e.lg = []; e.lg_done = 0
    vK1, vK2, vV = 1, 2, 3
    Q1 = [16, 24]; Q2 = [20, 28]
    SB = [136, 48]; P = 64; O = [72, 88]
    KF = [104, 112]; VF = [120, 128]
    t0, t1, t2, t3, t4, t5 = 4, 5, 6, 7, 8, 9
    vMX = [10, 11]
    vOA, vOC = fa.vOA, fa.vOC
    vXO, vP0, vP1 = 38, 39, 40
    XR = 240
    sOA, sOC, sXM, sXS = fa.sOA, fa.sOC, 52, 53
    gemm_lines = e.lines; e.lines = head_lines
    def qk(q, k):
        e.i(f'v_mfma_f32_32x32x16_bf16 {vr(SB[q], 16)}, {vr(k)}, {vr(Q1[q])}, 0')
        e.i(f'v_mfma_f32_32x32x8_bf16 {vr(SB[q], 16)}, {vr(k + 4, 2)}, {vr(Q2[q], 2)}, {vr(SB[q], 16)}')
    def set_m(off):
        for q in range(2): e.i(f'v_mov_b32 v{t0 + q}, v{vMX[q]}')
        e.i('s_nop 1')
        for q in range(2): e.i(f'v_permlane32_swap_b32 v{t0 + q}, v{vMX[q]}')
        e.i('s_nop 1')
        for q in range(2): e.i(f'v_max_f32 v{vMX[q]}, v{t0 + q}, v{vMX[q]}')
        for q in range(2): e.i(f'v_sub_f32 v{vMX[q]}, {f32(-off)}, v{vMX[q]}')
        for q in range(2): e.i(f'v_cvt_pk_bf16_f32 v{t0 + q}, v{vMX[q]}, 0')
        for q in range(2): e.i(f'v_lshlrev_b32 v{t0 + q}, 16, v{t0 + q}')
        for q in range(2): e.i(f'v_sub_f32 v{t0 + q}, v{vMX[q]}, v{t0 + q}')
        for q in range(2): e.i(f'v_cvt_pk_bf16_f32 v{Q2[q] + 1}, v{vMX[q]}, v{t0 + q}')
        for q in range(2): e.i(f'v_and_b32 v{t2 + q}, 0xffff0000, v{Q2[q] + 1}')
        for q in range(2): e.i(f'v_sub_f32 v{t0 + q}, v{t0 + q}, v{t2 + q}')
        e.i(f'v_cmp_gt_u32 vcc, 32, v0')
        for q in range(2): e.i(f'v_cvt_pk_bf16_f32 v{t0 + q}, v{t0 + q}, 0')
        for q in range(2): e.i(f'v_cndmask_b32 v{Q2[q] + 1}, v{t0 + q}, v{Q2[q] + 1}, vcc')
    e.raw(f'''
s_setprio {PRIO_A}
v_add_u32 v{vK1}, {KVL0}, v0
v_lshrrev_b32 v0, 4, v0
v_and_b32 v{t0}, 31, v0
v_lshlrev_b32 v{vK2}, 2, v{t0}
v_add_u32 v{vK2}, {KVL0}, v{vK2}
ds_read_b128 {vr(KF[0])}, v{vK1}
ds_read_b32 v{KF[0]+4}, v{vK2} offset:{K2_IN}
s_bitcmp1_b32 s{sWAVE}, 0
s_cbranch_scc0 KB_QEV
v_mov_b32 v16, v17
v_mov_b32 v24, v25
v_mov_b32 v17, v18
v_mov_b32 v25, v26
v_mov_b32 v18, v19
v_mov_b32 v26, v27
v_mov_b32 v19, v20
v_mov_b32 v27, v28
v_mov_b32 v20, v21
v_mov_b32 v28, v29
KB_QEV:
v_cmp_gt_u32 vcc, 32, v0
v_mov_b32 v{t4}, 0x3f803f80
v_mov_b32 v{KF[0]+5}, v{t4}
v_cndmask_b32 v{Q2[0]}, v{Q2[0]}, 0, vcc
v_cndmask_b32 v{Q2[1]}, v{Q2[1]}, 0, vcc
v_mov_b32 v{Q2[0]+1}, 0
v_mov_b32 v{Q2[1]+1}, 0
v_mov_b32 v{KF[1]+5}, v{t4}
v_or_b32 v{t5}, 4, v{t0}
v_cmp_eq_u32 vcc, 22, v{t5}
v_lshrrev_b32 v{t1}, 5, v0
v_mul_u32_u24 v{vV}, 288, v{t1}
v_lshl_add_u32 v{vV}, v{t0}, 4, v{vV}
v_add_u32 v{vV}, {KVL0}, v{vV}
s_mov_b32 s{sVM}, 0x3ffff
s_mov_b32 s{sVM+1}, 0x3ffff
''')
    for r in range(8): e.i(f'v_cndmask_b32 v{VF[0] + r}, 0, v{t4}, vcc')
    e.i('s_waitcnt lgkmcnt(0)')
    qk(0, KF[0])
    e.raw(f'''
s_mov_b64 exec, {sr(sVM, 2)}
ds_read_b128 {vr(VF[0])}, v{vV} offset:{V_IN}
ds_read_b128 {vr(VF[0]+4)}, v{vV} offset:{V_IN + 576}
s_mov_b64 exec, -1
''')
    qk(1, KF[0])
    for r in range(8): e.i(f'v_cndmask_b32 v{VF[1] + r}, 0, v{t4}, vcc')
    for r in range(4): e.i(f'v_mov_b32 v{P + 4 + r}, 0')
    for r in range(8): e.i(f'v_mov_b32 v{O[0] + r}, 0')
    for q in range(2):
        e.i(f'v_max_f32 v{vMX[q]}, v{SB[q]}, v{SB[q] + 1}')
        for r in range(2, 16, 2):
            e.i(f'v_max3_f32 v{vMX[q]}, v{SB[q] + r}, v{SB[q] + r + 1}, v{vMX[q]}')
            e.i(f'v_mov_b32 v{O[0] + 8 + q * 12 + r // 2 - 1}, 0')
        for r in range(5): e.i(f'v_mov_b32 v{O[0] + 8 + q * 12 + 7 + r}, 0')
    set_m(100.0)
    for r in range(16): e.i(f'v_add_f32 v{SB[0] + r}, v{vMX[0]}, v{SB[0] + r}')
    e.raw(f'''
s_mov_b32 s{sRDY}, 0
s_mov_b32 s{sIT}, 0
s_mov_b32 s{sREC8}, {8 * REC}
s_waitcnt lgkmcnt(0)
''')
    e.stamp()
    e.raw('.p2align 6')
    e.label('KB_LOOP')
    e.raw(f'''
s_cmp_eq_u32 s{sIT}, 3
s_cselect_b32 s{sINC}, {(-(KVL0 + 24 * REC)) & 0xffffffff:#x}, s{sREC8}
''')
    def step(tt, q):
        kb = tt & 1
        s = SB[q]; sn = SB[q ^ 1]
        kn = KF[kb] if q == 0 else KF[kb ^ 1]
        ex = lambda r: e.i(f'v_exp_f32 v{s + r}, v{s + r}')
        cv = lambda c: e.i(f'v_cvt_pk_bf16_f32 v{P + c}, v{s + 2 * c}, v{s + 2 * c + 1}')
        off = (tt + 1) * REC
        if tt == 7:
            off = 0
            if q == 0:
                e.i(f'v_add_u32 v{vK1}, s{sINC}, v{vK1}')
                e.i(f'v_add_u32 v{vK2}, s{sINC}, v{vK2}')
            else:
                e.i(f'v_add_u32 v{vV}, s{sINC}, v{vV}')
        if q == 1: e.i('s_waitcnt lgkmcnt(0)')
        e.i(f'v_mfma_f32_32x32x16_bf16 {vr(sn, 16)}, {vr(kn)}, {vr(Q1[q ^ 1])}, 0')
        if q == 0:
            e.i(f'ds_read_b128 {vr(KF[kb ^ 1])}, v{vK1} offset:{off}')
            e.i(f'ds_read_b32 v{KF[kb ^ 1] + 4}, v{vK2} offset:{off + K2_IN}')
        else:
            if 'noex' not in EXP: e.i(f's_mov_b64 exec, {sr(sVM, 2)}')
            e.i(f'ds_read_b128 {vr(VF[kb ^ 1])}, v{vV} offset:{off + V_IN}')
            e.i(f'ds_read_b128 {vr(VF[kb ^ 1] + 4)}, v{vV} offset:{off + V_IN + 576}')
            if 'noex' not in EXP: e.i('s_mov_b64 exec, -1')
        ex(0); ex(1); ex(2); cv(0); ex(3)
        vp = VF[kb ^ 1] if q == 0 else VF[kb]
        e.i(f'v_mfma_f32_32x32x16_bf16 {vr(O[q ^ 1], 16)}, {vr(vp + 4)}, {vr(P + 4)}, {vr(O[q ^ 1], 16)}')
        ex(4); cv(1); ex(5); ex(6); cv(2); ex(7)
        e.i(f'v_mfma_f32_32x32x8_bf16 {vr(sn, 16)}, {vr(kn + 4, 2)}, {vr(Q2[q ^ 1], 2)}, {vr(sn, 16)}')
        ex(8); cv(3); ex(9); ex(10); cv(4); ex(11)
        if q == 0: e.i('s_waitcnt lgkmcnt(2)')
        e.i(f'v_mfma_f32_32x32x16_bf16 {vr(O[q], 16)}, {vr(VF[kb])}, {vr(P)}, {vr(O[q], 16)}')
        ex(12); cv(5); ex(13); ex(14); ex(15); cv(6); cv(7)
    for tt in range(8):
        step(tt, 0); step(tt, 1)
        if tt == HFT:
            e.i(f's_cmp_lg_u32 s{sIT}, 1')
            e.i('s_cbranch_scc1 KB_NOHF')
            e.i('s_waitcnt vmcnt(0)')
            hflag(t0)
            e.label('KB_NOHF')
        if tt == 5:
            e.i(f's_cmp_lg_u32 s{sIT}, 3')
            e.i('s_cbranch_scc1 KB_KVW_OK')
            wait4('KB_KVW', 0, t0, 12, 1)
        if tt == 3:
            e.i(f's_cmp_lg_u32 s{sIT}, 4')
            e.i('s_cbranch_scc1 KB_NOAP')
            post(2, 1, 12, 13)
            e.i('s_waitcnt lgkmcnt(0)')
            e.label('KB_NOAP')
    e.raw(f'''
s_add_u32 s{sIT}, s{sIT}, 1
s_cmp_lt_u32 s{sIT}, 8
s_cbranch_scc1 KB_LOOP
v_mfma_f32_32x32x16_bf16 {vr(O[1], 16)}, {vr(VF[1] + 4)}, {vr(P + 4)}, {vr(O[1], 16)}
s_waitcnt lgkmcnt(0)
''')
    e.i('s_nop 3')
    e.stamp()
    for k in range(2): e.i(f'v_mul_f32 v{t0 + k}, 0, v{O[0] + k}')
    for r in range(2, 11): e.i(f'v_fma_f32 v{t0 + (r & 1)}, v{O[0] + r}, 0, v{t0 + (r & 1)}')
    e.i(f'v_rcp_f32 v{t4}, v{O[0] + 10}')
    for r in range(11): e.i(f'v_fma_f32 v{t0 + (r & 1)}, v{O[1] + r}, 0, v{t0 + (r & 1)}')
    e.raw(f'''
v_rcp_f32 v{t5}, v{O[1]+10}
v_max_f32 v{t2}, v{O[0]+10}, v{O[1]+10}
v_min_f32 v{t3}, v{O[0]+10}, v{O[1]+10}
v_add_f32 v{t0}, v{t0}, v{t1}
v_cmp_lt_f32 vcc, {f32(2.0 ** 110)}, v{t2}
v_cmp_neq_f32 {sr(sT0, 2)}, 0, v{t0}
s_or_b64 {sr(sT0, 2)}, {sr(sT0, 2)}, vcc
v_cmp_gt_f32 vcc, {f32(2.0 ** -104)}, v{t3}
s_or_b64 {sr(sT0, 2)}, {sr(sT0, 2)}, vcc
s_cbranch_scc1 KB_REDO
KB_SAFE:
''')
    for q in range(2):
        for r in range(10): e.i(f'v_mul_f32 v{O[q] + r}, v{t4 + q}, v{O[q] + r}')
        for c in range(5): e.i(f'v_cvt_pk_bf16_f32 v{SB[q] + c}, v{O[q] + 2 * c}, v{O[q] + 2 * c + 1}')
        for c in range(5): e.i(f'v_min_u32 v{SB[q] + c}, -2, v{SB[q] + c}')
        e.i(f'buffer_store_dwordx4 {vr(SB[q])}, v{vOA}, {sr(sWS)}, s{sOA} offen offset:{q * 2048}{OSC}')
        e.i(f'buffer_store_dword v{SB[q] + 4}, v{vOC}, {sr(sWS)}, s{sOC} offen offset:{q * 2048}{OSC}')
    post(3, 1, 12, 13)
    if 'plaino' in EXP:
        e.i('s_waitcnt vmcnt(0)')
        e.i('buffer_wbl2 sc1')
    e.stamp()
    e.raw(f'''
v_and_b32 v{t5}, 15, v0
s_mov_b32 s{sOUT}, s64
s_mov_b32 s{sOUT+1}, s65
s_mov_b32 s{sOUT+2}, {2048 * 1152}
s_mov_b32 s{sOUT+3}, 0x00020000
s_lshl_b32 s{sT0}, s{sODD}, 1
s_add_u32 s{sT0}, s{sT0}, s{sW4}
s_and_b32 s{sT0}, s{sT0}, 3
s_lshl_b32 s{sT1}, s{sTG}, 2
s_add_u32 s{sT0}, s{sT0}, s{sT1}
s_mul_i32 s{sXM}, s{sT0}, {16 * 1152}
s_lshr_b32 s{sT1}, s{sCG}, 1
s_mul_i32 s{sT1}, s{sT1}, 288
s_add_u32 s{sXM}, s{sXM}, s{sT1}
s_add_u32 s{sXS}, s{sXM}, 128
s_cmp_gt_u32 s{sW4}, 1
s_cselect_b32 s{sXS}, 0x7f000000, s{sXS}
s_mul_i32 s{sT2}, s{sODD}, 160
s_add_u32 s{sXM}, s{sXM}, s{sT2}
v_mul_u32_u24 v{vXO}, 1152, v{t5}
v_lshrrev_b32 v{t3}, 4, v0
v_lshl_add_u32 v{vXO}, v{t3}, 3, v{vXO}
s_lshl_b32 s{sT2}, s{sW4}, 10
s_add_u32 s{sT2}, s{sT2}, {FP_OFF}
v_lshl_add_u32 v{vP0}, v0, 4, s{sT2}
v_add_u32 v{vP1}, 36864, v{vP0}
''')
    for nb in range(4):
        e.i(f'buffer_load_dwordx2 {vr(XR + 2 * nb, 2)}, v{vXO}, {sr(sX)}, s{sXM} offen offset:{nb * 32}')
    e.i(f'buffer_load_dwordx2 {vr(XR + 8, 2)}, v{vXO}, {sr(sX)}, s{sXS} offen')
    wait4('KB_FW', 1, t0, 12, 2)
    R = lambda nb, w: 156 + (nb * 4 + w) * 4
    G = lambda nb: R(nb, 0)
    R2 = lambda nb, w: 56 + (nb * 4 + w) * 4
    def red(RR):
        e.lg = []; e.lg_done = 0
        for nb in range(5):
            for w in range(4):
                e.lgop(f'ds_read_b128 {vr(RR(nb, w))}, v{vP0 if w < 2 else vP1} offset:{(w & 1) * 18432 + nb * 4096}', ('r', nb))
    def red2(RR, nb):
        e.need(lg=[('r', nb)])
        for r in range(4): e.i(f'v_add_f32 v{RR(nb, 0) + r}, v{RR(nb, 0) + r}, v{RR(nb, 1) + r}')
        for r in range(4): e.i(f'v_add_f32 v{RR(nb, 2) + r}, v{RR(nb, 2) + r}, v{RR(nb, 3) + r}')
        for r in range(4): e.i(f'v_add_f32 v{RR(nb, 0) + r}, v{RR(nb, 0) + r}, v{RR(nb, 2) + r}')
    red(R)
    for nb in range(5):
        red2(R, nb)
        for r in range(4): e.i(f'v_mul_f32 v{R(nb, 1) + r}, {f32(-LOG2E)}, v{G(nb) + r}')
        for r in range(4): e.i(f'v_exp_f32 v{R(nb, 1) + r}, v{R(nb, 1) + r}')
        for r in range(4): e.i(f'v_add_f32 v{R(nb, 1) + r}, 1.0, v{R(nb, 1) + r}')
        for r in range(4): e.i(f'v_rcp_f32 v{R(nb, 1) + r}, v{R(nb, 1) + r}')
        for r in range(4): e.i(f'v_mul_f32 v{G(nb) + r}, v{G(nb) + r}, v{R(nb, 1) + r}')
    e.i('s_waitcnt vmcnt(0)')
    for nb in range(5):
        e.i(f'v_lshlrev_b32 v{R(nb, 1)}, 16, v{XR + 2 * nb}')
        e.i(f'v_and_b32 v{R(nb, 1) + 1}, 0xffff0000, v{XR + 2 * nb}')
        e.i(f'v_lshlrev_b32 v{R(nb, 1) + 2}, 16, v{XR + 2 * nb + 1}')
        e.i(f'v_and_b32 v{R(nb, 1) + 3}, 0xffff0000, v{XR + 2 * nb + 1}')
    e.i(f'v_add_u32 v{vP0}, {(SP_OFF - FP_OFF) & 0xffffffff:#x}, v{vP0}')
    e.i(f'v_add_u32 v{vP1}, {(SP_OFF - FP_OFF) & 0xffffffff:#x}, v{vP1}')
    e.stamp()
    e.i('s_barrier')
    e.stamp()
    red(R2)
    for nb in range(5):
        red2(R2, nb)
        for r in range(4): e.i(f'v_fma_f32 v{R(nb, 1) + r}, v{R2(nb, 0) + r}, v{G(nb) + r}, v{R(nb, 1) + r}')
        e.i(f'v_cvt_pk_bf16_f32 v{R(nb, 2)}, v{R(nb, 1)}, v{R(nb, 1) + 1}')
        e.i(f'v_cvt_pk_bf16_f32 v{R(nb, 2) + 1}, v{R(nb, 1) + 2}, v{R(nb, 1) + 3}')
        if nb < 4:
            e.i(f'buffer_store_dwordx2 {vr(R(nb, 2), 2)}, v{vXO}, {sr(sOUT)}, s{sXM} offen offset:{nb * 32}')
        else:
            e.i(f'buffer_store_dwordx2 {vr(R(nb, 2), 2)}, v{vXO}, {sr(sOUT)}, s{sXS} offen')
    if STAMPS: e.drain(vm=True)
    e.stamp(); e.stamp(True)
    e.stamp_flush(sWS, sWAVE, STAMP_A)
    e.label('KB_END')
    e.i('s_endpgm')

    e.label('KB_REDO')
    e.raw(f'''
v_lshlrev_b32 v{vK1}, 4, v0
v_and_b32 v{t0}, 31, v0
v_lshlrev_b32 v{vK2}, 2, v{t0}
v_lshrrev_b32 v{t1}, 5, v0
v_mul_u32_u24 v{vV}, 288, v{t1}
v_lshl_add_u32 v{vV}, v{t0}, 4, v{vV}
s_mov_b32 s{sT0}, {KV_OFF}
''')
    for q in range(2):
        e.i(f'v_mov_b32 v{Q2[q] + 1}, 0')
        e.i(f'v_mov_b32 v{vMX[q]}, 0xff800000')
    e.label('KB_RM')
    e.raw(f'''
buffer_load_dwordx4 {vr(KF[0])}, v{vK1}, {sr(sWS)}, s{sT0} offen sc1
buffer_load_dword v{KF[0]+4}, v{vK2}, {sr(sWS)}, s{sT0} offen offset:{K2_IN} sc1
s_waitcnt vmcnt(0)
''')
    qk(0, KF[0]); qk(1, KF[0])
    e.i('s_nop 11')
    for q in range(2):
        for r in range(0, 16, 2):
            e.i(f'v_max3_f32 v{vMX[q]}, v{SB[q] + r}, v{SB[q] + r + 1}, v{vMX[q]}')
    e.raw(f'''
s_add_u32 s{sT0}, s{sT0}, {REC}
s_cmp_lt_u32 s{sT0}, {KV_OFF + 64 * REC}
s_cbranch_scc1 KB_RM
s_mov_b32 s{sT0}, {KV_OFF}
''')
    set_m(0.0)
    for r in range(32): e.i(f'v_mov_b32 v{O[0] + r}, 0')
    e.label('KB_RP')
    e.raw(f'''
buffer_load_dwordx4 {vr(KF[0])}, v{vK1}, {sr(sWS)}, s{sT0} offen sc1
buffer_load_dword v{KF[0]+4}, v{vK2}, {sr(sWS)}, s{sT0} offen offset:{K2_IN} sc1
s_mov_b64 exec, {sr(sVM, 2)}
buffer_load_dwordx4 {vr(VF[0])}, v{vV}, {sr(sWS)}, s{sT0} offen offset:{V_IN} sc1
buffer_load_dwordx4 {vr(VF[0]+4)}, v{vV}, {sr(sWS)}, s{sT0} offen offset:{V_IN + 576} sc1
s_mov_b64 exec, -1
s_waitcnt vmcnt(0)
''')
    qk(0, KF[0]); qk(1, KF[0])
    e.i('s_nop 11')
    for q in range(2):
        for r in range(16): e.i(f'v_exp_f32 v{SB[q] + r}, v{SB[q] + r}')
        for c in range(8): e.i(f'v_cvt_pk_bf16_f32 v{P + c}, v{SB[q] + 2 * c}, v{SB[q] + 2 * c + 1}')
        e.i('s_nop 1')
        e.i(f'v_mfma_f32_32x32x16_bf16 {vr(O[q], 16)}, {vr(VF[0])}, {vr(P)}, {vr(O[q], 16)}')
        e.i(f'v_mfma_f32_32x32x16_bf16 {vr(O[q], 16)}, {vr(VF[0] + 4)}, {vr(P + 4)}, {vr(O[q], 16)}')
    e.raw(f'''
s_add_u32 s{sT0}, s{sT0}, {REC}
s_cmp_lt_u32 s{sT0}, {KV_OFF + 64 * REC}
s_cbranch_scc1 KB_RP
s_nop 11
v_rcp_f32 v{t4}, v{O[0]+10}
v_rcp_f32 v{t5}, v{O[1]+10}
s_nop 0
s_branch KB_SAFE
''')
    e.lines += gemm_lines
```

```python
from emit import *
from common import *
import os
EXP = os.environ.get('EXP', '').split(',')
ENV = lambda k, d: int(os.environ.get(k, d))

SLOT = 24576
XS = 3 * SLOT
XS2 = 5 * SLOT
CST = XS2 + 32768
SCR = CST + 2560
FLG = SCR + 256
TKW = FLG + 64
KA_LDS = TKW + 16
BUF = [3, 4, 0, 1, 2, 3, 0, 1, 2]

vL16, vTA0, vTA1, vCS, vDMA, vT0 = 0, 1, 2, 3, 4, 5
vCF = 8
vXG0, vXG1, vXR0, vXR1 = 12, 13, 14, 15
vNM = [12, 13]; vC = [14, 15]; vIR2 = [6, 7]
def X(tb, ks): return 16 + (ks * 2 + tb) * 4
def ACC(buf, b, tb): return 160 + buf * 32 + (b * 2 + tb) * 4
NAF = 4
def AF(n): return 224 + (n % NAF) * 4
vONE = 240; vCA = 244
vCV = 248
MAPPING = ENV('MAPPING', 0)
DSP = ENV('DSP', 16)
RLPOS = ENV('RLPOS', 0)
NTR = ' nt'
NTW = '' if 'nontw' in EXP else ' nt'
NTX = ' nt' if 'ntx' in EXP else ''
sX, sW, sQ, sWS, sRL = 24, 28, 32, 36, 40
sWAVE, sTM, sFN, sQI = 44, 45, 46, 47
sXO = [48, 49, 50, 51]
sWM0, sWSO, sT0, sT1, sXM0, sHO, sSCALE, sT2 = 52, 53, 54, 55, 56, 57, 58, 59
sT3, sT4 = 60, 61
sRLD = 62
sHF = 63
sHA, sHB = 8, 9
sF0 = 10
vOA, vOC = 36, 37
vRF = 48
sOA, sOC = 50, 51
SWB = ENV('SWB', 0)
sTG, sCG = 4, 5
sMSK = 14
KBI = {0: 0, 1: 1, 3: 2, 4: 3}

def gen_ka(e, name):
    I = lambda s: (lambda: e.i(s))
    NOP = lambda: None
    M2 = ENV('MAP2', 0)
    MAP2 = f'''s_lshr_b32 s{sTG}, s{sT1}, {3 - M2}
s_lshr_b32 s{sT2}, s{sT0}, {M2}
s_lshl_b32 s{sT2}, s{sT2}, {2 + M2}
s_add_u32 s{sTG}, s{sTG}, s{sT2}
s_and_b32 s{sCG}, s{sT1}, {(8 >> M2) - 1}
s_and_b32 s{sT0}, s{sT0}, {(1 << M2) - 1}
s_lshl_b32 s{sT0}, s{sT0}, {3 - M2}
s_add_u32 s{sCG}, s{sCG}, s{sT0}'''
    LT = 3 - MAPPING
    e.raw(f'''
.p2align 8
.globl {name}
.type {name},@function
{name}:
{'s_memrealtime s[70:71]' if STAMPS else ''}
s_cmp_ge_u32 s2, 256
s_cbranch_scc1 KB_END
s_load_dwordx8 s[4:11], s[0:1], 0
s_load_dwordx2 s[12:13], s[0:1], 32
s_load_dwordx4 s[16:19], s[0:1], 48
s_load_dwordx2 s[20:21], s[0:1], 64
s_load_dwordx2 s[22:23], s[0:1], 88
s_load_dwordx4 s[64:67], s[0:1], 72
v_lshrrev_b32 v1, 6, v0
v_and_b32 v0, 63, v0
v_readfirstlane_b32 s{sWAVE}, v1
s_getreg_b32 s{sT0}, hwreg(HW_REG_XCC_ID)
s_and_b32 s{sT0}, s{sT0}, {0 if 'onexcd' in EXP else 7}
s_lshl_b32 s{sFN}, s{sT0}, 2
s_lshr_b32 s{sT1}, s2, 6
s_add_u32 s{sFN}, s{sFN}, s{sT1}
; x DMA source: row=l/8, pos=l%8 : row*1152 + ((pos ^ (row>>1))*16)
v_lshrrev_b32 v6, 4, v0
v_and_b32 v10, 7, v0
v_xor_b32 v6, v6, v10
v_lshrrev_b32 v10, 3, v0
v_mul_u32_u24 v{vXG0}, 1152, v10
v_lshl_add_u32 v{vXG0}, v6, 4, v{vXG0}
v_xor_b32 v{vXG1}, 64, v{vXG0}
s_mul_i32 s{sXM0}, s{sWAVE}, 10240
s_add_u32 s{sXM0}, s{sXM0}, {XS}
; pass-1 W DMA source: h=l/32, row=(l%32)/4, sigma=(l%4)^(2*(w&1)) : row*9216 + h*64 + sigma*16
s_lshl_b32 s{sT1}, s{sWAVE}, 1
s_and_b32 s{sT1}, s{sT1}, 2
v_bfe_u32 v8, v0, 2, 3
v_mul_u32_u24 v{vDMA}, 9216, v8
v_and_b32 v6, 3, v0
v_xor_b32 v6, s{sT1}, v6
v_lshl_add_u32 v{vDMA}, v6, 4, v{vDMA}
v_lshrrev_b32 v6, 5, v0
v_lshl_add_u32 v{vDMA}, v6, 6, v{vDMA}
s_and_b32 s{sT0}, s{sWAVE}, 3
s_lshr_b32 s{sT1}, s{sWAVE}, 2
s_lshl_b32 s{sWM0}, s{sT1}, 13
s_lshl_b32 s{sT1}, s{sT0}, 10
s_add_u32 s{sWM0}, s{sWM0}, s{sT1}
s_mul_i32 s{sWSO}, s{sT0}, {8*9216}
s_lshl_b32 s{sT1}, s{sFN}, 8
s_add_u32 s{sWSO}, s{sWSO}, s{sT1}
s_bfe_u32 s{sT1}, s{sFN}, {0x10000 + SWB}
s_lshl_b32 s{sT1}, s{sT1}, 7
s_add_u32 s{sWSO}, s{sWSO}, s{sT1}
s_cmp_lt_u32 s{sWAVE}, 4
s_waitcnt lgkmcnt(0)
s_cselect_b32 s{sW}, s16, s18
s_cselect_b32 s{sW+1}, s17, s19
s_mov_b32 s{sRL}, s66
s_mov_b32 s{sRL+1}, s67
s_mov_b32 s{sRL+2}, 256
s_mov_b32 s{sRL+3}, 0x00020000
s_mov_b32 s{sT3}, s{sFN}
v_mov_b32 v9, 0
s_cmp_lg_u32 s{sWAVE}, 0
s_cbranch_scc1 KA_NOTK
s_mov_b64 exec, 1
s_and_b32 s{sT0}, s{sT3}, 1
s_lshl_b32 s{sT0}, s{sT0}, 7
s_lshr_b32 s{sT1}, s{sT3}, 1
s_lshl_b32 s{sT1}, s{sT1}, 2
s_add_u32 s{sT0}, s{sT0}, s{sT1}
v_mov_b32 v7, 1
buffer_atomic_add v7, v9, {sr(sRL)}, s{sT0} offen offset:4 sc0 sc1
s_mov_b64 exec, -1
KA_NOTK:
s_mov_b32 s{sX}, s4
s_mov_b32 s{sX+1}, s5
s_mov_b32 s{sX+2}, {2048*1152}
s_mov_b32 s{sX+3}, 0x00020000
s_mov_b32 s{sW+2}, {576*9216}
s_mov_b32 s{sW+3}, 0x00020000
s_mov_b32 s{sWS}, s22
s_mov_b32 s{sWS+1}, s23
s_mov_b32 s{sWS+2}, {WS_BYTES}
s_mov_b32 s{sWS+3}, 0x00020000
''')
    if STAMPS: e.nstamp = 1
    e.stamp(True)
    def xdma(pi):
        cgp, tb = divmod(pi, 2)
        items = []
        for h in range(2):
            def f(h=h):
                if pi >= 5 and h == 0:
                    pc, pt = divmod(pi - 5, 2)
                    e.need(lg=[('xf', pt, 2 * pc + 1)])
                e.i(f's_add_u32 m0, s{sXM0}, {(pi % 5) * 2048 + h * 1024 - cgp * 128}')
                e.i('s_nop 0')
                e.vmop(f'buffer_load_dwordx4 v{vXG1 if h else vXG0}, {sr(sX)}, s{sXO[2 * tb + h]} offen offset:{cgp * 128}{NTX} lds', ('x', pi))
            items.append(f)
        return items
    def wdma1(j):
        items = []
        for i in range(2):
            def f(i=i):
                e.i(f's_add_u32 m0, s{sWM0}, {(j % 4) * 16384 + i * 4096}')
                e.i(f's_add_u32 s{sT2}, s{sWSO}, {(64 * j + 32 * i) * 9216}')
                e.vmop(f'buffer_load_dwordx4 v{vDMA}, {sr(sW)}, s{sT2} offen{NTW} lds', ('Wp', j))
            items.append(f)
        return items
    XT = ENV('XT', 3)
    e.raw(f'''
s_lshl_b32 s{sT0}, s2, 3
s_add_u32 s{sT0}, s{sT0}, s{sWAVE}
s_mul_i32 s{sT2}, s{sT0}, 1152
v_lshlrev_b32 v6, 7, v0
s_mov_b32 m0, {SCR}
s_mov_b64 exec, {(1 << XT) - 1}
buffer_load_dword v6, {sr(sX)}, s{sT2} offen lds
s_mov_b64 exec, -1
''')
    for it in wdma1(0) + wdma1(1): it()
    late_setup_mark = len(e.lines)
    def after_ticket():
        e.raw(f'''
s_cmp_lg_u32 s{sWAVE}, 0
s_cbranch_scc1 KA_NOTK2
s_waitcnt vmcnt(5)
s_mov_b64 exec, 1
KA_TKL:
v_readfirstlane_b32 s{sT2}, v7
s_cmp_lt_u32 s{sT2}, 8
s_cbranch_scc1 KA_TKOK
s_add_u32 s{sT3}, s{sT3}, 1
s_and_b32 s{sT3}, s{sT3}, 31
s_and_b32 s{sT0}, s{sT3}, 1
s_lshl_b32 s{sT0}, s{sT0}, 7
s_lshr_b32 s{sT1}, s{sT3}, 1
s_lshl_b32 s{sT1}, s{sT1}, 2
s_add_u32 s{sT0}, s{sT0}, s{sT1}
v_mov_b32 v7, 1
buffer_atomic_add v7, v9, {sr(sRL)}, s{sT0} offen offset:4 sc0 sc1
s_waitcnt vmcnt(0)
s_branch KA_TKL
KA_TKOK:
s_lshl_b32 s{sT2}, s{sT2}, 5
s_add_u32 s{sT2}, s{sT2}, s{sT3}
v_mov_b32 v7, s{sT2}
ds_write_b32 v10, v7
s_waitcnt lgkmcnt(0)
s_mov_b64 exec, -1
KA_NOTK2:
s_barrier
ds_read_b32 v7, v10
s_waitcnt lgkmcnt(0)
v_readfirstlane_b32 s{sT2}, v7
s_lshr_b32 s{sTM}, s{sT2}, 5
s_and_b32 s{sT2}, s{sT2}, 31
s_cmp_eq_u32 s{sT2}, s{sFN}
s_cbranch_scc1 KA_FNOK
s_mov_b32 s{sFN}, s{sT2}
s_and_b32 s{sT0}, s{sWAVE}, 3
s_mul_i32 s{sWSO}, s{sT0}, {8*9216}
s_lshl_b32 s{sT1}, s{sFN}, 8
s_add_u32 s{sWSO}, s{sWSO}, s{sT1}
s_bfe_u32 s{sT1}, s{sFN}, {0x10000 + SWB}
s_lshl_b32 s{sT1}, s{sT1}, 7
s_add_u32 s{sWSO}, s{sWSO}, s{sT1}
s_waitcnt vmcnt(0)
''')
        sv = list(e.vm)
        for it in wdma1(0) + wdma1(1): it()
        e.vm = sv
        e.raw(f'''
KA_FNOK:
s_lshl_b32 s{sT0}, s{sTM}, 3
s_add_u32 s{sT0}, s{sT0}, s{sWAVE}
s_mul_i32 s{sXO[0]}, s{sT0}, {32*1152}
s_add_u32 s{sXO[1]}, s{sXO[0]}, {8*1152}
s_add_u32 s{sXO[2]}, s{sXO[0]}, {16*1152}
s_add_u32 s{sXO[3]}, s{sXO[0]}, {24*1152}
''')
        if 'pst' in EXP: e.stamp()
        for pi in range(4):
            for it in xdma(pi): it()
        if 'pst' in EXP: e.stamp()
    e.raw(f'''
s_mov_b32 s{sMSK}, 0x33333333
s_mov_b32 s{sMSK+1}, 0xcccccccc
s_cmp_lt_u32 s{sWAVE}, 4
s_cbranch_scc1 KA_MSK
s_not_b64 {sr(sMSK, 2)}, {sr(sMSK, 2)}
{'s_setprio 1' if 'prio' in EXP else ''}
KA_MSK:
{'s_setprio 1' if 'prioall' in EXP else ''}
; pass-1 tr-read base: g=l/16,i=l%16: g*1024 + (g&1)*32 + (i/4)*64 + (i%4)*8
v_lshrrev_b32 v6, 4, v0
v_lshlrev_b32 v{vTA0}, 10, v6
v_and_b32 v6, 1, v6
v_lshl_add_u32 v{vTA0}, v6, 5, v{vTA0}
v_bfe_u32 v6, v0, 2, 2
v_lshl_add_u32 v{vTA0}, v6, 6, v{vTA0}
v_and_b32 v6, 3, v0
v_lshl_add_u32 v{vTA0}, v6, 3, v{vTA0}
v_xor_b32 v{vTA1}, 32, v{vTA0}
s_and_b32 s{sT0}, s{sWAVE}, 1
s_lshl_b32 s{sT0}, s{sT0}, 5
v_xor_b32 v{vCS}, s{sT0}, v{vTA0}
s_bfe_u32 s{sT0}, s{sWAVE}, 0x10001
s_lshl_b32 s{sT0}, s{sT0}, 13
s_lshr_b32 s{sT1}, s{sWAVE}, 2
s_lshl_b32 s{sT1}, s{sT1}, 9
s_add_u32 s{sT0}, s{sT0}, s{sT1}
v_add_u32 v{vCS}, s{sT0}, v{vCS}
; x staging read addr: t=l%16, kg=l/16: base + t*128 + ((kg ^ (t>>1))*16)
v_bfe_u32 v6, v0, 1, 3
v_lshrrev_b32 v10, 4, v0
v_xor_b32 v6, v6, v10
v_lshlrev_b32 v6, 4, v6
v_and_b32 v10, 15, v0
v_lshl_add_u32 v6, v10, 7, v6
v_add_u32 v{vXR0}, s{sXM0}, v6
v_xor_b32 v{vXR1}, 64, v{vXR0}
v_mov_b32 v{vONE}, 0x3f803f80
v_mov_b32 v{vONE+1}, 0x3f803f80
v_mov_b32 v{vONE+2}, 0x3f803f80
v_mov_b32 v{vONE+3}, 0x3f803f80
v_mov_b32 v10, {TKW}
''')
    after_ticket()
    e.raw(f'''
s_and_b32 s{sT1}, s{sFN}, 3
s_lshl_b32 s{sQI}, s{sT1}, 3
s_lshr_b32 s{sT1}, s{sFN}, 2
s_xor_b32 s{sT1}, s{sT1}, 4
s_add_u32 s{sQI}, s{sQI}, s{sT1}
; H store base: ((tg*144)*4 + 2*(w%2))*1024, tg = (8tm+w)/2
s_lshl_b32 s{sT0}, s{sTM}, 3
s_add_u32 s{sT0}, s{sT0}, s{sWAVE}
s_lshr_b32 s{sT1}, s{sT0}, 1
s_mul_i32 s{sHO}, s{sT1}, {144*4096}
s_and_b32 s{sT1}, s{sWAVE}, 1
s_lshl_b32 s{sT1}, s{sT1}, 11
s_add_u32 s{sHO}, s{sHO}, s{sT1}
s_mov_b32 s{sQ}, s6
s_mov_b32 s{sQ+1}, s7
s_mov_b32 s{sQ+2}, {576*1152}
s_mov_b32 s{sQ+3}, 0x00020000
s_mov_b32 s{sSCALE}, {f32(-QSCALE / LOG2E)}
s_cmp_lt_u32 s{sQI}, 18
s_cbranch_scc1 KA_ROLE_DONE
s_mov_b32 s{sSCALE}, {f32(-1.0 / LOG2E)}
s_mov_b32 s{sQ+2}, 0
s_cmp_gt_u32 s{sQI}, 19
s_cbranch_scc1 KA_ROLE_DONE
s_cmp_eq_u32 s{sQI}, 18
s_cselect_b32 s{sQ}, s8, s10
s_cselect_b32 s{sQ+1}, s9, s11
s_mov_b32 s{sQ+2}, {576*36}
KA_ROLE_DONE:
s_lshr_b32 s{sT2}, s{sT0}, 1
s_lshl_b32 s{sHF}, s{sT2}, 8
s_lshl_b32 s{sT2}, s{sFN}, 3
s_add_u32 s{sHF}, s{sHF}, s{sT2}
s_lshr_b32 s{sT1}, s{sT1}, 9
s_add_u32 s{sHF}, s{sHF}, s{sT1}
s_add_u32 s{sHF}, s{sHF}, {HF_OFF}
s_lshl_b32 s{sT2}, s{sFN}, 14
s_add_u32 s{sHA}, s{sHO}, s{sT2}
s_bfe_u32 s{sT1}, s{sFN}, {0x10000 + SWB}
s_lshl_b32 s{sT1}, s{sT1}, 13
s_sub_u32 s{sHB}, s{sHA}, s{sT1}
s_add_u32 s{sHA}, s{sHA}, s{sT1}
s_lshr_b32 s{sTG}, s{sTM}, 1
s_and_b32 s{sT0}, s{sFN}, 28
s_add_u32 s{sTG}, s{sTG}, s{sT0}
s_and_b32 s{sCG}, s{sTM}, 1
s_lshl_b32 s{sCG}, s{sCG}, 2
s_and_b32 s{sT0}, s{sFN}, 3
s_add_u32 s{sCG}, s{sCG}, s{sT0}
s_mov_b32 s{sF0}, 0xf0
s_cmp_lg_u32 s2, 0
s_cbranch_scc1 KA_NOZ
s_mul_i32 s{sT0}, s{sWAVE}, 3072
s_add_u32 s{sT0}, s{sT0}, {FLAG_OFF}
v_lshlrev_b32 v6, 4, v0
v_mov_b32 v8, 0
v_mov_b32 v9, 0
v_mov_b32 v10, 0
v_mov_b32 v11, 0
buffer_store_dwordx4 v[8:11], v6, {sr(sWS)}, s{sT0} offen sc1
buffer_store_dwordx4 v[8:11], v6, {sr(sWS)}, s{sT0} offen offset:1024 sc1
buffer_store_dwordx4 v[8:11], v6, {sr(sWS)}, s{sT0} offen offset:2048 sc1
KA_NOZ:
v_lshlrev_b32 v{vL16}, 4, v0
''')

    def o_init():
        e.raw(f'''
s_mul_i32 s{sT0}, s2, 9216
s_lshl_b32 s{sT1}, s{sWAVE}, 10
s_add_u32 s{sT0}, s{sT0}, s{sT1}
s_add_u32 s{sT0}, s{sT0}, {O_OFF}
v_mov_b32 v{ACC(1, 3, 1)}, -1
v_mov_b32 v{ACC(1, 3, 1)+1}, -1
v_mov_b32 v{ACC(1, 3, 1)+2}, -1
v_mov_b32 v{ACC(1, 3, 1)+3}, -1
s_cmp_lg_u32 s{sWAVE}, 7
buffer_store_dwordx4 {vr(ACC(1, 3, 1))}, v{vL16}, {sr(sWS)}, s{sT0} offen sc1
s_cbranch_scc1 KA_NOO
buffer_store_dwordx4 {vr(ACC(1, 3, 1))}, v{vL16}, {sr(sWS)}, s{sT0} offen offset:1024 sc1
KA_NOO:
''')
        e.vmcount(1, 'oi')
    o_init()
    def touch(srd, nl, vmul, soff_code):
        e.raw(soff_code)
        e.i(f'v_mul_u32_u24 v{vT0}, {vmul}, v{vL16}')
        e.i(f's_mov_b32 m0, {SCR}')
        e.i(f's_mov_b64 exec, {(1 << nl) - 1:#x}')
        e.vmop(f'buffer_load_dword v{vT0}, {sr(srd)}, s{sT2} offen lds')
        e.i('s_mov_b64 exec, -1')
    GP = f'''
s_lshl_b32 s{sT0}, s2, 2
s_and_b32 s{sT1}, s{sWAVE}, 3
s_add_u32 s{sT0}, s{sT0}, s{sT1}
'''
    def t_x(c0=2):
        touch(sX, 9 - c0, 8, f'''
s_lshl_b32 s{sT0}, s2, 3
s_add_u32 s{sT0}, s{sT0}, s{sWAVE}
s_mul_i32 s{sT2}, s{sT0}, 1152
s_add_u32 s{sT2}, s{sT2}, {c0 * 128}
''')
    def t_w(row0, line):
        touch(sW, (576 - row0) // 32, 2 * 9216, GP + f'''
s_lshr_b32 s{sT1}, s{sT0}, 5
s_mul_i32 s{sT2}, s{sT1}, 9216
s_and_b32 s{sT1}, s{sT0}, 31
s_lshl_b32 s{sT1}, s{sT1}, 8
s_add_u32 s{sT2}, s{sT2}, s{sT1}
s_add_u32 s{sT2}, s{sT2}, {row0 * 9216 + line * 128}
''')
    def t_rem():
        touch(sW, 5, 8 * 9216, GP + f'''
s_lshr_b32 s{sT1}, s{sT0}, 3
s_mul_i32 s{sT2}, s{sT1}, 9216
s_and_b32 s{sT1}, s{sT0}, 7
s_lshl_b32 s{sT1}, s{sT1}, 7
s_add_u32 s{sT2}, s{sT2}, s{sT1}
s_add_u32 s{sT2}, s{sT2}, 8192
''')
    def t_q():
        touch(sRL, 3, 16384, f'''
s_mov_b32 s{sRL}, s6
s_mov_b32 s{sRL+1}, s7
s_mov_b32 s{sRL+2}, {576*1152}
s_mov_b32 s{sRL+3}, 0x00020000
s_lshl_b32 s{sT0}, s2, 3
s_add_u32 s{sT0}, s{sT0}, s{sWAVE}
s_lshl_b32 s{sT2}, s{sT0}, 7
''')
    if 'pf1' in EXP:
        t_x(); t_w(128, 0)
    def dma_reconf():
        e.raw(f'''
v_lshrrev_b32 v{vT0}, 6, v{vL16}
v_mul_u32_u24 v{vDMA}, 9216, v{vT0}
v_lshrrev_b32 v{vT0}, 4, v{vL16}
v_xor_b32 v{vT0}, v{vT0}, v{vL16}
v_and_b32 v{vT0}, 0x20, v{vT0}
v_add_u32 v{vDMA}, v{vDMA}, v{vT0}
v_and_b32 v{vT0}, 0x10, v{vL16}
v_add_u32 v{vDMA}, v{vDMA}, v{vT0}
s_and_b32 s{sT0}, s{sWAVE}, 3
s_lshr_b32 s{sT1}, s{sWAVE}, 2
s_mul_i32 s{sWM0}, s{sT1}, 12288
s_lshl_b32 s{sT1}, s{sT0}, 10
s_add_u32 s{sWM0}, s{sWM0}, s{sT1}
s_mul_i32 s{sWSO}, s{sT0}, {16*9216}
s_lshl_b32 s{sT1}, s{sFN}, 8
s_add_u32 s{sWSO}, s{sWSO}, s{sT1}
s_bfe_u32 s{sT1}, s{sFN}, {0x10000 + SWB}
s_lshl_b32 s{sT1}, s{sT1}, 7
s_sub_u32 s{sWSO}, s{sWSO}, s{sT1}
''')
    def dma_slot(p):
        c, ph = divmod(p, 3)
        base = BUF[p] * SLOT
        items = []
        if c >= 1:
            for i in range(3):
                def f(i=i):
                    e.i(f's_add_u32 m0, s{sWM0}, {base + i * 4096}')
                    e.i(f's_add_u32 s{sT2}, s{sWSO}, {(192 * ph + 64 * i) * 9216 + 64 * (c + 1)}')
                    e.vmop(f'buffer_load_dwordx4 v{vDMA}, {sr(sW)}, s{sT2} offen lds', ('W', p))
                items.append(f)
            return items
        for i in range(3):
            def f(i=i):
                e.raw(f'''
s_and_b32 s{sT0}, s{sWAVE}, 3
s_mul_i32 s{sT2}, s{sT0}, {16*9216}
s_lshl_b32 s{sT1}, s{sFN}, 5
s_add_u32 s{sT2}, s{sT2}, s{sT1}
s_add_u32 s{sT2}, s{sT2}, {(192 * ph + 64 * i) * 9216 + 8192}
s_lshl_b32 s{sT0}, s{sT0}, 10
s_add_u32 m0, s{sT0}, {base + i * 4096}
v_and_b32 v{vT0}, 0xffffffdf, v{vDMA}
s_mov_b64 exec, {sr(sMSK, 2)}
''')
                e.vmop(f'buffer_load_dwordx4 v{vT0}, {sr(sW)}, s{sT2} offen lds', ('W', p))
                e.i('s_mov_b64 exec, -1')
            items.append(f)
        def g():
            e.raw(f'''
s_cmp_eq_u32 s{sQ+2}, {576*36}
s_cbranch_scc1 KA_S{p}K
{'s_cmp_eq_u32 s%d, 0' % (sQ+2) if 'skipq' in EXP else ''}
{'s_cbranch_scc1 KA_S%dE' % p if 'skipq' in EXP else ''}
v_lshrrev_b32 v{vT0}, 6, v{vL16}
v_mul_u32_u24 v{vT0}, 1152, v{vT0}
v_and_or_b32 v{vT0}, v{vDMA}, 48, v{vT0}
s_mul_i32 s{sT2}, s{sWAVE}, {16*1152}
s_lshl_b32 s{sT1}, s{sQI}, 6
s_add_u32 s{sT2}, s{sT2}, s{sT1}
s_add_u32 s{sT2}, s{sT2}, {192 * ph * 1152}
s_lshl_b32 s{sT0}, s{sWAVE}, 10
s_add_u32 m0, s{sT0}, {base + 12288}
s_cmp_gt_u32 s{sWAVE}, 3
buffer_load_dwordx4 v{vT0}, {sr(sQ)}, s{sT2} offen lds
s_cbranch_scc1 KA_S{p}E
s_add_u32 m0, s{sT0}, {base + 12288 + 8192}
s_add_u32 s{sT2}, s{sT2}, {128 * 1152}
buffer_load_dwordx4 v{vT0}, {sr(sQ)}, s{sT2} offen lds
s_branch KA_S{p}E
KA_S{p}K:
s_lshl_b32 s{sT1}, s{sWAVE}, 4
s_and_b32 s{sT1}, s{sT1}, 32
v_lshrrev_b32 v{vT0}, 2, v{vL16}
v_and_b32 v{vT0}, 60, v{vT0}
v_xor_b32 v{vT0}, s{sT1}, v{vT0}
v_cmp_gt_u32 vcc, 36, v{vT0}
v_mov_b32 v7, 0x7fffff00
s_mul_i32 s{sT3}, s{sWAVE}, 144
v_cndmask_b32 v{vT0}, v7, v{vT0}, vcc
v_lshrrev_b32 v7, 8, v{vL16}
v_mad_u32_u24 v{vT0}, v7, 36, v{vT0}
s_lshl_b32 s{sT0}, s{sWAVE}, 8
''')
            for i in range(6):
                e.i(f's_add_u32 m0, s{sT0}, {base + 12288 + i * 2048}')
                e.i(f's_add_u32 s{sT2}, s{sT3}, {(6 * ph + i) * 8 * 144}')
                e.i(f'buffer_load_dword v{vT0}, {sr(sQ)}, s{sT2} offen lds')
            e.label(f'KA_S{p}E')
            if 'skipq' not in EXP: e.vmcount(1, ('W', p))
        items.insert(0, g)
        return items

    FR = []
    for j in range(9):
        for ksl in range(2):
            for h in range(2):
                for b in range(4):
                    FR.append((h, b, 2 * j + ksl, b & 1, (j % 4) * 16384 + (b >> 1) * 8192 + ksl * 4096 + h * 512))
    for p in range(6):
        for ksl in range(6):
            for b in range(4):
                FR.append((2 + p // 3, b, 6 * (p % 3) + ksl, b & 1, BUF[p] * SLOT + (b >> 1) * 12288 + ksl * 2048))
    for u in range(2):
        for p in (6, 7, 8):
            for ksl in range(6):
                for mat in range(2):
                    FR.append((4, 2 * mat + u, 6 * (p % 3) + ksl, u, BUF[p] * SLOT + mat * 12288 + ksl * 2048))
    NS = 720
    sched = [[] for _ in range(NS + 1)]
    pre = [[] for _ in range(361)]
    def place(items, a, b):
        n = len(items)
        for k, it in enumerate(items):
            sched[a + (k * (b - a)) // n].append(it)

    def xread(pi):
        cgp, tb = divmod(pi, 2)
        def r0():
            if 'wst' in EXP and pi in (8, 10): e.stamp()
            e.need(vm=[('x', pi)])
            if 'wst' in EXP and pi in (8, 10): e.stamp()
            e.lgop(f'ds_read_b128 {vr(X(tb, 2 * cgp))}, v{vXR0} offset:{(pi % 5) * 2048}', ('xf', tb, 2 * cgp))
        def r1(): e.lgop(f'ds_read_b128 {vr(X(tb, 2 * cgp + 1))}, v{vXR1} offset:{(pi % 5) * 2048}', ('xf', tb, 2 * cgp + 1))
        return [r0, r1]
    XRP = ENV('XRP', 18)
    for cgp in range(1, 9):
        place(xread(2 * cgp) + xread(2 * cgp + 1), 32 * (cgp - 1) + XRP, 32 * (cgp - 1) + XRP + 4)
    place(xdma(4) + wdma1(2), 0, 8)
    place(xdma(5) + xdma(6), 8, 16)
    for cgp in range(1, 7):
        its = xdma(2 * cgp + 5) + (xdma(2 * cgp + 6) if cgp < 6 else [])
        place(its, 32 * (cgp - 1) + XRP + 8, 32 * (cgp - 1) + XRP + 24)
    place(wdma1(3), 16, 24)
    for j in range(4, 9):
        jj = j - 3 if 'lead3' in EXP else j - 2
        place(wdma1(j), 32 * jj - 4, 32 * jj + 8)
    sched[32 * 7 + 2].append(dma_reconf)
    if 'nopf2' not in EXP:
        P2 = ENV('PF2', 80)
        sched[P2].append(t_rem); sched[P2 + 40].append(t_q)
        def t_kv():
            e.i(f's_cmp_lg_u32 s{sQ+2}, {576*36}')
            e.i('s_cbranch_scc1 KA_NOTKV')
            touch(sQ, 21, 8, f's_mul_i32 s{sT2}, s{sWAVE}, {21 * 128}')
            e.vm.pop()
            e.label('KA_NOTKV')
        sched[P2 + 70].append(t_kv)
        NTC = ENV('NTC', 2)
        assert MAPPING == 0
        for k in range(NTC):
            n_ = 18 // NTC
            def t_c(k=k, n_=n_):
                touch(sW, n_, 576, f'''
s_mul_i32 s{sT0}, s{sTM}, 72
s_and_b32 s{sT1}, s{sWAVE}, 3
s_mul_i32 s{sT1}, s{sT1}, 18
s_add_u32 s{sT0}, s{sT0}, s{sT1}
s_mul_i32 s{sT2}, s{sT0}, 9216
s_lshl_b32 s{sT1}, s{sFN}, 8
s_add_u32 s{sT2}, s{sT2}, s{sT1}
s_bfe_u32 s{sT1}, s{sFN}, {0x10000 + SWB}
s_lshl_b32 s{sT1}, s{sT1}, 7
s_sub_u32 s{sT2}, s{sT2}, s{sT1}
s_add_u32 s{sT2}, s{sT2}, {128 + k * n_ * 9216}
''')
            sched[ENV('TC0', 200) + k * ENV('TCS', 30)].append(t_c)

    SX = [vCV, vCF]; SG = [vCV + 4, vCA]
    def stat_mm(tb, ks):
        return [I(f'v_mfma_f32_16x16x32_bf16 {vr(SX[tb])}, {vr(vONE)}, {vr(X(tb, ks))}, {0 if ks == 0 else vr(SX[tb])}'),
                I(f'v_mfma_f32_16x16x32_bf16 {vr(SG[tb])}, {vr(X(tb, ks))}, {vr(X(tb, ks))}, {0 if ks == 0 else vr(SG[tb])}')]
    for ks in range(18):
        a, b = stat_mm(0, ks)
        sched[16 * ks + 2].append(a); sched[16 * ks + 6].append(b)
    def stat_fin(tb):
        T0, T1 = vC[tb], vIR2[tb]
        fin = [I(f'v_mul_f32 v{vNM[tb]}, {f32(-1.0/576)}, v{SX[tb]}')]
        for r in range(4):
            m = sum(1 << (20 * g + r) for g in range(4))
            def f(r=r, m=m):
                e.i(f's_mov_b32 vcc_lo, {m & 0xffffffff:#x}')
                e.i(f's_mov_b32 vcc_hi, {m >> 32:#x}')
                e.i(f'v_cndmask_b32 v{T0}, {0 if r == 0 else "v%d" % T0}, v{SG[tb] + r}, vcc')
            fin.append(f)
        for swap in ('v_permlane32_swap_b32', 'v_permlane16_swap_b32'):
            fin += [I(f'v_mov_b32 v{T1}, v{T0}'), I('s_nop 1'), I(f'{swap} v{T1}, v{T0}'), I('s_nop 1'), I(f'v_add_f32 v{T0}, v{T1}, v{T0}')]
        fin += [I(f'v_mul_f32 v{T1}, v{vNM[tb]}, v{vNM[tb]}'), I(f'v_mul_f32 v{T0}, {f32(1.0/576)}, v{T0}'),
                I(f'v_sub_f32 v{T0}, v{T0}, v{T1}'), I(f'v_max_f32 v{T0}, 0, v{T0}'), I(f'v_add_f32 v{T1}, {f32(1e-5)}, v{T0}'),
                I(f'v_rsq_f32 v{T0}, v{T1}'), I('s_nop 0'), I(f'v_mul_f32 v{T0}, {f32(-LOG2E)}, v{T0}')]
        return fin
    place(stat_fin(0), 282, 288)

    def cs_rd(tag, off):
        def rd():
            e.lgop(f'ds_read_b64_tr_b16 {vr(vCF, 2)}, v{vCS} offset:{off}')
            e.lgop(f'ds_read_b64_tr_b16 {vr(vCF + 2, 2)}, v{vCS} offset:{off + 256}', ('cf', tag))
        return rd
    def cs_mm(tag, first):
        def d():
            e.need(lg=[('cf', tag)])
            e.i(f'v_mfma_f32_16x16x32_bf16 {vr(vCA)}, {vr(vONE)}, {vr(vCF)}, {0 if first else vr(vCA)}')
        return d
    def cs_wr(c):
        def ad():
            e.i(f'v_lshrrev_b32 v{vT0}, 2, v{vL16}')
            e.i(f's_lshl_b32 s{sT0}, s{sWAVE}, 6')
            e.i(f's_add_u32 s{sT0}, s{sT0}, {CST + c * 512}')
            e.i(f'v_add_u32 v{vT0}, s{sT0}, v{vT0}')
            e.i(f's_mov_b64 exec, 0xffff')
            e.lgop(f'ds_write_b32 v{vT0}, v{vCA}', ('cswr', c))
            e.i(f's_mov_b64 exec, -1')
        return ad
    for j in range(9):
        for ksl in range(2):
            t = 32 * j + 1 + (8 if j < 8 else 5) * ksl
            sched[t].append(cs_rd(('p', j, ksl), (j % 4) * 16384 + ksl * 4096))
            sched[t + 4].append(cs_mm(('p', j, ksl), j == 0 and ksl == 0))
    sched[32 * 8 + 16].append(cs_wr(0))
    def cs_move(p):
        d = (BUF[p] - BUF[p - 1]) * SLOT
        return I(f'v_add_u32 v{vCS}, {d & 0xffffffff:#x}, v{vCS}')
    for p in range(6):
        s0 = 288 + 48 * p
        if p: sched[s0].append(cs_move(p))
        for i in range(3):
            sched[s0 + 11 + 6 * i].append(cs_rd((p, i), i * 2048))
            sched[s0 + 16 + 6 * i].append(cs_mm((p, i), p % 3 == 0 and i == 0))
        if p % 3 == 2: sched[s0 + 34].append(cs_wr(2 + p // 3))
    t = 576 + 10
    for p in (6, 7, 8):
        sched[t - 1].append(cs_move(p))
        for i in range(3):
            sched[t].append(cs_rd((p, i), i * 2048)); sched[t + 4].append(cs_mm((p, i), p == 6 and i == 0)); t += 5
    sched[t + 5].append(cs_wr(4))

    def dbg_srd():
        e.raw(f'''
s_mov_b32 s{sRL}, s66
s_mov_b32 s{sRL+1}, s67
s_mov_b32 s{sRL+2}, 256
s_mov_b32 s{sRL+3}, 0x00020000
''')
    def z_set():
        e.raw(f'''
s_lshl_b32 s{sT0}, s2, 3
s_add_u32 s{sT0}, s{sT0}, s{sWAVE}
s_cmp_lg_u32 s{sT0}, 0
s_cbranch_scc1 KA_NOZS
''')
        dbg_srd()
        e.raw(f'''
v_mov_b32 v{vT0}, 1
s_mov_b64 exec, 1
buffer_store_dword v{vT0}, v{vL16}, {sr(sRL)}, 0 offen sc1
s_mov_b64 exec, -1
KA_NOZS:
''')
    sched[61].append(z_set)
    def spin(lbl, dst, load, tag):
        e.need(vm=[tag])
        e.raw(f'''
s_mov_b32 s{sT3}, 0x40000
{lbl}:
v_cmp_ne_u32 vcc, 1, v{dst}
s_cmp_eq_u64 vcc, 0
s_cbranch_scc1 {lbl}_OK
s_sleep {ENV('SLP', 32)}
{load}
s_waitcnt vmcnt(0)
s_sub_u32 s{sT3}, s{sT3}, 1
s_cmp_lg_u32 s{sT3}, 0
s_cbranch_scc1 {lbl}
{lbl}_OK:
''')
    ZR = ACC(1, 2, 0)
    z_ld = f'buffer_load_dword v{ZR}, v{ZR+1}, {sr(sRL)}, 0 offen sc1'
    def z_load():
        dbg_srd()
        e.i(f'v_mov_b32 v{ZR+1}, 0')
        e.vmop(z_ld, 'z')
    if 'noz' not in EXP: sched[350].append(z_load)
    if 'noz' not in EXP: sched[410].append(lambda: spin('KA_ZS', ZR, z_ld, 'z'))
    marks = {}
    def e_set(off=EF_OFF, lbl='KA_NOES'):
        e.raw(f'''
s_cmp_lg_u32 s{sWAVE}, 0
s_cbranch_scc1 {lbl}
s_lshl_b32 s{sT0}, s2, 2
s_add_u32 s{sT0}, s{sT0}, {off}
v_mov_b32 v{vT0}, 1
s_mov_b64 exec, 1
buffer_store_dword v{vT0}, v{vL16}, {sr(sWS)}, s{sT0} offen sc1
s_mov_b64 exec, -1
{lbl}:
''')
    ER = ACC(0, 1, 0)
    e_ld = f'buffer_load_dword v{ER}, v{ER+1}, {sr(sWS)}, s{sT4} offen sc1'
    def e_load():
        e.i(f's_lshl_b32 s{sT4}, s{sWAVE}, 7')
        e.i(f's_add_u32 s{sT4}, s{sT4}, {EF_OFF}')
        e.i(f'v_lshrrev_b32 v{ER+1}, 2, v{vL16}')
        e.i(f'v_and_b32 v{ER+1}, 0x7c, v{ER+1}')
        e.vmop(e_ld, 'e')
    sched[ENV('ELD', 618)].append(e_load)
    sched[644].append(lambda: spin('KA_ES', ER, e_ld, 'e'))
    def kvdma(i):
        def f():
            e.i(f's_lshl_b32 s{sT0}, s{sWAVE}, 10')
            e.i(f's_add_u32 m0, s{sT0}, {KVL0 + i * 8192}')
            e.i(f's_add_u32 s{sT2}, s{sT0}, {KV_OFF + i * 8192}')
            e.vmop(f'buffer_load_dwordx4 v{vL16}, {sr(sWS)}, s{sT2} offen sc1 lds', 'kv')
        return f
    place([kvdma(i) for i in range(9)], 648, 700)
    def qpiece(r):
        t0, t1, t2, t3 = X(0, 2), X(0, 2) + 1, X(0, 2) + 2, X(0, 2) + 3
        def f():
            e.raw(f'''
s_cmp_lt_u32 s{sWAVE}, 4
s_cbranch_scc1 KA_NOQ{r}
s_lshl_b32 s{sT0}, s{sCG}, 2
s_and_b32 s{sT1}, s{sWAVE}, 3
s_add_u32 s{sT0}, s{sT0}, s{sT1}
s_mul_i32 s{sT0}, s{sT0}, 18
s_add_u32 s{sT0}, s{sT0}, {4 * r}
s_lshl_b32 s{sT1}, s{sTG}, 12
s_add_u32 s{sT1}, s{sT1}, {Q_OFF}
v_and_b32 v{t0}, 0x1f0, v{vL16}
v_lshlrev_b32 v{t0}, 2, v{t0}
v_lshrrev_b32 v{t1}, 6, v{vL16}
v_and_b32 v{t1}, 8, v{t1}
v_add_u32 v{t1}, s{sT0}, v{t1}
v_lshrrev_b32 v{t2}, 5, v{t1}
v_lshl_add_u32 v{t2}, v{t2}, 17, v{t0}
v_and_b32 v{t3}, 12, v{t1}
v_lshl_add_u32 v{t2}, v{t3}, 2, v{t2}
v_bfe_u32 v{t3}, v{t1}, 4, 1
v_lshl_add_u32 v{t2}, v{t3}, 3, v{t2}
buffer_load_dwordx2 {vr(16 + 2 * r, 2)}, v{t2}, {sr(sWS)}, s{sT1} offen sc1
buffer_load_dwordx2 {vr(24 + 2 * r, 2)}, v{t2}, {sr(sWS)}, s{sT1} offen offset:2048 sc1
KA_NOQ{r}:
''')
        return f
    for r in range(3): sched[662 + 10 * r].append(qpiece(r))
    def qload():
        t0, t1, t2, t3 = X(0, 2), X(0, 2) + 1, X(0, 2) + 2, X(0, 2) + 3
        e.raw(f'''
s_cmp_lt_u32 s{sWAVE}, 4
s_cbranch_scc1 KA_NOQ
''')
        e.raw(f'''
s_mul_i32 s{sT0}, s{sCG}, 9
s_and_b32 s{sT2}, s{sWAVE}, 3
s_lshl_b32 s{sT1}, s{sT2}, 1
s_add_u32 s{sT1}, s{sT1}, s{sT0}
v_lshrrev_b32 v{t2}, 9, v{vL16}
v_add_u32 v{t3}, s{sT1}, v{t2}
v_lshrrev_b32 v{vOA}, 2, v{t3}
v_lshlrev_b32 v{vOA}, 12, v{vOA}
v_and_b32 v{t3}, 3, v{t3}
v_lshl_add_u32 v{vOA}, v{t3}, 8, v{vOA}
v_and_b32 v{t3}, 0x100, v{vL16}
v_lshlrev_b32 v{t3}, 2, v{t3}
v_and_or_b32 v{t3}, v{vL16}, s{sF0}, v{t3}
v_add_u32 v{vOA}, v{vOA}, v{t3}
v_lshl_add_u32 v{vOC}, v{t2}, 28, v{t3}
s_mul_i32 s{sOA}, s{sTG}, {18 * 4096}
s_add_u32 s{sOA}, s{sOA}, {O_OFF}
s_add_u32 s{sT0}, s{sT0}, 8
s_lshr_b32 s{sT1}, s{sT0}, 2
s_lshl_b32 s{sT1}, s{sT1}, 12
s_and_b32 s{sT0}, s{sT0}, 3
s_lshl_b32 s{sT0}, s{sT0}, 8
s_add_u32 s{sT1}, s{sT1}, s{sT0}
s_lshl_b32 s{sT0}, s{sT2}, 2
s_add_u32 s{sT1}, s{sT1}, s{sT0}
s_add_u32 s{sOC}, s{sT1}, s{sOA}
KA_NOQ:
v_mov_b32 v{t0}, 0
v_lshrrev_b32 v{t1}, 2, v{vL16}
v_add_u32 v{t1}, {FLG}, v{t1}
s_mov_b64 exec, 0xffff
''')
        e.lgop(f'ds_write_b32 v{t1}, v{t0}', 'flgclr')
        e.i('s_mov_b64 exec, -1')
    sched[692].append(qload)
    def rf_load():
        e.i(f's_mov_b32 s{sT4}, {RF_OFF}')
        e.vmop(f'buffer_load_dwordx4 {vr(vRF)}, v{vL16}, {sr(sWS)}, s{sT4} offen sc1', 'rf')

    RT = vCF
    def rl_dma():
        e.raw(f'''
s_lshl_b32 s{sT0}, s{sWAVE}, 8
s_add_u32 s{sT0}, s{sT0}, s2
s_mul_i32 s{sT1}, s{sT0}, 7282
s_lshr_b32 s{sT1}, s{sT1}, 16
s_mul_i32 s{sT2}, s{sT1}, 9
s_sub_u32 s{sT2}, s{sT0}, s{sT2}
s_lshl_b32 s{sRLD}, s{sT0}, 12
s_add_u32 s{sRLD}, s{sRLD}, {W2R_OFF}
s_mov_b32 s{sRL+3}, 0x00020000
s_lshl_b32 s{sT2}, s{sT2}, 7
s_lshl_b32 s{sT0}, s{sWAVE}, 12
s_add_u32 s{sT0}, s{sT0}, {XS2}
v_bfe_u32 v{RT}, v{vL16}, 7, 1
v_mul_u32_u24 v{RT}, 1152, v{RT}
v_and_b32 v{RT+1}, 0x70, v{vL16}
v_add_u32 v{RT}, v{RT}, v{RT+1}
v_bfe_u32 v{RT+1}, v{vL16}, 8, 1
v_lshrrev_b32 v{RT+2}, 9, v{vL16}
v_mul_u32_u24 v{RT+1}, 1152, v{RT+1}
v_mul_u32_u24 v{RT+2}, 1152, v{RT+2}
s_cmp_lt_u32 s{sT1}, 144
s_cbranch_scc0 KA_RLWO
s_mov_b32 s{sRL}, s20
s_mov_b32 s{sRL+1}, s21
s_mov_b32 s{sRL+2}, {4608*1152}
s_cmp_lt_u32 s{sT1}, 128
s_cselect_b32 s{sT3}, 4, 2
s_cselect_b32 s{sT4}, 4, 8
s_mul_i32 s{sT4}, s{sT4}, 1152
s_mul_i32 s{sT1}, s{sT1}, {32*1152}
s_add_u32 s{sT2}, s{sT2}, s{sT1}
v_lshl_add_u32 v{RT+3}, v{RT+1}, 1, v{RT}
v_lshl_add_u32 v{RT+3}, v{RT+2}, s{sT3}, v{RT+3}
''')
        for i in range(4):
            e.i(f's_add_u32 m0, s{sT0}, {i * 1024}')
            e.i(f's_add_u32 s{sT2}, s{sT2}, s{sT4}' if i else 's_nop 0')
            e.i(f'buffer_load_dwordx4 v{RT+3}, {sr(sRL)}, s{sT2} offen{NTR} lds')
        e.raw(f'''
s_branch KA_RLE
KA_RLWO:
s_mov_b32 s{sRL}, s12
s_mov_b32 s{sRL+1}, s13
s_cmp_lt_u32 s{sT1}, 162
s_cselect_b32 s{sRL+2}, {576*1152}, 0
s_cselect_b32 s{sRLD}, s{sRLD}, 0x7f000000
s_sub_u32 s{sT1}, s{sT1}, 144
s_lshl_b32 s{sT1}, s{sT1}, 2
''')
        for i in range(4):
            e.raw(f'''
s_add_u32 s{sT3}, s{sT1}, {i}
s_mul_i32 s{sT4}, s{sT3}, 7282
s_lshr_b32 s{sT4}, s{sT4}, 16
s_mul_i32 vcc_lo, s{sT4}, 9
s_sub_u32 s{sT3}, s{sT3}, vcc_lo
s_mul_i32 s{sT4}, s{sT4}, 72
s_lshr_b32 vcc_lo, s{sT3}, 1
s_mul_i32 vcc_lo, vcc_lo, 18
s_and_b32 vcc_hi, s{sT3}, 1
s_lshl_b32 vcc_hi, vcc_hi, 2
s_add_u32 vcc_lo, vcc_lo, vcc_hi
s_cmp_eq_u32 s{sT3}, 8
s_cselect_b32 vcc_lo, 16, vcc_lo
s_add_u32 s{sT4}, s{sT4}, vcc_lo
s_mul_i32 s{sT4}, s{sT4}, 1152
s_add_u32 s{sT4}, s{sT4}, s{sT2}
s_cmp_eq_u32 s{sT3}, 8
s_cselect_b32 vcc_lo, 18, 2
s_cselect_b32 vcc_hi, 36, 8
v_mad_u32_u24 v{RT+3}, v{RT+1}, vcc_lo, v{RT}
v_mad_u32_u24 v{RT+3}, v{RT+2}, vcc_hi, v{RT+3}
s_add_u32 m0, s{sT0}, {i * 1024}
s_nop 0
buffer_load_dwordx4 v{RT+3}, {sr(sRL)}, s{sT4} offen{NTR} lds
''')
        e.label('KA_RLE')
        e.vmcount(4, 'rl')
    sched[ENV('RLS', 515)].append(rl_dma)
    RQ = [ACC(0, 1, 0), ACC(0, 1, 1), ACC(0, 3, 0), ACC(0, 3, 1)]
    def rl_rd():
        e.need(vm=['rl'])
        e.raw(f'''
v_lshrrev_b32 v{vT0}, 8, v{vL16}
v_lshlrev_b32 v{vT0}, 10, v{vT0}
v_and_b32 v{RQ[0]}, 0xc0, v{vL16}
v_lshl_add_u32 v{vT0}, v{RQ[0]}, 1, v{vT0}
v_bfe_u32 v{RQ[0]}, v{vL16}, 4, 2
v_lshl_add_u32 v{vT0}, v{RQ[0]}, 3, v{vT0}
s_lshl_b32 s{sT0}, s{sWAVE}, 12
s_add_u32 s{sT0}, s{sT0}, {XS2}
v_add_u32 v{vT0}, s{sT0}, v{vT0}
''')
        for q in range(4):
            e.lgop(f'ds_read_b64_tr_b16 {vr(RQ[q], 2)}, v{vT0} offset:{q * 32}')
            e.lgop(f'ds_read_b64_tr_b16 {vr(RQ[q] + 2, 2)}, v{vT0} offset:{q * 32 + 512}', ('rlf', q))
    RLF = ENV('RLF', 590)
    sched[RLF].append(rl_rd)
    for q in range(4):
        def st(q=q):
            e.need(lg=[('rlf', q)])
            e.vmop(f'buffer_store_dwordx4 {vr(RQ[q])}, v{vL16}, {sr(sWS)}, s{sRLD} offen offset:{q * 1024} sc1', 'rls')
        sched[RLF + 8 + 4 * q].append(st)

    def cs_load(c, b0, b1, t0=None, t1=None):
        base = CST + (c * 512 if c >= 2 else c * 256)
        def f():
            e.i(f'v_lshrrev_b32 v{vT0}, 4, v{vL16}')
            e.i(f'v_and_b32 v{vT0}, 48, v{vT0}')
            e.i(f'v_add_u32 v{vT0}, {base}, v{vT0}')
            e.lgop(f'ds_read_b128 {vr(vCV)}, v{vT0} offset:{b0 * 64}')
            if c >= 2: e.lgop(f'ds_read_b128 {vr(t0)}, v{vT0} offset:{256 + b0 * 64}')
            e.lgop(f'ds_read_b128 {vr(vCV + 4)}, v{vT0} offset:{b1 * 64}', ('cv', c, b0))
            if c >= 2: e.lgop(f'ds_read_b128 {vr(t1)}, v{vT0} offset:{256 + b1 * 64}', ('cv', c, b0))
        def g():
            e.need(lg=[('cv', c, b0)])
            if c >= 2:
                for r in range(4): e.i(f'v_add_f32 v{vCV + r}, v{vCV + r}, v{t0 + r}')
        def h():
            if c >= 2:
                for r in range(4): e.i(f'v_add_f32 v{vCV + 4 + r}, v{vCV + 4 + r}, v{t1 + r}')
        return f, g, h
    def swiglu(c, bg, bu, tb, outs):
        buf = c & 1
        g = ACC(buf, bg, tb); u = ACC(buf, bu, tb)
        it = []
        for r in range(4): it.append(I(f'v_fma_f32 v{g + r}, v{vNM[tb]}, v{vCV + r}, v{g + r}'))
        for r in range(4): it.append(I(f'v_fma_f32 v{u + r}, v{vNM[tb]}, v{vCV + 4 + r}, v{u + r}'))
        for r in range(4): it.append(I(f'v_mul_f32 v{u + r}, v{g + r}, v{u + r}'))
        for r in range(4): it.append(I(f'v_mul_f32 v{g + r}, v{vC[tb]}, v{g + r}'))
        for r in range(4): it.append(I(f'v_exp_f32 v{g + r}, v{g + r}'))
        for r in range(4): it.append(I(f'v_fma_f32 v{g + r}, v{g + r}, v{vIR2[tb]}, v{vIR2[tb]}'))
        for r in range(4): it.append(I(f'v_rcp_f32 v{g + r}, v{g + r}'))
        for r in range(4): it.append(I(f'v_mul_f32 v{u + r}, v{g + r}, v{u + r}'))
        it.append(I(f'v_cvt_pk_bf16_f32 v{outs[0]}, v{u}, v{u + 1}'))
        it.append(I(f'v_cvt_pk_bf16_f32 v{outs[1]}, v{u + 2}, v{u + 3}'))
        return it
    def hstore(c, tb):
        def st_():
            e.i(f's_add_u32 s{sT0}, s{sHA if c < 2 else sHB}, {H_OFF + KBI[c] * 4096 + tb * 1024}')
            e.vmop(f'buffer_store_dwordx4 {vr(ACC(c & 1, 0, tb))}, v{vL16}, {sr(sWS)}, s{sT0} offen sc1', 'hs')
        return st_
    def head(c, b0, b1, s0):
        f, g, h = cs_load(c, b0, b1, vCA, vCF)
        sched[s0].append(f); sched[s0 + 5].append(g); sched[s0 + 6].append(h)
    def epi_half(c, half, with_load, tbs=(0, 1)):
        buf = c & 1
        it = []
        if with_load:
            f, g, h = cs_load(c, half, 2 + half, ACC(buf, 2, 0), ACC(buf, 2, 1))
            it += [f, NOP, NOP, NOP, NOP, g, h]
        for tb in tbs:
            o = ACC(buf, 0, tb)
            it += swiglu(c, half, 2 + half, tb, [o + 2 * half, o + 2 * half + 1])
            if half == 1: it.append(hstore(c, tb))
        return it
    def epi_special():
        it = []
        for tb in range(2):
            for b in (2, 3):
                a = ACC(0, b, tb)
                for r in range(4): it.append(I(f'v_fma_f32 v{a + r}, v{vNM[tb]}, v{vCV + 4 * (b - 2) + r}, v{a + r}'))
                def sc(a=a, tb=tb):
                    e.i(f'v_mul_f32 v{vT0}, s{sSCALE}, v{vC[tb]}')
                    for r in range(4): e.i(f'v_mul_f32 v{a + r}, v{vT0}, v{a + r}')
                it.append(sc)
                d = ACC(0, 2, tb) + 2 * (b - 2)
                it.append(I(f'v_cvt_pk_bf16_f32 v{d}, v{a}, v{a + 1}'))
                it.append(I(f'v_cvt_pk_bf16_f32 v{d + 1}, v{a + 2}, v{a + 3}'))
        def stores():
            A = lambda b, tb: ACC(0, b, tb)
            t0, t1, t2 = vCV, vCV + 1, vCV + 2
            e.raw(f'''
s_cmp_gt_u32 s{sQI}, 19
s_cbranch_scc1 KA_QKV_DONE
v_bfe_u32 v{t0}, v{vL16}, 4, 4
v_lshrrev_b32 v{t1}, 8, v{vL16}
s_lshl_b32 s{sT0}, s{sTM}, 3
s_add_u32 s{sT0}, s{sT0}, s{sWAVE}
s_cmp_lt_u32 s{sQI}, 18
s_cbranch_scc0 KA_KV
v_lshlrev_b32 v{t2}, 6, v{t0}
v_lshl_add_u32 v{t2}, v{t1}, 4, v{t2}
s_lshl_b32 s{sT1}, s{sQI}, 17
s_lshl_b32 s{sT0}, s{sT0}, 11
s_add_u32 s{sT1}, s{sT1}, s{sT0}
s_add_u32 s{sT1}, s{sT1}, {Q_OFF}
buffer_store_dwordx4 {vr(A(2,0))}, v{t2}, {sr(sWS)}, s{sT1} offen sc1
buffer_store_dwordx4 {vr(A(2,1))}, v{t2}, {sr(sWS)}, s{sT1} offen offset:1024 sc1
s_branch KA_QKV_DONE
KA_KV:
s_mul_i32 s{sT1}, s{sT0}, {REC}
s_add_u32 s{sT1}, s{sT1}, {KV_OFF}
s_mul_i32 s{sT0}, s{sWAVE}, 2048
s_add_u32 s{sT0}, s{sT0}, {4 * SLOT}
s_cmp_eq_u32 s{sQI}, 18
s_cbranch_scc0 KA_V
; K1[half=rg/2][key][ (rg%2)*8 ] , K2[key] from rg==0 lanes
v_lshrrev_b32 v{t2}, 1, v{t1}
v_lshlrev_b32 v{t2}, 9, v{t2}
v_lshl_add_u32 v{t2}, v{t0}, 4, v{t2}
v_and_b32 v{vT0}, 1, v{t1}
v_lshl_add_u32 v{t2}, v{vT0}, 3, v{t2}
v_add_u32 v{t2}, s{sT0}, v{t2}
ds_write_b64 v{t2}, {vr(A(2,0),2)}
ds_write_b64 v{t2}, {vr(A(2,1),2)} offset:256
v_lshlrev_b32 v{t2}, 2, v{t0}
v_add_u32 v{t2}, s{sT0}, v{t2}
s_mov_b64 exec, 0xffff
ds_write_b32 v{t2}, v{A(2,0)+2} offset:{K2_IN}
ds_write_b32 v{t2}, v{A(2,1)+2} offset:{K2_IN + 64}
s_mov_b64 exec, -1
s_branch KA_KVST
KA_V:
; V[kblk][half=(t/4)%2][d][j=4(t/8)+t%4] : off = half*288 + d*16 + j*2 , d = 4rg+i
s_add_u32 s{sT1}, s{sT1}, {V_IN}
v_bfe_u32 v{t2}, v{t0}, 2, 1
v_mul_u32_u24 v{t2}, 288, v{t2}
v_lshrrev_b32 v{vT0}, 3, v{t0}
v_lshl_add_u32 v{t2}, v{vT0}, 3, v{t2}
v_and_b32 v{vT0}, 3, v{t0}
v_lshl_add_u32 v{t2}, v{vT0}, 1, v{t2}
v_lshl_add_u32 v{t2}, v{t1}, 6, v{t2}
v_add_u32 v{t2}, s{sT0}, v{t2}
''')
            for tb in range(2):
                o = tb * 576
                e.i(f'ds_write_b16 v{t2}, v{A(2,tb)} offset:{o}')
                e.i(f'ds_write_b16_d16_hi v{t2}, v{A(2,tb)} offset:{o + 16}')
                e.i(f'ds_write_b16 v{t2}, v{A(2,tb)+1} offset:{o + 32}')
                e.i(f'ds_write_b16_d16_hi v{t2}, v{A(2,tb)+1} offset:{o + 48}')
            e.i('s_mov_b64 exec, 0xffff')
            for tb in range(2):
                o = tb * 576
                e.i(f'ds_write_b16 v{t2}, v{A(2,tb)+2} offset:{o + 256}')
                e.i(f'ds_write_b16_d16_hi v{t2}, v{A(2,tb)+2} offset:{o + 272}')
            e.raw(f'''
s_mov_b64 exec, -1
KA_KVST:
v_add_u32 v{t2}, s{sT0}, v{vL16}
ds_read_b128 {vr(A(2,0))}, v{t2}
ds_read_b128 {vr(A(2,1))}, v{t2} offset:1024
s_waitcnt lgkmcnt(0)
buffer_store_dwordx4 {vr(A(2,0))}, v{vL16}, {sr(sWS)}, s{sT1} offen sc1
s_mov_b64 exec, 0xff
buffer_store_dwordx4 {vr(A(2,1))}, v{vL16}, {sr(sWS)}, s{sT1} offen offset:1024 sc1
s_mov_b64 exec, -1
''')
            e.label('KA_QKV_DONE')
        it.append(stores)
        it1 = it
        it = []
        f, g, h = cs_load(2, 0, 1, ACC(0, 2, 0), ACC(0, 2, 1))
        it += [f, NOP, NOP, NOP, NOP, g, h]
        o = ACC(0, 0, 0)
        it += swiglu(2, 0, 1, 0, [o, o + 1])
        it += swiglu(2, 0, 1, 1, [o + 2, o + 3])
        def st_():
            e.raw(f'''
s_lshr_b32 s{sT0}, s{sFN}, 1
s_lshl_b32 s{sT0}, s{sT0}, 12
s_and_b32 s{sT1}, s{sFN}, 1
s_lshl_b32 s{sT1}, s{sT1}, 9
s_add_u32 s{sT0}, s{sT0}, s{sT1}
s_add_u32 s{sT0}, s{sT0}, s{sHO}
s_add_u32 s{sT0}, s{sT0}, {H_OFF + 128 * 4096}
v_permlane16_swap_b32 v{o}, v{o + 2}
v_permlane16_swap_b32 v{o + 1}, v{o + 3}
v_and_b32 v{vT0}, 0x100, v{vL16}
v_lshlrev_b32 v{vT0}, 2, v{vT0}
v_and_or_b32 v{vT0}, v{vL16}, s{sF0}, v{vT0}
v_lshrrev_b32 v{o + 4}, 1, v{vL16}
v_and_b32 v{o + 4}, 0x100, v{o + 4}
v_add_u32 v{vT0}, v{vT0}, v{o + 4}
''')
            e.vmop(f'buffer_store_dwordx4 {vr(o)}, v{vT0}, {sr(sWS)}, s{sT0} offen sc1', 'hs')
        it.append(st_)
        return it1, it
    place(epi_half(1, 0, True) + epi_half(1, 1, True), 288, 288 + 138)
    head(2, 2, 3, 432)
    sp1, sp2 = epi_special()
    place(sp1, 432 + 8, 432 + 40)
    place(sp2, 432 + 42, 432 + 138)
    sched[473].append(lambda: marks.__setitem__('e', e.mark()))
    head(3, 0, 2, 576)
    E4 = ENV('E4', 670)
    place(epi_half(3, 0, False) + epi_half(3, 1, True), 576 + 8, E4)
    head(4, 0, 2, E4)
    f, g, h = cs_load(4, 1, 3, ACC(0, 2, 0), ACC(0, 2, 1))
    place(epi_half(4, 0, False) + [f, NOP, NOP, NOP, g, h], E4 + 7, 719)

    D = NAF - 1
    def bar(vm, lg, dmas, stamp=False, span=DSP * 3, eflag=False):
        def f(n):
            e.need(vm=vm, lg=lg)
            if eflag == 1: e.need_mark(marks['e'])
            e.i('s_barrier')
            if eflag == 1: e_set()
            if eflag == 2: e_set(RF_OFF, 'KA_NORS')
            if stamp or 'allstamps' in EXP: e.stamp()
            its = [it for p in dmas for it in dma_slot(p)]
            if its: place(its, 2 * n + 2, 2 * n + 2 + span)
        return f
    for j in range(1, 9):
        lg = [('xf', 1, 17)] if j == 8 else []
        if 'lead3' in EXP and j <= 5: lg = [('af', 16 * j - 1)]
        pre[16 * j - D].append(bar([('Wp', j)], lg, [0, 1] if j == 8 else [], j % 3 == 0, span=30))
    for p in range(6):
        dm = {0: [4], 1: [5], 3: [6], 4: [7], 5: [8]}.get(p, [])
        pre[144 + 24 * (p + 1) - D].append(bar([('W', p + 1)], [('cswr', 2 + p // 3)] if p % 3 == 2 else [], dm, p % 3 == 2, span=(DSP * 3 if p < 5 else 12), eflag=int(p == 4)))
    pre[288 + 12 - D].append(bar([('W', 7)], [], []))
    pre[288 + 24 - D - 2].append(bar([('W', 8)], [], []))
    pre[288 + 36 - 1].append(bar(['rls'], [('cswr', 4)], [], True, eflag=2))

    place(dma_slot(3), 290, 326)
    cur = {0: 0, 1: 0}
    def rdA(n, r):
        c, b, ks, u, off = FR[n]
        a = vTA1 if u else vTA0
        if not (0 <= off - cur[u] <= 65535 - 256):
            nb = (off // SLOT) * SLOT
            e.i(f'v_add_u32 v{a}, {(nb - cur[u]) & 0xffffffff:#x}, v{a}')
            cur[u] = nb
        e.lgop(f'ds_read_b64_tr_b16 {vr(AF(n) + 2 * r, 2)}, v{a} offset:{off - cur[u] + r * 256}', ('af', n) if r else None)

    def window():
        e.need(lg=[('cswr', 0)])
        e.i('s_barrier')
        e.stamp()
        for it in dma_slot(2): it()
        mm = [m for ks in range(18) for m in stat_mm(1, ks)]
        va = epi_half(0, 0, True, (0,)) + epi_half(0, 1, True, (0,))
        k = 0
        for i_, m in enumerate(mm):
            m()
            while k < (i_ + 1) * (len(va) - 12) // len(mm):
                va[k](); k += 1
        e.raw(f'''
v_lshrrev_b32 v{vT0}, 8, v{vL16}
v_lshlrev_b32 v{vT0}, 9, v{vT0}
v_sub_u32 v{vTA0}, v{vTA0}, v{vT0}
v_sub_u32 v{vTA1}, v{vTA1}, v{vT0}
s_and_b32 s{sT0}, s{sWAVE}, 1
s_lshl_b32 s{sT0}, s{sT0}, 5
v_xor_b32 v{vCS}, s{sT0}, v{vTA0}
s_bfe_u32 s{sT0}, s{sWAVE}, 0x10001
s_mul_i32 s{sT0}, s{sT0}, 12288
s_lshr_b32 s{sT1}, s{sWAVE}, 2
s_mul_i32 s{sT1}, s{sT1}, 6144
s_add_u32 s{sT0}, s{sT0}, s{sT1}
s_add_u32 s{sT0}, s{sT0}, {BUF[0] * SLOT}
v_add_u32 v{vCS}, s{sT0}, v{vCS}
''')
        fin = stat_fin(1)
        rest = va[k:]
        for i_ in range(max(len(fin), len(rest))):
            if i_ < len(fin): fin[i_]()
            if i_ < len(rest): rest[i_]()
        o = ACC(0, 0, 1)
        t2 = ACC(0, 1, 1)
        for it in swiglu(0, 1, 3, 1, [t2, t2 + 1])[:8]: it()
        f, g, h = cs_load(0, 0, 2)
        f()
        for it in swiglu(0, 1, 3, 1, [t2, t2 + 1])[8:]: it()
        g()
        vb = swiglu(0, 0, 2, 1, [o, o + 1])
        for it in vb[:20]: it()
        e.need(vm=[('W', 0)])
        e.i('s_barrier')
        for n in range(144, 144 + D):
            rdA(n, 0); rdA(n, 1)
        for it in vb[20:]: it()
        e.i(f'v_mov_b32 v{o + 2}, v{t2}')
        e.i(f'v_mov_b32 v{o + 3}, v{t2 + 1}')
        hstore(0, 1)()
        e.stamp()

    e.stamp()
    for it in xread(0) + xread(1): it()
    e.need(vm=[('Wp', 0)])
    e.i('s_barrier')
    e.stamp()
    for n in range(D):
        rdA(n, 0); rdA(n, 1)
    for n in range(360):
        c, b, ks, u, off = FR[n]
        if n == 144: window()
        for f in pre[n]: f(n)
        for tb in range(2):
            e.need(lg=[('af', n)] + ([('xf', tb, ks)] if c == 0 else []))
            acc = ACC(c & 1, b, tb)
            e.i(f'v_mfma_f32_16x16x32_bf16 {vr(acc)}, {vr(AF(n))}, {vr(X(tb, ks))}, {0 if ks == 0 else vr(acc)}')
            if n + D < 360 and not (n < 144 <= n + D): rdA(n + D, tb)
            for it in sched[2 * n + tb]: it()
    e.need(vm=['kv'])
    e.drain(lg=True)
    e.i('s_barrier')
    e.raw(f'''
s_cmp_lt_u32 s{sWAVE}, 4
s_cbranch_scc1 KA_NOPR
s_setprio 1
s_branch KA_JN
KA_NOPR:
''')
    rf_load()
    e.label('KA_JN')
    e.i('s_nop 2')
    e.stamp()
    for it in epi_half(4, 1, False): it()
    e.stamp()
```

```python
class Emit:
    def __init__(self):
        self.lines = []
        self.vm = []
        self.lg = []
        self.vm_done = 0
        self.lg_done = 0
    def raw(self, s):
        for l in s.strip('\n').split('\n'):
            if not l.strip(): continue
            self.lines.append(l if l.endswith(':') or l.startswith('.') or l.startswith(';') else '    ' + l.strip())
    def i(self, s):
        self.lines.append('    ' + s)
    def label(self, s):
        self.lines.append(s + ':')
    def vmop(self, s, tag=None):
        self.i(s); self.vm.append(tag)
    def vmcount(self, n, tag=None):
        self.vm += [tag] * n
    def lgop(self, s, tag=None):
        self.i(s); self.lg.append(tag)
    def _last(self, lst, tags):
        idx = -1
        for t in tags:
            found = [k for k, x in enumerate(lst) if x == t]
            assert found, f'tag {t} never issued'
            idx = max(idx, found[-1])
        return idx
    def need(self, vm=(), lg=()):
        parts = []
        if vm:
            idx = self._last(self.vm, vm)
            if idx >= self.vm_done:
                n = len(self.vm) - 1 - idx
                if n < 63:
                    parts.append(f'vmcnt({n})')
                self.vm_done = idx + 1
        if lg:
            idx = self._last(self.lg, lg)
            if idx >= self.lg_done:
                n = len(self.lg) - 1 - idx
                n = min(n, 15)
                parts.append(f'lgkmcnt({n})')
                self.lg_done = len(self.lg) - n
        if parts:
            self.i('s_waitcnt ' + ' '.join(parts))
    def mark(self):
        return len(self.vm)
    def need_mark(self, m):
        n = len(self.vm) - m
        if n < 63: self.i(f's_waitcnt vmcnt({n})')
        self.vm_done = max(self.vm_done, m)
    def drain(self, vm=False, lg=False):
        parts = []
        if vm: parts.append('vmcnt(0)'); self.vm_done = len(self.vm)
        if lg: parts.append('lgkmcnt(0)'); self.lg_done = len(self.lg)
        self.i('s_waitcnt ' + ' '.join(parts))
    nstamp = 0
    stamps_on = False
    def stamp(self, real=False):
        if not self.stamps_on: return
        import os
        if os.environ.get('STAMPS') == 'rt': real = True
        self.i(('s_memrealtime' if real else 's_memtime') + ' s[68:69]')
        self.drain(lg=True)
        self.i(f's_mov_b32 s{70 + self.nstamp}, s68')
        self.nstamp += 1
        assert self.nstamp <= 32
    def stamp_flush(self, sWS, sWAVE, off):
        if not self.stamps_on: return
        import os
        if os.environ.get('DBGOUT'):
            lbl = 'DBGSKIP%d' % len(self.lines)
            self.i('s_lshl_b32 s68, s2, 3')
            self.i(f's_add_u32 s68, s68, s{sWAVE}')
            self.i(f's_cmp_lg_u32 s68, {int(os.environ["DBGOUT"])}')
            self.i(f's_cbranch_scc1 {lbl}')
            for k, v in enumerate(['s66', 's67', '256', '0x00020000']): self.i(f's_mov_b32 s{40 + k}, {v}')
            self.i('v_mov_b32 v1, 0')
            self.i('s_mov_b64 exec, 1')
            sel = list(range(self.nstamp - 1))[-16:]
            for j, k in enumerate(sel):
                self.i(f's_sub_u32 s68, s{70 + k}, s70')
                self.i('v_mov_b32 v2, s68')
                self.i(f'buffer_store_dword v2, v1, s[40:43], 0 offen offset:{4 * j}')
            self.i('s_mov_b64 exec, -1')
            self.label(lbl)
            return
        self.i('s_lshl_b32 s68, s2, 3')
        self.i(f's_add_u32 s68, s68, s{sWAVE}')
        self.i('s_lshl_b32 s68, s68, 7')
        self.i(f's_add_u32 s68, s68, {off}')
        self.i('v_mov_b32 v1, 0')
        self.i('s_mov_b64 exec, 1')
        for k in range(self.nstamp):
            self.i(f'v_mov_b32 v2, s{70 + k}')
            self.i(f'buffer_store_dword v2, v1, s[{sWS}:{sWS+3}], s68 offen offset:{4 * k}')
        self.i('s_mov_b64 exec, -1')
    def text(self):
        return '\n'.join(self.lines) + '\n'

def vr(a, n=4):
    return f'v[{a}:{a+n-1}]'
def sr(a, n=4):
    return f's[{a}:{a+n-1}]'
```

```python
from emit import *
from common import *
import os
EXP = os.environ.get('EXP', '').split(',')
ENV = lambda k, d: int(os.environ.get(k, d))

SLOT = 24576
XS = 3 * SLOT
XS2 = 5 * SLOT
CST = XS2 + 32768
SCR = CST + 2560
FLG = SCR + 256
TKW = FLG + 64
KA_LDS = TKW + 16
BUF = [3, 4, 0, 1, 2, 3, 0, 1, 2]

vL16, vTA0, vTA1, vCS, vDMA, vT0 = 0, 1, 2, 3, 4, 5
vCF = 8
vXG0, vXG1, vXR0, vXR1 = 12, 13, 14, 15
vNM = [12, 13]; vC = [14, 15]; vIR2 = [6, 7]
def X(tb, ks): return 16 + (ks * 2 + tb) * 4
def ACC(buf, b, tb): return 160 + buf * 32 + (b * 2 + tb) * 4
NAF = 4
def AF(n): return 224 + (n % NAF) * 4
vONE = 240; vCA = 244
vCV = 248
MAPPING = ENV('MAPPING', 0)
DSP = ENV('DSP', 16)
RLPOS = ENV('RLPOS', 0)
NTR = ' nt'
NTW = '' if 'nontw' in EXP else ' nt'
NTX = ' nt' if 'ntx' in EXP else ''
sX, sW, sQ, sWS, sRL = 24, 28, 32, 36, 40
sWAVE, sTM, sFN, sQI = 44, 45, 46, 47
sXO = [48, 49, 50, 51]
sWM0, sWSO, sT0, sT1, sXM0, sHO, sSCALE, sT2 = 52, 53, 54, 55, 56, 57, 58, 59
sT3, sT4 = 60, 61
sRLD = 62
sHF = 63
sHA, sHB = 8, 9
sF0 = 10
vOA, vOC = 36, 37
vRF = 48
sOA, sOC = 50, 51
SWB = ENV('SWB', 0)
sTG, sCG = 4, 5
sMSK = 14
KBI = {0: 0, 1: 1, 3: 2, 4: 3}

def gen_ka(e, name):
    I = lambda s: (lambda: e.i(s))
    NOP = lambda: None
    M2 = ENV('MAP2', 0)
    MAP2 = f'''s_lshr_b32 s{sTG}, s{sT1}, {3 - M2}
s_lshr_b32 s{sT2}, s{sT0}, {M2}
s_lshl_b32 s{sT2}, s{sT2}, {2 + M2}
s_add_u32 s{sTG}, s{sTG}, s{sT2}
s_and_b32 s{sCG}, s{sT1}, {(8 >> M2) - 1}
s_and_b32 s{sT0}, s{sT0}, {(1 << M2) - 1}
s_lshl_b32 s{sT0}, s{sT0}, {3 - M2}
s_add_u32 s{sCG}, s{sCG}, s{sT0}'''
    LT = 3 - MAPPING
    e.raw(f'''
.p2align 8
.globl {name}
.type {name},@function
{name}:
{'s_memrealtime s[70:71]' if STAMPS else ''}
s_cmp_ge_u32 s2, 256
s_cbranch_scc1 KB_END
s_load_dwordx8 s[4:11], s[0:1], 0
s_load_dwordx2 s[12:13], s[0:1], 32
s_load_dwordx4 s[16:19], s[0:1], 48
s_load_dwordx2 s[20:21], s[0:1], 64
s_load_dwordx2 s[22:23], s[0:1], 88
s_load_dwordx4 s[64:67], s[0:1], 72
v_lshrrev_b32 v1, 6, v0
v_and_b32 v0, 63, v0
v_readfirstlane_b32 s{sWAVE}, v1
s_getreg_b32 s{sT0}, hwreg(HW_REG_XCC_ID)
s_and_b32 s{sT0}, s{sT0}, {0 if 'onexcd' in EXP else 7}
s_lshl_b32 s{sFN}, s{sT0}, 2
s_lshr_b32 s{sT1}, s2, 6
s_add_u32 s{sFN}, s{sFN}, s{sT1}
; x DMA source: row=l/8, pos=l%8 : row*1152 + ((pos ^ (row>>1))*16)
v_lshrrev_b32 v6, 4, v0
v_and_b32 v10, 7, v0
v_xor_b32 v6, v6, v10
v_lshrrev_b32 v10, 3, v0
v_mul_u32_u24 v{vXG0}, 1152, v10
v_lshl_add_u32 v{vXG0}, v6, 4, v{vXG0}
v_xor_b32 v{vXG1}, 64, v{vXG0}
s_mul_i32 s{sXM0}, s{sWAVE}, 10240
s_add_u32 s{sXM0}, s{sXM0}, {XS}
; pass-1 W DMA source: h=l/32, row=(l%32)/4, sigma=(l%4)^(2*(w&1)) : row*9216 + h*64 + sigma*16
s_lshl_b32 s{sT1}, s{sWAVE}, 1
s_and_b32 s{sT1}, s{sT1}, 2
v_bfe_u32 v8, v0, 2, 3
v_mul_u32_u24 v{vDMA}, 9216, v8
v_and_b32 v6, 3, v0
v_xor_b32 v6, s{sT1}, v6
v_lshl_add_u32 v{vDMA}, v6, 4, v{vDMA}
v_lshrrev_b32 v6, 5, v0
v_lshl_add_u32 v{vDMA}, v6, 6, v{vDMA}
s_and_b32 s{sT0}, s{sWAVE}, 3
s_lshr_b32 s{sT1}, s{sWAVE}, 2
s_lshl_b32 s{sWM0}, s{sT1}, 13
s_lshl_b32 s{sT1}, s{sT0}, 10
s_add_u32 s{sWM0}, s{sWM0}, s{sT1}
s_mul_i32 s{sWSO}, s{sT0}, {8*9216}
s_lshl_b32 s{sT1}, s{sFN}, 8
s_add_u32 s{sWSO}, s{sWSO}, s{sT1}
s_bfe_u32 s{sT1}, s{sFN}, {0x10000 + SWB}
s_lshl_b32 s{sT1}, s{sT1}, 7
s_add_u32 s{sWSO}, s{sWSO}, s{sT1}
s_cmp_lt_u32 s{sWAVE}, 4
s_waitcnt lgkmcnt(0)
s_cselect_b32 s{sW}, s16, s18
s_cselect_b32 s{sW+1}, s17, s19
s_mov_b32 s{sRL}, s66
s_mov_b32 s{sRL+1}, s67
s_mov_b32 s{sRL+2}, 256
s_mov_b32 s{sRL+3}, 0x00020000
s_mov_b32 s{sT3}, s{sFN}
v_mov_b32 v9, 0
s_cmp_lg_u32 s{sWAVE}, 0
s_cbranch_scc1 KA_NOTK
s_mov_b64 exec, 1
s_and_b32 s{sT0}, s{sT3}, 1
s_lshl_b32 s{sT0}, s{sT0}, 7
s_lshr_b32 s{sT1}, s{sT3}, 1
s_lshl_b32 s{sT1}, s{sT1}, 2
s_add_u32 s{sT0}, s{sT0}, s{sT1}
v_mov_b32 v7, 1
buffer_atomic_add v7, v9, {sr(sRL)}, s{sT0} offen offset:4 sc0 sc1
s_mov_b64 exec, -1
KA_NOTK:
s_mov_b32 s{sX}, s4
s_mov_b32 s{sX+1}, s5
s_mov_b32 s{sX+2}, {2048*1152}
s_mov_b32 s{sX+3}, 0x00020000
s_mov_b32 s{sW+2}, {576*9216}
s_mov_b32 s{sW+3}, 0x00020000
s_mov_b32 s{sWS}, s22
s_mov_b32 s{sWS+1}, s23
s_mov_b32 s{sWS+2}, {WS_BYTES}
s_mov_b32 s{sWS+3}, 0x00020000
''')
    if STAMPS: e.nstamp = 1
    e.stamp(True)
    def xdma(pi):
        cgp, tb = divmod(pi, 2)
        items = []
        for h in range(2):
            def f(h=h):
                if pi >= 5 and h == 0:
                    pc, pt = divmod(pi - 5, 2)
                    e.need(lg=[('xf', pt, 2 * pc + 1)])
                e.i(f's_add_u32 m0, s{sXM0}, {(pi % 5) * 2048 + h * 1024 - cgp * 128}')
                e.i('s_nop 0')
                e.vmop(f'buffer_load_dwordx4 v{vXG1 if h else vXG0}, {sr(sX)}, s{sXO[2 * tb + h]} offen offset:{cgp * 128}{NTX} lds', ('x', pi))
            items.append(f)
        return items
    def wdma1(j):
        items = []
        for i in range(2):
            def f(i=i):
                e.i(f's_add_u32 m0, s{sWM0}, {(j % 4) * 16384 + i * 4096}')
                e.i(f's_add_u32 s{sT2}, s{sWSO}, {(64 * j + 32 * i) * 9216}')
                e.vmop(f'buffer_load_dwordx4 v{vDMA}, {sr(sW)}, s{sT2} offen{NTW} lds', ('Wp', j))
            items.append(f)
        return items
    XT = ENV('XT', 3)
    e.raw(f'''
s_lshl_b32 s{sT0}, s2, 3
s_add_u32 s{sT0}, s{sT0}, s{sWAVE}
s_mul_i32 s{sT2}, s{sT0}, 1152
v_lshlrev_b32 v6, 7, v0
s_mov_b32 m0, {SCR}
s_mov_b64 exec, {(1 << XT) - 1}
buffer_load_dword v6, {sr(sX)}, s{sT2} offen lds
s_mov_b64 exec, -1
''')
    for it in wdma1(0) + wdma1(1): it()
    late_setup_mark = len(e.lines)
    def after_ticket():
        e.raw(f'''
s_cmp_lg_u32 s{sWAVE}, 0
s_cbranch_scc1 KA_NOTK2
s_waitcnt vmcnt(5)
s_mov_b64 exec, 1
KA_TKL:
v_readfirstlane_b32 s{sT2}, v7
s_cmp_lt_u32 s{sT2}, 8
s_cbranch_scc1 KA_TKOK
s_add_u32 s{sT3}, s{sT3}, 1
s_and_b32 s{sT3}, s{sT3}, 31
s_cmp_lg_u32 s{sT3}, s{sFN}
s_cbranch_scc1 KA_TKN
s_and_b32 s{sT3}, s2, 31
s_lshr_b32 s{sT2}, s2, 5
s_branch KA_TKOK
KA_TKN:
s_and_b32 s{sT0}, s{sT3}, 1
s_lshl_b32 s{sT0}, s{sT0}, 7
s_lshr_b32 s{sT1}, s{sT3}, 1
s_lshl_b32 s{sT1}, s{sT1}, 2
s_add_u32 s{sT0}, s{sT0}, s{sT1}
v_mov_b32 v7, 1
buffer_atomic_add v7, v9, {sr(sRL)}, s{sT0} offen offset:4 sc0 sc1
s_waitcnt vmcnt(0)
s_branch KA_TKL
KA_TKOK:
s_lshl_b32 s{sT2}, s{sT2}, 5
s_add_u32 s{sT2}, s{sT2}, s{sT3}
v_mov_b32 v7, s{sT2}
ds_write_b32 v10, v7
s_waitcnt lgkmcnt(0)
s_mov_b64 exec, -1
KA_NOTK2:
s_barrier
ds_read_b32 v7, v10
s_waitcnt lgkmcnt(0)
v_readfirstlane_b32 s{sT2}, v7
s_lshr_b32 s{sTM}, s{sT2}, 5
s_and_b32 s{sT2}, s{sT2}, 31
s_cmp_eq_u32 s{sT2}, s{sFN}
s_cbranch_scc1 KA_FNOK
s_mov_b32 s{sFN}, s{sT2}
s_and_b32 s{sT0}, s{sWAVE}, 3
s_mul_i32 s{sWSO}, s{sT0}, {8*9216}
s_lshl_b32 s{sT1}, s{sFN}, 8
s_add_u32 s{sWSO}, s{sWSO}, s{sT1}
s_bfe_u32 s{sT1}, s{sFN}, {0x10000 + SWB}
s_lshl_b32 s{sT1}, s{sT1}, 7
s_add_u32 s{sWSO}, s{sWSO}, s{sT1}
s_waitcnt vmcnt(0)
''')
        sv = list(e.vm)
        for it in wdma1(0) + wdma1(1): it()
        e.vm = sv
        e.raw(f'''
KA_FNOK:
s_lshl_b32 s{sT0}, s{sTM}, 3
s_add_u32 s{sT0}, s{sT0}, s{sWAVE}
s_mul_i32 s{sXO[0]}, s{sT0}, {32*1152}
s_add_u32 s{sXO[1]}, s{sXO[0]}, {8*1152}
s_add_u32 s{sXO[2]}, s{sXO[0]}, {16*1152}
s_add_u32 s{sXO[3]}, s{sXO[0]}, {24*1152}
''')
        if 'pst' in EXP: e.stamp()
        for pi in range(4):
            for it in xdma(pi): it()
        if 'pst' in EXP: e.stamp()
    e.raw(f'''
s_mov_b32 s{sMSK}, 0x33333333
s_mov_b32 s{sMSK+1}, 0xcccccccc
s_cmp_lt_u32 s{sWAVE}, 4
s_cbranch_scc1 KA_MSK
s_not_b64 {sr(sMSK, 2)}, {sr(sMSK, 2)}
{'s_setprio 1' if 'prio' in EXP else ''}
KA_MSK:
{'s_setprio 1' if 'prioall' in EXP else ''}
; pass-1 tr-read base: g=l/16,i=l%16: g*1024 + (g&1)*32 + (i/4)*64 + (i%4)*8
v_lshrrev_b32 v6, 4, v0
v_lshlrev_b32 v{vTA0}, 10, v6
v_and_b32 v6, 1, v6
v_lshl_add_u32 v{vTA0}, v6, 5, v{vTA0}
v_bfe_u32 v6, v0, 2, 2
v_lshl_add_u32 v{vTA0}, v6, 6, v{vTA0}
v_and_b32 v6, 3, v0
v_lshl_add_u32 v{vTA0}, v6, 3, v{vTA0}
v_xor_b32 v{vTA1}, 32, v{vTA0}
s_and_b32 s{sT0}, s{sWAVE}, 1
s_lshl_b32 s{sT0}, s{sT0}, 5
v_xor_b32 v{vCS}, s{sT0}, v{vTA0}
s_bfe_u32 s{sT0}, s{sWAVE}, 0x10001
s_lshl_b32 s{sT0}, s{sT0}, 13
s_lshr_b32 s{sT1}, s{sWAVE}, 2
s_lshl_b32 s{sT1}, s{sT1}, 9
s_add_u32 s{sT0}, s{sT0}, s{sT1}
v_add_u32 v{vCS}, s{sT0}, v{vCS}
; x staging read addr: t=l%16, kg=l/16: base + t*128 + ((kg ^ (t>>1))*16)
v_bfe_u32 v6, v0, 1, 3
v_lshrrev_b32 v10, 4, v0
v_xor_b32 v6, v6, v10
v_lshlrev_b32 v6, 4, v6
v_and_b32 v10, 15, v0
v_lshl_add_u32 v6, v10, 7, v6
v_add_u32 v{vXR0}, s{sXM0}, v6
v_xor_b32 v{vXR1}, 64, v{vXR0}
v_mov_b32 v{vONE}, 0x3f803f80
v_mov_b32 v{vONE+1}, 0x3f803f80
v_mov_b32 v{vONE+2}, 0x3f803f80
v_mov_b32 v{vONE+3}, 0x3f803f80
v_mov_b32 v10, {TKW}
''')
    after_ticket()
    e.raw(f'''
s_and_b32 s{sT1}, s{sFN}, 3
s_lshl_b32 s{sQI}, s{sT1}, 3
s_lshr_b32 s{sT1}, s{sFN}, 2
s_xor_b32 s{sT1}, s{sT1}, 4
s_add_u32 s{sQI}, s{sQI}, s{sT1}
; H store base: ((tg*144)*4 + 2*(w%2))*1024, tg = (8tm+w)/2
s_lshl_b32 s{sT0}, s{sTM}, 3
s_add_u32 s{sT0}, s{sT0}, s{sWAVE}
s_lshr_b32 s{sT1}, s{sT0}, 1
s_mul_i32 s{sHO}, s{sT1}, {144*4096}
s_and_b32 s{sT1}, s{sWAVE}, 1
s_lshl_b32 s{sT1}, s{sT1}, 11
s_add_u32 s{sHO}, s{sHO}, s{sT1}
s_mov_b32 s{sQ}, s6
s_mov_b32 s{sQ+1}, s7
s_mov_b32 s{sQ+2}, {576*1152}
s_mov_b32 s{sQ+3}, 0x00020000
s_mov_b32 s{sSCALE}, {f32(-QSCALE / LOG2E)}
s_cmp_lt_u32 s{sQI}, 18
s_cbranch_scc1 KA_ROLE_DONE
s_mov_b32 s{sSCALE}, {f32(-1.0 / LOG2E)}
s_mov_b32 s{sQ+2}, 0
s_cmp_gt_u32 s{sQI}, 19
s_cbranch_scc1 KA_ROLE_DONE
s_cmp_eq_u32 s{sQI}, 18
s_cselect_b32 s{sQ}, s8, s10
s_cselect_b32 s{sQ+1}, s9, s11
s_mov_b32 s{sQ+2}, {576*36}
KA_ROLE_DONE:
s_lshr_b32 s{sT2}, s{sT0}, 1
s_lshl_b32 s{sHF}, s{sT2}, 8
s_lshl_b32 s{sT2}, s{sFN}, 3
s_add_u32 s{sHF}, s{sHF}, s{sT2}
s_lshr_b32 s{sT1}, s{sT1}, 9
s_add_u32 s{sHF}, s{sHF}, s{sT1}
s_add_u32 s{sHF}, s{sHF}, {HF_OFF}
s_lshl_b32 s{sT2}, s{sFN}, 14
s_add_u32 s{sHA}, s{sHO}, s{sT2}
s_bfe_u32 s{sT1}, s{sFN}, {0x10000 + SWB}
s_lshl_b32 s{sT1}, s{sT1}, 13
s_sub_u32 s{sHB}, s{sHA}, s{sT1}
s_add_u32 s{sHA}, s{sHA}, s{sT1}
s_lshr_b32 s{sTG}, s{sTM}, 1
s_and_b32 s{sT0}, s{sFN}, 28
s_add_u32 s{sTG}, s{sTG}, s{sT0}
s_and_b32 s{sCG}, s{sTM}, 1
s_lshl_b32 s{sCG}, s{sCG}, 2
s_and_b32 s{sT0}, s{sFN}, 3
s_add_u32 s{sCG}, s{sCG}, s{sT0}
s_mov_b32 s{sF0}, 0xf0
s_cmp_lg_u32 s2, 0
s_cbranch_scc1 KA_NOZ
s_mul_i32 s{sT0}, s{sWAVE}, 3072
s_add_u32 s{sT0}, s{sT0}, {FLAG_OFF}
v_lshlrev_b32 v6, 4, v0
v_mov_b32 v8, 0
v_mov_b32 v9, 0
v_mov_b32 v10, 0
v_mov_b32 v11, 0
buffer_store_dwordx4 v[8:11], v6, {sr(sWS)}, s{sT0} offen sc1
buffer_store_dwordx4 v[8:11], v6, {sr(sWS)}, s{sT0} offen offset:1024 sc1
buffer_store_dwordx4 v[8:11], v6, {sr(sWS)}, s{sT0} offen offset:2048 sc1
KA_NOZ:
v_lshlrev_b32 v{vL16}, 4, v0
''')

    def o_init():
        e.raw(f'''
s_mul_i32 s{sT0}, s2, 9216
s_lshl_b32 s{sT1}, s{sWAVE}, 10
s_add_u32 s{sT0}, s{sT0}, s{sT1}
s_add_u32 s{sT0}, s{sT0}, {O_OFF}
v_mov_b32 v{ACC(1, 3, 1)}, -1
v_mov_b32 v{ACC(1, 3, 1)+1}, -1
v_mov_b32 v{ACC(1, 3, 1)+2}, -1
v_mov_b32 v{ACC(1, 3, 1)+3}, -1
s_cmp_lg_u32 s{sWAVE}, 7
buffer_store_dwordx4 {vr(ACC(1, 3, 1))}, v{vL16}, {sr(sWS)}, s{sT0} offen sc1
s_cbranch_scc1 KA_NOO
buffer_store_dwordx4 {vr(ACC(1, 3, 1))}, v{vL16}, {sr(sWS)}, s{sT0} offen offset:1024 sc1
KA_NOO:
''')
        e.vmcount(1, 'oi')
    o_init()
    def touch(srd, nl, vmul, soff_code):
        e.raw(soff_code)
        e.i(f'v_mul_u32_u24 v{vT0}, {vmul}, v{vL16}')
        e.i(f's_mov_b32 m0, {SCR}')
        e.i(f's_mov_b64 exec, {(1 << nl) - 1:#x}')
        e.vmop(f'buffer_load_dword v{vT0}, {sr(srd)}, s{sT2} offen lds')
        e.i('s_mov_b64 exec, -1')
    GP = f'''
s_lshl_b32 s{sT0}, s2, 2
s_and_b32 s{sT1}, s{sWAVE}, 3
s_add_u32 s{sT0}, s{sT0}, s{sT1}
'''
    def t_x(c0=2):
        touch(sX, 9 - c0, 8, f'''
s_lshl_b32 s{sT0}, s2, 3
s_add_u32 s{sT0}, s{sT0}, s{sWAVE}
s_mul_i32 s{sT2}, s{sT0}, 1152
s_add_u32 s{sT2}, s{sT2}, {c0 * 128}
''')
    def t_w(row0, line):
        touch(sW, (576 - row0) // 32, 2 * 9216, GP + f'''
s_lshr_b32 s{sT1}, s{sT0}, 5
s_mul_i32 s{sT2}, s{sT1}, 9216
s_and_b32 s{sT1}, s{sT0}, 31
s_lshl_b32 s{sT1}, s{sT1}, 8
s_add_u32 s{sT2}, s{sT2}, s{sT1}
s_add_u32 s{sT2}, s{sT2}, {row0 * 9216 + line * 128}
''')
    def t_rem():
        touch(sW, 5, 8 * 9216, GP + f'''
s_lshr_b32 s{sT1}, s{sT0}, 3
s_mul_i32 s{sT2}, s{sT1}, 9216
s_and_b32 s{sT1}, s{sT0}, 7
s_lshl_b32 s{sT1}, s{sT1}, 7
s_add_u32 s{sT2}, s{sT2}, s{sT1}
s_add_u32 s{sT2}, s{sT2}, 8192
''')
    def t_q():
        touch(sRL, 3, 16384, f'''
s_mov_b32 s{sRL}, s6
s_mov_b32 s{sRL+1}, s7
s_mov_b32 s{sRL+2}, {576*1152}
s_mov_b32 s{sRL+3}, 0x00020000
s_lshl_b32 s{sT0}, s2, 3
s_add_u32 s{sT0}, s{sT0}, s{sWAVE}
s_lshl_b32 s{sT2}, s{sT0}, 7
''')
    if 'pf1' in EXP:
        t_x(); t_w(128, 0)
    def dma_reconf():
        e.raw(f'''
v_lshrrev_b32 v{vT0}, 6, v{vL16}
v_mul_u32_u24 v{vDMA}, 9216, v{vT0}
v_lshrrev_b32 v{vT0}, 4, v{vL16}
v_xor_b32 v{vT0}, v{vT0}, v{vL16}
v_and_b32 v{vT0}, 0x20, v{vT0}
v_add_u32 v{vDMA}, v{vDMA}, v{vT0}
v_and_b32 v{vT0}, 0x10, v{vL16}
v_add_u32 v{vDMA}, v{vDMA}, v{vT0}
s_and_b32 s{sT0}, s{sWAVE}, 3
s_lshr_b32 s{sT1}, s{sWAVE}, 2
s_mul_i32 s{sWM0}, s{sT1}, 12288
s_lshl_b32 s{sT1}, s{sT0}, 10
s_add_u32 s{sWM0}, s{sWM0}, s{sT1}
s_mul_i32 s{sWSO}, s{sT0}, {16*9216}
s_lshl_b32 s{sT1}, s{sFN}, 8
s_add_u32 s{sWSO}, s{sWSO}, s{sT1}
s_bfe_u32 s{sT1}, s{sFN}, {0x10000 + SWB}
s_lshl_b32 s{sT1}, s{sT1}, 7
s_sub_u32 s{sWSO}, s{sWSO}, s{sT1}
''')
    def dma_slot(p):
        c, ph = divmod(p, 3)
        base = BUF[p] * SLOT
        items = []
        if c >= 1:
            for i in range(3):
                def f(i=i):
                    e.i(f's_add_u32 m0, s{sWM0}, {base + i * 4096}')
                    e.i(f's_add_u32 s{sT2}, s{sWSO}, {(192 * ph + 64 * i) * 9216 + 64 * (c + 1)}')
                    e.vmop(f'buffer_load_dwordx4 v{vDMA}, {sr(sW)}, s{sT2} offen lds', ('W', p))
                items.append(f)
            return items
        for i in range(3):
            def f(i=i):
                e.raw(f'''
s_and_b32 s{sT0}, s{sWAVE}, 3
s_mul_i32 s{sT2}, s{sT0}, {16*9216}
s_lshl_b32 s{sT1}, s{sFN}, 5
s_add_u32 s{sT2}, s{sT2}, s{sT1}
s_add_u32 s{sT2}, s{sT2}, {(192 * ph + 64 * i) * 9216 + 8192}
s_lshl_b32 s{sT0}, s{sT0}, 10
s_add_u32 m0, s{sT0}, {base + i * 4096}
v_and_b32 v{vT0}, 0xffffffdf, v{vDMA}
s_mov_b64 exec, {sr(sMSK, 2)}
''')
                e.vmop(f'buffer_load_dwordx4 v{vT0}, {sr(sW)}, s{sT2} offen lds', ('W', p))
                e.i('s_mov_b64 exec, -1')
            items.append(f)
        def g():
            e.raw(f'''
s_cmp_eq_u32 s{sQ+2}, {576*36}
s_cbranch_scc1 KA_S{p}K
{'s_cmp_eq_u32 s%d, 0' % (sQ+2) if 'skipq' in EXP else ''}
{'s_cbranch_scc1 KA_S%dE' % p if 'skipq' in EXP else ''}
v_lshrrev_b32 v{vT0}, 6, v{vL16}
v_mul_u32_u24 v{vT0}, 1152, v{vT0}
v_and_or_b32 v{vT0}, v{vDMA}, 48, v{vT0}
s_mul_i32 s{sT2}, s{sWAVE}, {16*1152}
s_lshl_b32 s{sT1}, s{sQI}, 6
s_add_u32 s{sT2}, s{sT2}, s{sT1}
s_add_u32 s{sT2}, s{sT2}, {192 * ph * 1152}
s_lshl_b32 s{sT0}, s{sWAVE}, 10
s_add_u32 m0, s{sT0}, {base + 12288}
s_cmp_gt_u32 s{sWAVE}, 3
buffer_load_dwordx4 v{vT0}, {sr(sQ)}, s{sT2} offen lds
s_cbranch_scc1 KA_S{p}E
s_add_u32 m0, s{sT0}, {base + 12288 + 8192}
s_add_u32 s{sT2}, s{sT2}, {128 * 1152}
buffer_load_dwordx4 v{vT0}, {sr(sQ)}, s{sT2} offen lds
s_branch KA_S{p}E
KA_S{p}K:
s_lshl_b32 s{sT1}, s{sWAVE}, 4
s_and_b32 s{sT1}, s{sT1}, 32
v_lshrrev_b32 v{vT0}, 2, v{vL16}
v_and_b32 v{vT0}, 60, v{vT0}
v_xor_b32 v{vT0}, s{sT1}, v{vT0}
v_cmp_gt_u32 vcc, 36, v{vT0}
v_mov_b32 v7, 0x7fffff00
s_mul_i32 s{sT3}, s{sWAVE}, 144
v_cndmask_b32 v{vT0}, v7, v{vT0}, vcc
v_lshrrev_b32 v7, 8, v{vL16}
v_mad_u32_u24 v{vT0}, v7, 36, v{vT0}
s_lshl_b32 s{sT0}, s{sWAVE}, 8
''')
            for i in range(6):
                e.i(f's_add_u32 m0, s{sT0}, {base + 12288 + i * 2048}')
                e.i(f's_add_u32 s{sT2}, s{sT3}, {(6 * ph + i) * 8 * 144}')
                e.i(f'buffer_load_dword v{vT0}, {sr(sQ)}, s{sT2} offen lds')
            e.label(f'KA_S{p}E')
            if 'skipq' not in EXP: e.vmcount(1, ('W', p))
        items.insert(0, g)
        return items

    FR = []
    for j in range(9):
        for ksl in range(2):
            for h in range(2):
                for b in range(4):
                    FR.append((h, b, 2 * j + ksl, b & 1, (j % 4) * 16384 + (b >> 1) * 8192 + ksl * 4096 + h * 512))
    for p in range(6):
        for ksl in range(6):
            for b in range(4):
                FR.append((2 + p // 3, b, 6 * (p % 3) + ksl, b & 1, BUF[p] * SLOT + (b >> 1) * 12288 + ksl * 2048))
    for u in range(2):
        for p in (6, 7, 8):
            for ksl in range(6):
                for mat in range(2):
                    FR.append((4, 2 * mat + u, 6 * (p % 3) + ksl, u, BUF[p] * SLOT + mat * 12288 + ksl * 2048))
    NS = 720
    sched = [[] for _ in range(NS + 1)]
    pre = [[] for _ in range(361)]
    def place(items, a, b):
        n = len(items)
        for k, it in enumerate(items):
            sched[a + (k * (b - a)) // n].append(it)

    def xread(pi):
        cgp, tb = divmod(pi, 2)
        def r0():
            if 'wst' in EXP and pi in (8, 10): e.stamp()
            e.need(vm=[('x', pi)])
            if 'wst' in EXP and pi in (8, 10): e.stamp()
            e.lgop(f'ds_read_b128 {vr(X(tb, 2 * cgp))}, v{vXR0} offset:{(pi % 5) * 2048}', ('xf', tb, 2 * cgp))
        def r1(): e.lgop(f'ds_read_b128 {vr(X(tb, 2 * cgp + 1))}, v{vXR1} offset:{(pi % 5) * 2048}', ('xf', tb, 2 * cgp + 1))
        return [r0, r1]
    XRP = ENV('XRP', 18)
    for cgp in range(1, 9):
        place(xread(2 * cgp) + xread(2 * cgp + 1), 32 * (cgp - 1) + XRP, 32 * (cgp - 1) + XRP + 4)
    place(xdma(4) + wdma1(2), 0, 8)
    place(xdma(5) + xdma(6), 8, 16)
    for cgp in range(1, 7):
        its = xdma(2 * cgp + 5) + (xdma(2 * cgp + 6) if cgp < 6 else [])
        place(its, 32 * (cgp - 1) + XRP + 8, 32 * (cgp - 1) + XRP + 24)
    place(wdma1(3), 16, 24)
    for j in range(4, 9):
        jj = j - 3 if 'lead3' in EXP else j - 2
        place(wdma1(j), 32 * jj - 4, 32 * jj + 8)
    sched[32 * 7 + 2].append(dma_reconf)
    if 'nopf2' not in EXP:
        P2 = ENV('PF2', 80)
        sched[P2].append(t_rem); sched[P2 + 40].append(t_q)
        def t_kv():
            e.i(f's_cmp_lg_u32 s{sQ+2}, {576*36}')
            e.i('s_cbranch_scc1 KA_NOTKV')
            touch(sQ, 21, 8, f's_mul_i32 s{sT2}, s{sWAVE}, {21 * 128}')
            e.vm.pop()
            e.label('KA_NOTKV')
        sched[P2 + 70].append(t_kv)
        NTC = ENV('NTC', 2)
        assert MAPPING == 0
        for k in range(NTC):
            n_ = 18 // NTC
            def t_c(k=k, n_=n_):
                touch(sW, n_, 576, f'''
s_mul_i32 s{sT0}, s{sTM}, 72
s_and_b32 s{sT1}, s{sWAVE}, 3
s_mul_i32 s{sT1}, s{sT1}, 18
s_add_u32 s{sT0}, s{sT0}, s{sT1}
s_mul_i32 s{sT2}, s{sT0}, 9216
s_lshl_b32 s{sT1}, s{sFN}, 8
s_add_u32 s{sT2}, s{sT2}, s{sT1}
s_bfe_u32 s{sT1}, s{sFN}, {0x10000 + SWB}
s_lshl_b32 s{sT1}, s{sT1}, 7
s_sub_u32 s{sT2}, s{sT2}, s{sT1}
s_add_u32 s{sT2}, s{sT2}, {128 + k * n_ * 9216}
''')
            sched[ENV('TC0', 200) + k * ENV('TCS', 30)].append(t_c)

    SX = [vCV, vCF]; SG = [vCV + 4, vCA]
    def stat_mm(tb, ks):
        return [I(f'v_mfma_f32_16x16x32_bf16 {vr(SX[tb])}, {vr(vONE)}, {vr(X(tb, ks))}, {0 if ks == 0 else vr(SX[tb])}'),
                I(f'v_mfma_f32_16x16x32_bf16 {vr(SG[tb])}, {vr(X(tb, ks))}, {vr(X(tb, ks))}, {0 if ks == 0 else vr(SG[tb])}')]
    for ks in range(18):
        a, b = stat_mm(0, ks)
        sched[16 * ks + 2].append(a); sched[16 * ks + 6].append(b)
    def stat_fin(tb):
        T0, T1 = vC[tb], vIR2[tb]
        fin = [I(f'v_mul_f32 v{vNM[tb]}, {f32(-1.0/576)}, v{SX[tb]}')]
        for r in range(4):
            m = sum(1 << (20 * g + r) for g in range(4))
            def f(r=r, m=m):
                e.i(f's_mov_b32 vcc_lo, {m & 0xffffffff:#x}')
                e.i(f's_mov_b32 vcc_hi, {m >> 32:#x}')
                e.i(f'v_cndmask_b32 v{T0}, {0 if r == 0 else "v%d" % T0}, v{SG[tb] + r}, vcc')
            fin.append(f)
        for swap in ('v_permlane32_swap_b32', 'v_permlane16_swap_b32'):
            fin += [I(f'v_mov_b32 v{T1}, v{T0}'), I('s_nop 1'), I(f'{swap} v{T1}, v{T0}'), I('s_nop 1'), I(f'v_add_f32 v{T0}, v{T1}, v{T0}')]
        fin += [I(f'v_mul_f32 v{T1}, v{vNM[tb]}, v{vNM[tb]}'), I(f'v_mul_f32 v{T0}, {f32(1.0/576)}, v{T0}'),
                I(f'v_sub_f32 v{T0}, v{T0}, v{T1}'), I(f'v_max_f32 v{T0}, 0, v{T0}'), I(f'v_add_f32 v{T1}, {f32(1e-5)}, v{T0}'),
                I(f'v_rsq_f32 v{T0}, v{T1}'), I('s_nop 0'), I(f'v_mul_f32 v{T0}, {f32(-LOG2E)}, v{T0}')]
        return fin
    place(stat_fin(0), 282, 288)

    def cs_rd(tag, off):
        def rd():
            e.lgop(f'ds_read_b64_tr_b16 {vr(vCF, 2)}, v{vCS} offset:{off}')
            e.lgop(f'ds_read_b64_tr_b16 {vr(vCF + 2, 2)}, v{vCS} offset:{off + 256}', ('cf', tag))
        return rd
    def cs_mm(tag, first):
        def d():
            e.need(lg=[('cf', tag)])
            e.i(f'v_mfma_f32_16x16x32_bf16 {vr(vCA)}, {vr(vONE)}, {vr(vCF)}, {0 if first else vr(vCA)}')
        return d
    def cs_wr(c):
        def ad():
            e.i(f'v_lshrrev_b32 v{vT0}, 2, v{vL16}')
            e.i(f's_lshl_b32 s{sT0}, s{sWAVE}, 6')
            e.i(f's_add_u32 s{sT0}, s{sT0}, {CST + c * 512}')
            e.i(f'v_add_u32 v{vT0}, s{sT0}, v{vT0}')
            e.i(f's_mov_b64 exec, 0xffff')
            e.lgop(f'ds_write_b32 v{vT0}, v{vCA}', ('cswr', c))
            e.i(f's_mov_b64 exec, -1')
        return ad
    for j in range(9):
        for ksl in range(2):
            t = 32 * j + 1 + (8 if j < 8 else 5) * ksl
            sched[t].append(cs_rd(('p', j, ksl), (j % 4) * 16384 + ksl * 4096))
            sched[t + 4].append(cs_mm(('p', j, ksl), j == 0 and ksl == 0))
    sched[32 * 8 + 16].append(cs_wr(0))
    def cs_move(p):
        d = (BUF[p] - BUF[p - 1]) * SLOT
        return I(f'v_add_u32 v{vCS}, {d & 0xffffffff:#x}, v{vCS}')
    for p in range(6):
        s0 = 288 + 48 * p
        if p: sched[s0].append(cs_move(p))
        for i in range(3):
            sched[s0 + 11 + 6 * i].append(cs_rd((p, i), i * 2048))
            sched[s0 + 16 + 6 * i].append(cs_mm((p, i), p % 3 == 0 and i == 0))
        if p % 3 == 2: sched[s0 + 34].append(cs_wr(2 + p // 3))
    t = 576 + 10
    for p in (6, 7, 8):
        sched[t - 1].append(cs_move(p))
        for i in range(3):
            sched[t].append(cs_rd((p, i), i * 2048)); sched[t + 4].append(cs_mm((p, i), p == 6 and i == 0)); t += 5
    sched[t + 5].append(cs_wr(4))

    def dbg_srd():
        e.raw(f'''
s_mov_b32 s{sRL}, s66
s_mov_b32 s{sRL+1}, s67
s_mov_b32 s{sRL+2}, 256
s_mov_b32 s{sRL+3}, 0x00020000
''')
    def z_set():
        e.raw(f'''
s_lshl_b32 s{sT0}, s2, 3
s_add_u32 s{sT0}, s{sT0}, s{sWAVE}
s_cmp_lg_u32 s{sT0}, 0
s_cbranch_scc1 KA_NOZS
''')
        dbg_srd()
        e.raw(f'''
v_mov_b32 v{vT0}, 1
s_mov_b64 exec, 1
buffer_store_dword v{vT0}, v{vL16}, {sr(sRL)}, 0 offen sc1
s_mov_b64 exec, -1
KA_NOZS:
''')
    sched[61].append(z_set)
    def spin(lbl, dst, load, tag):
        e.need(vm=[tag])
        e.raw(f'''
s_mov_b32 s{sT3}, 0x40000
{lbl}:
v_cmp_ne_u32 vcc, 1, v{dst}
s_cmp_eq_u64 vcc, 0
s_cbranch_scc1 {lbl}_OK
s_sleep {ENV('SLP', 32)}
{load}
s_waitcnt vmcnt(0)
s_sub_u32 s{sT3}, s{sT3}, 1
s_cmp_lg_u32 s{sT3}, 0
s_cbranch_scc1 {lbl}
{lbl}_OK:
''')
    ZR = ACC(1, 2, 0)
    z_ld = f'buffer_load_dword v{ZR}, v{ZR+1}, {sr(sRL)}, 0 offen sc1'
    def z_load():
        dbg_srd()
        e.i(f'v_mov_b32 v{ZR+1}, 0')
        e.vmop(z_ld, 'z')
    if 'noz' not in EXP: sched[350].append(z_load)
    if 'noz' not in EXP: sched[410].append(lambda: spin('KA_ZS', ZR, z_ld, 'z'))
    marks = {}
    def e_set(off=EF_OFF, lbl='KA_NOES'):
        e.raw(f'''
s_cmp_lg_u32 s{sWAVE}, 0
s_cbranch_scc1 {lbl}
s_lshl_b32 s{sT0}, s2, 2
s_add_u32 s{sT0}, s{sT0}, {off}
v_mov_b32 v{vT0}, 1
s_mov_b64 exec, 1
buffer_store_dword v{vT0}, v{vL16}, {sr(sWS)}, s{sT0} offen sc1
s_mov_b64 exec, -1
{lbl}:
''')
    ER = ACC(0, 1, 0)
    e_ld = f'buffer_load_dword v{ER}, v{ER+1}, {sr(sWS)}, s{sT4} offen sc1'
    def e_load():
        e.i(f's_lshl_b32 s{sT4}, s{sWAVE}, 7')
        e.i(f's_add_u32 s{sT4}, s{sT4}, {EF_OFF}')
        e.i(f'v_lshrrev_b32 v{ER+1}, 2, v{vL16}')
        e.i(f'v_and_b32 v{ER+1}, 0x7c, v{ER+1}')
        e.vmop(e_ld, 'e')
    sched[ENV('ELD', 618)].append(e_load)
    sched[644].append(lambda: spin('KA_ES', ER, e_ld, 'e'))
    def kvdma(i):
        def f():
            e.i(f's_lshl_b32 s{sT0}, s{sWAVE}, 10')
            e.i(f's_add_u32 m0, s{sT0}, {KVL0 + i * 8192}')
            e.i(f's_add_u32 s{sT2}, s{sT0}, {KV_OFF + i * 8192}')
            e.vmop(f'buffer_load_dwordx4 v{vL16}, {sr(sWS)}, s{sT2} offen sc1 lds', 'kv')
        return f
    place([kvdma(i) for i in range(9)], 648, 700)
    def qpiece(r):
        t0, t1, t2, t3 = X(0, 2), X(0, 2) + 1, X(0, 2) + 2, X(0, 2) + 3
        def f():
            e.raw(f'''
s_cmp_lt_u32 s{sWAVE}, 4
s_cbranch_scc1 KA_NOQ{r}
s_lshl_b32 s{sT0}, s{sCG}, 2
s_and_b32 s{sT1}, s{sWAVE}, 3
s_add_u32 s{sT0}, s{sT0}, s{sT1}
s_mul_i32 s{sT0}, s{sT0}, 18
s_add_u32 s{sT0}, s{sT0}, {4 * r}
s_lshl_b32 s{sT1}, s{sTG}, 12
s_add_u32 s{sT1}, s{sT1}, {Q_OFF}
v_and_b32 v{t0}, 0x1f0, v{vL16}
v_lshlrev_b32 v{t0}, 2, v{t0}
v_lshrrev_b32 v{t1}, 6, v{vL16}
v_and_b32 v{t1}, 8, v{t1}
v_add_u32 v{t1}, s{sT0}, v{t1}
v_lshrrev_b32 v{t2}, 5, v{t1}
v_lshl_add_u32 v{t2}, v{t2}, 17, v{t0}
v_and_b32 v{t3}, 12, v{t1}
v_lshl_add_u32 v{t2}, v{t3}, 2, v{t2}
v_bfe_u32 v{t3}, v{t1}, 4, 1
v_lshl_add_u32 v{t2}, v{t3}, 3, v{t2}
buffer_load_dwordx2 {vr(16 + 2 * r, 2)}, v{t2}, {sr(sWS)}, s{sT1} offen sc1
buffer_load_dwordx2 {vr(24 + 2 * r, 2)}, v{t2}, {sr(sWS)}, s{sT1} offen offset:2048 sc1
KA_NOQ{r}:
''')
        return f
    for r in range(3): sched[662 + 10 * r].append(qpiece(r))
    def qload():
        t0, t1, t2, t3 = X(0, 2), X(0, 2) + 1, X(0, 2) + 2, X(0, 2) + 3
        e.raw(f'''
s_cmp_lt_u32 s{sWAVE}, 4
s_cbranch_scc1 KA_NOQ
''')
        e.raw(f'''
s_mul_i32 s{sT0}, s{sCG}, 9
s_and_b32 s{sT2}, s{sWAVE}, 3
s_lshl_b32 s{sT1}, s{sT2}, 1
s_add_u32 s{sT1}, s{sT1}, s{sT0}
v_lshrrev_b32 v{t2}, 9, v{vL16}
v_add_u32 v{t3}, s{sT1}, v{t2}
v_lshrrev_b32 v{vOA}, 2, v{t3}
v_lshlrev_b32 v{vOA}, 12, v{vOA}
v_and_b32 v{t3}, 3, v{t3}
v_lshl_add_u32 v{vOA}, v{t3}, 8, v{vOA}
v_and_b32 v{t3}, 0x100, v{vL16}
v_lshlrev_b32 v{t3}, 2, v{t3}
v_and_or_b32 v{t3}, v{vL16}, s{sF0}, v{t3}
v_add_u32 v{vOA}, v{vOA}, v{t3}
v_lshl_add_u32 v{vOC}, v{t2}, 28, v{t3}
s_mul_i32 s{sOA}, s{sTG}, {18 * 4096}
s_add_u32 s{sOA}, s{sOA}, {O_OFF}
s_add_u32 s{sT0}, s{sT0}, 8
s_lshr_b32 s{sT1}, s{sT0}, 2
s_lshl_b32 s{sT1}, s{sT1}, 12
s_and_b32 s{sT0}, s{sT0}, 3
s_lshl_b32 s{sT0}, s{sT0}, 8
s_add_u32 s{sT1}, s{sT1}, s{sT0}
s_lshl_b32 s{sT0}, s{sT2}, 2
s_add_u32 s{sT1}, s{sT1}, s{sT0}
s_add_u32 s{sOC}, s{sT1}, s{sOA}
KA_NOQ:
v_mov_b32 v{t0}, 0
v_lshrrev_b32 v{t1}, 2, v{vL16}
v_add_u32 v{t1}, {FLG}, v{t1}
s_mov_b64 exec, 0xffff
''')
        e.lgop(f'ds_write_b32 v{t1}, v{t0}', 'flgclr')
        e.i('s_mov_b64 exec, -1')
    sched[692].append(qload)
    def rf_load():
        e.i(f's_mov_b32 s{sT4}, {RF_OFF}')
        e.vmop(f'buffer_load_dwordx4 {vr(vRF)}, v{vL16}, {sr(sWS)}, s{sT4} offen sc1', 'rf')

    RT = vCF
    def rl_dma():
        e.raw(f'''
s_lshl_b32 s{sT0}, s{sWAVE}, 8
s_add_u32 s{sT0}, s{sT0}, s2
s_mul_i32 s{sT1}, s{sT0}, 7282
s_lshr_b32 s{sT1}, s{sT1}, 16
s_mul_i32 s{sT2}, s{sT1}, 9
s_sub_u32 s{sT2}, s{sT0}, s{sT2}
s_lshl_b32 s{sRLD}, s{sT0}, 12
s_add_u32 s{sRLD}, s{sRLD}, {W2R_OFF}
s_mov_b32 s{sRL+3}, 0x00020000
s_lshl_b32 s{sT2}, s{sT2}, 7
s_lshl_b32 s{sT0}, s{sWAVE}, 12
s_add_u32 s{sT0}, s{sT0}, {XS2}
v_bfe_u32 v{RT}, v{vL16}, 7, 1
v_mul_u32_u24 v{RT}, 1152, v{RT}
v_and_b32 v{RT+1}, 0x70, v{vL16}
v_add_u32 v{RT}, v{RT}, v{RT+1}
v_bfe_u32 v{RT+1}, v{vL16}, 8, 1
v_lshrrev_b32 v{RT+2}, 9, v{vL16}
v_mul_u32_u24 v{RT+1}, 1152, v{RT+1}
v_mul_u32_u24 v{RT+2}, 1152, v{RT+2}
s_cmp_lt_u32 s{sT1}, 144
s_cbranch_scc0 KA_RLWO
s_mov_b32 s{sRL}, s20
s_mov_b32 s{sRL+1}, s21
s_mov_b32 s{sRL+2}, {4608*1152}
s_cmp_lt_u32 s{sT1}, 128
s_cselect_b32 s{sT3}, 4, 2
s_cselect_b32 s{sT4}, 4, 8
s_mul_i32 s{sT4}, s{sT4}, 1152
s_mul_i32 s{sT1}, s{sT1}, {32*1152}
s_add_u32 s{sT2}, s{sT2}, s{sT1}
v_lshl_add_u32 v{RT+3}, v{RT+1}, 1, v{RT}
v_lshl_add_u32 v{RT+3}, v{RT+2}, s{sT3}, v{RT+3}
''')
        for i in range(4):
            e.i(f's_add_u32 m0, s{sT0}, {i * 1024}')
            e.i(f's_add_u32 s{sT2}, s{sT2}, s{sT4}' if i else 's_nop 0')
            e.i(f'buffer_load_dwordx4 v{RT+3}, {sr(sRL)}, s{sT2} offen{NTR} lds')
        e.raw(f'''
s_branch KA_RLE
KA_RLWO:
s_mov_b32 s{sRL}, s12
s_mov_b32 s{sRL+1}, s13
s_cmp_lt_u32 s{sT1}, 162
s_cselect_b32 s{sRL+2}, {576*1152}, 0
s_cselect_b32 s{sRLD}, s{sRLD}, 0x7f000000
s_sub_u32 s{sT1}, s{sT1}, 144
s_lshl_b32 s{sT1}, s{sT1}, 2
''')
        for i in range(4):
            e.raw(f'''
s_add_u32 s{sT3}, s{sT1}, {i}
s_mul_i32 s{sT4}, s{sT3}, 7282
s_lshr_b32 s{sT4}, s{sT4}, 16
s_mul_i32 vcc_lo, s{sT4}, 9
s_sub_u32 s{sT3}, s{sT3}, vcc_lo
s_mul_i32 s{sT4}, s{sT4}, 72
s_lshr_b32 vcc_lo, s{sT3}, 1
s_mul_i32 vcc_lo, vcc_lo, 18
s_and_b32 vcc_hi, s{sT3}, 1
s_lshl_b32 vcc_hi, vcc_hi, 2
s_add_u32 vcc_lo, vcc_lo, vcc_hi
s_cmp_eq_u32 s{sT3}, 8
s_cselect_b32 vcc_lo, 16, vcc_lo
s_add_u32 s{sT4}, s{sT4}, vcc_lo
s_mul_i32 s{sT4}, s{sT4}, 1152
s_add_u32 s{sT4}, s{sT4}, s{sT2}
s_cmp_eq_u32 s{sT3}, 8
s_cselect_b32 vcc_lo, 18, 2
s_cselect_b32 vcc_hi, 36, 8
v_mad_u32_u24 v{RT+3}, v{RT+1}, vcc_lo, v{RT}
v_mad_u32_u24 v{RT+3}, v{RT+2}, vcc_hi, v{RT+3}
s_add_u32 m0, s{sT0}, {i * 1024}
s_nop 0
buffer_load_dwordx4 v{RT+3}, {sr(sRL)}, s{sT4} offen{NTR} lds
''')
        e.label('KA_RLE')
        e.vmcount(4, 'rl')
    sched[ENV('RLS', 515)].append(rl_dma)
    RQ = [ACC(0, 1, 0), ACC(0, 1, 1), ACC(0, 3, 0), ACC(0, 3, 1)]
    def rl_rd():
        e.need(vm=['rl'])
        e.raw(f'''
v_lshrrev_b32 v{vT0}, 8, v{vL16}
v_lshlrev_b32 v{vT0}, 10, v{vT0}
v_and_b32 v{RQ[0]}, 0xc0, v{vL16}
v_lshl_add_u32 v{vT0}, v{RQ[0]}, 1, v{vT0}
v_bfe_u32 v{RQ[0]}, v{vL16}, 4, 2
v_lshl_add_u32 v{vT0}, v{RQ[0]}, 3, v{vT0}
s_lshl_b32 s{sT0}, s{sWAVE}, 12
s_add_u32 s{sT0}, s{sT0}, {XS2}
v_add_u32 v{vT0}, s{sT0}, v{vT0}
''')
        for q in range(4):
            e.lgop(f'ds_read_b64_tr_b16 {vr(RQ[q], 2)}, v{vT0} offset:{q * 32}')
            e.lgop(f'ds_read_b64_tr_b16 {vr(RQ[q] + 2, 2)}, v{vT0} offset:{q * 32 + 512}', ('rlf', q))
    RLF = ENV('RLF', 590)
    sched[RLF].append(rl_rd)
    for q in range(4):
        def st(q=q):
            e.need(lg=[('rlf', q)])
            e.vmop(f'buffer_store_dwordx4 {vr(RQ[q])}, v{vL16}, {sr(sWS)}, s{sRLD} offen offset:{q * 1024} sc1', 'rls')
        sched[RLF + 8 + 4 * q].append(st)

    def cs_load(c, b0, b1, t0=None, t1=None):
        base = CST + (c * 512 if c >= 2 else c * 256)
        def f():
            e.i(f'v_lshrrev_b32 v{vT0}, 4, v{vL16}')
            e.i(f'v_and_b32 v{vT0}, 48, v{vT0}')
            e.i(f'v_add_u32 v{vT0}, {base}, v{vT0}')
            e.lgop(f'ds_read_b128 {vr(vCV)}, v{vT0} offset:{b0 * 64}')
            if c >= 2: e.lgop(f'ds_read_b128 {vr(t0)}, v{vT0} offset:{256 + b0 * 64}')
            e.lgop(f'ds_read_b128 {vr(vCV + 4)}, v{vT0} offset:{b1 * 64}', ('cv', c, b0))
            if c >= 2: e.lgop(f'ds_read_b128 {vr(t1)}, v{vT0} offset:{256 + b1 * 64}', ('cv', c, b0))
        def g():
            e.need(lg=[('cv', c, b0)])
            if c >= 2:
                for r in range(4): e.i(f'v_add_f32 v{vCV + r}, v{vCV + r}, v{t0 + r}')
        def h():
            if c >= 2:
                for r in range(4): e.i(f'v_add_f32 v{vCV + 4 + r}, v{vCV + 4 + r}, v{t1 + r}')
        return f, g, h
    def swiglu(c, bg, bu, tb, outs):
        buf = c & 1
        g = ACC(buf, bg, tb); u = ACC(buf, bu, tb)
        it = []
        for r in range(4): it.append(I(f'v_fma_f32 v{g + r}, v{vNM[tb]}, v{vCV + r}, v{g + r}'))
        for r in range(4): it.append(I(f'v_fma_f32 v{u + r}, v{vNM[tb]}, v{vCV + 4 + r}, v{u + r}'))
        for r in range(4): it.append(I(f'v_mul_f32 v{u + r}, v{g + r}, v{u + r}'))
        for r in range(4): it.append(I(f'v_mul_f32 v{g + r}, v{vC[tb]}, v{g + r}'))
        for r in range(4): it.append(I(f'v_exp_f32 v{g + r}, v{g + r}'))
        for r in range(4): it.append(I(f'v_fma_f32 v{g + r}, v{g + r}, v{vIR2[tb]}, v{vIR2[tb]}'))
        for r in range(4): it.append(I(f'v_rcp_f32 v{g + r}, v{g + r}'))
        for r in range(4): it.append(I(f'v_mul_f32 v{u + r}, v{g + r}, v{u + r}'))
        it.append(I(f'v_cvt_pk_bf16_f32 v{outs[0]}, v{u}, v{u + 1}'))
        it.append(I(f'v_cvt_pk_bf16_f32 v{outs[1]}, v{u + 2}, v{u + 3}'))
        return it
    def hstore(c, tb):
        def st_():
            e.i(f's_add_u32 s{sT0}, s{sHA if c < 2 else sHB}, {H_OFF + KBI[c] * 4096 + tb * 1024}')
            e.vmop(f'buffer_store_dwordx4 {vr(ACC(c & 1, 0, tb))}, v{vL16}, {sr(sWS)}, s{sT0} offen sc1', 'hs')
        return st_
    def head(c, b0, b1, s0):
        f, g, h = cs_load(c, b0, b1, vCA, vCF)
        sched[s0].append(f); sched[s0 + 5].append(g); sched[s0 + 6].append(h)
    def epi_half(c, half, with_load, tbs=(0, 1)):
        buf = c & 1
        it = []
        if with_load:
            f, g, h = cs_load(c, half, 2 + half, ACC(buf, 2, 0), ACC(buf, 2, 1))
            it += [f, NOP, NOP, NOP, NOP, g, h]
        for tb in tbs:
            o = ACC(buf, 0, tb)
            it += swiglu(c, half, 2 + half, tb, [o + 2 * half, o + 2 * half + 1])
            if half == 1: it.append(hstore(c, tb))
        return it
    def epi_special():
        it = []
        for tb in range(2):
            for b in (2, 3):
                a = ACC(0, b, tb)
                for r in range(4): it.append(I(f'v_fma_f32 v{a + r}, v{vNM[tb]}, v{vCV + 4 * (b - 2) + r}, v{a + r}'))
                def sc(a=a, tb=tb):
                    e.i(f'v_mul_f32 v{vT0}, s{sSCALE}, v{vC[tb]}')
                    for r in range(4): e.i(f'v_mul_f32 v{a + r}, v{vT0}, v{a + r}')
                it.append(sc)
                d = ACC(0, 2, tb) + 2 * (b - 2)
                it.append(I(f'v_cvt_pk_bf16_f32 v{d}, v{a}, v{a + 1}'))
                it.append(I(f'v_cvt_pk_bf16_f32 v{d + 1}, v{a + 2}, v{a + 3}'))
        def stores():
            A = lambda b, tb: ACC(0, b, tb)
            t0, t1, t2 = vCV, vCV + 1, vCV + 2
            e.raw(f'''
s_cmp_gt_u32 s{sQI}, 19
s_cbranch_scc1 KA_QKV_DONE
v_bfe_u32 v{t0}, v{vL16}, 4, 4
v_lshrrev_b32 v{t1}, 8, v{vL16}
s_lshl_b32 s{sT0}, s{sTM}, 3
s_add_u32 s{sT0}, s{sT0}, s{sWAVE}
s_cmp_lt_u32 s{sQI}, 18
s_cbranch_scc0 KA_KV
v_lshlrev_b32 v{t2}, 6, v{t0}
v_lshl_add_u32 v{t2}, v{t1}, 4, v{t2}
s_lshl_b32 s{sT1}, s{sQI}, 17
s_lshl_b32 s{sT0}, s{sT0}, 11
s_add_u32 s{sT1}, s{sT1}, s{sT0}
s_add_u32 s{sT1}, s{sT1}, {Q_OFF}
buffer_store_dwordx4 {vr(A(2,0))}, v{t2}, {sr(sWS)}, s{sT1} offen sc1
buffer_store_dwordx4 {vr(A(2,1))}, v{t2}, {sr(sWS)}, s{sT1} offen offset:1024 sc1
s_branch KA_QKV_DONE
KA_KV:
s_mul_i32 s{sT1}, s{sT0}, {REC}
s_add_u32 s{sT1}, s{sT1}, {KV_OFF}
s_mul_i32 s{sT0}, s{sWAVE}, 2048
s_add_u32 s{sT0}, s{sT0}, {4 * SLOT}
s_cmp_eq_u32 s{sQI}, 18
s_cbranch_scc0 KA_V
; K1[half=rg/2][key][ (rg%2)*8 ] , K2[key] from rg==0 lanes
v_lshrrev_b32 v{t2}, 1, v{t1}
v_lshlrev_b32 v{t2}, 9, v{t2}
v_lshl_add_u32 v{t2}, v{t0}, 4, v{t2}
v_and_b32 v{vT0}, 1, v{t1}
v_lshl_add_u32 v{t2}, v{vT0}, 3, v{t2}
v_add_u32 v{t2}, s{sT0}, v{t2}
ds_write_b64 v{t2}, {vr(A(2,0),2)}
ds_write_b64 v{t2}, {vr(A(2,1),2)} offset:256
v_lshlrev_b32 v{t2}, 2, v{t0}
v_add_u32 v{t2}, s{sT0}, v{t2}
s_mov_b64 exec, 0xffff
ds_write_b32 v{t2}, v{A(2,0)+2} offset:{K2_IN}
ds_write_b32 v{t2}, v{A(2,1)+2} offset:{K2_IN + 64}
s_mov_b64 exec, -1
s_branch KA_KVST
KA_V:
; V[kblk][half=(t/4)%2][d][j=4(t/8)+t%4] : off = half*288 + d*16 + j*2 , d = 4rg+i
s_add_u32 s{sT1}, s{sT1}, {V_IN}
v_bfe_u32 v{t2}, v{t0}, 2, 1
v_mul_u32_u24 v{t2}, 288, v{t2}
v_lshrrev_b32 v{vT0}, 3, v{t0}
v_lshl_add_u32 v{t2}, v{vT0}, 3, v{t2}
v_and_b32 v{vT0}, 3, v{t0}
v_lshl_add_u32 v{t2}, v{vT0}, 1, v{t2}
v_lshl_add_u32 v{t2}, v{t1}, 6, v{t2}
v_add_u32 v{t2}, s{sT0}, v{t2}
''')
            for tb in range(2):
                o = tb * 576
                e.i(f'ds_write_b16 v{t2}, v{A(2,tb)} offset:{o}')
                e.i(f'ds_write_b16_d16_hi v{t2}, v{A(2,tb)} offset:{o + 16}')
                e.i(f'ds_write_b16 v{t2}, v{A(2,tb)+1} offset:{o + 32}')
                e.i(f'ds_write_b16_d16_hi v{t2}, v{A(2,tb)+1} offset:{o + 48}')
            e.i('s_mov_b64 exec, 0xffff')
            for tb in range(2):
                o = tb * 576
                e.i(f'ds_write_b16 v{t2}, v{A(2,tb)+2} offset:{o + 256}')
                e.i(f'ds_write_b16_d16_hi v{t2}, v{A(2,tb)+2} offset:{o + 272}')
            e.raw(f'''
s_mov_b64 exec, -1
KA_KVST:
v_add_u32 v{t2}, s{sT0}, v{vL16}
ds_read_b128 {vr(A(2,0))}, v{t2}
ds_read_b128 {vr(A(2,1))}, v{t2} offset:1024
s_waitcnt lgkmcnt(0)
buffer_store_dwordx4 {vr(A(2,0))}, v{vL16}, {sr(sWS)}, s{sT1} offen sc1
s_mov_b64 exec, 0xff
buffer_store_dwordx4 {vr(A(2,1))}, v{vL16}, {sr(sWS)}, s{sT1} offen offset:1024 sc1
s_mov_b64 exec, -1
''')
            e.label('KA_QKV_DONE')
        it.append(stores)
        it1 = it
        it = []
        f, g, h = cs_load(2, 0, 1, ACC(0, 2, 0), ACC(0, 2, 1))
        it += [f, NOP, NOP, NOP, NOP, g, h]
        o = ACC(0, 0, 0)
        it += swiglu(2, 0, 1, 0, [o, o + 1])
        it += swiglu(2, 0, 1, 1, [o + 2, o + 3])
        def st_():
            e.raw(f'''
s_lshr_b32 s{sT0}, s{sFN}, 1
s_lshl_b32 s{sT0}, s{sT0}, 12
s_and_b32 s{sT1}, s{sFN}, 1
s_lshl_b32 s{sT1}, s{sT1}, 9
s_add_u32 s{sT0}, s{sT0}, s{sT1}
s_add_u32 s{sT0}, s{sT0}, s{sHO}
s_add_u32 s{sT0}, s{sT0}, {H_OFF + 128 * 4096}
v_permlane16_swap_b32 v{o}, v{o + 2}
v_permlane16_swap_b32 v{o + 1}, v{o + 3}
v_and_b32 v{vT0}, 0x100, v{vL16}
v_lshlrev_b32 v{vT0}, 2, v{vT0}
v_and_or_b32 v{vT0}, v{vL16}, s{sF0}, v{vT0}
v_lshrrev_b32 v{o + 4}, 1, v{vL16}
v_and_b32 v{o + 4}, 0x100, v{o + 4}
v_add_u32 v{vT0}, v{vT0}, v{o + 4}
''')
            e.vmop(f'buffer_store_dwordx4 {vr(o)}, v{vT0}, {sr(sWS)}, s{sT0} offen sc1', 'hs')
        it.append(st_)
        return it1, it
    place(epi_half(1, 0, True) + epi_half(1, 1, True), 288, 288 + 138)
    head(2, 2, 3, 432)
    sp1, sp2 = epi_special()
    place(sp1, 432 + 8, 432 + 40)
    place(sp2, 432 + 42, 432 + 138)
    sched[473].append(lambda: marks.__setitem__('e', e.mark()))
    head(3, 0, 2, 576)
    E4 = ENV('E4', 670)
    place(epi_half(3, 0, False) + epi_half(3, 1, True), 576 + 8, E4)
    head(4, 0, 2, E4)
    f, g, h = cs_load(4, 1, 3, ACC(0, 2, 0), ACC(0, 2, 1))
    place(epi_half(4, 0, False) + [f, NOP, NOP, NOP, g, h], E4 + 7, 719)

    D = NAF - 1
    def bar(vm, lg, dmas, stamp=False, span=DSP * 3, eflag=False):
        def f(n):
            e.need(vm=vm, lg=lg)
            if eflag == 1: e.need_mark(marks['e'])
            e.i('s_barrier')
            if eflag == 1: e_set()
            if eflag == 2: e_set(RF_OFF, 'KA_NORS')
            if stamp or 'allstamps' in EXP: e.stamp()
            its = [it for p in dmas for it in dma_slot(p)]
            if its: place(its, 2 * n + 2, 2 * n + 2 + span)
        return f
    for j in range(1, 9):
        lg = [('xf', 1, 17)] if j == 8 else []
        if 'lead3' in EXP and j <= 5: lg = [('af', 16 * j - 1)]
        pre[16 * j - D].append(bar([('Wp', j)], lg, [0, 1] if j == 8 else [], j % 3 == 0, span=30))
    for p in range(6):
        dm = {0: [4], 1: [5], 3: [6], 4: [7], 5: [8]}.get(p, [])
        pre[144 + 24 * (p + 1) - D].append(bar([('W', p + 1)], [('cswr', 2 + p // 3)] if p % 3 == 2 else [], dm, p % 3 == 2, span=(DSP * 3 if p < 5 else 12), eflag=int(p == 4)))
    pre[288 + 12 - D].append(bar([('W', 7)], [], []))
    pre[288 + 24 - D - 2].append(bar([('W', 8)], [], []))
    pre[288 + 36 - 1].append(bar(['rls'], [('cswr', 4)], [], True, eflag=2))

    place(dma_slot(3), 290, 326)
    cur = {0: 0, 1: 0}
    def rdA(n, r):
        c, b, ks, u, off = FR[n]
        a = vTA1 if u else vTA0
        if not (0 <= off - cur[u] <= 65535 - 256):
            nb = (off // SLOT) * SLOT
            e.i(f'v_add_u32 v{a}, {(nb - cur[u]) & 0xffffffff:#x}, v{a}')
            cur[u] = nb
        e.lgop(f'ds_read_b64_tr_b16 {vr(AF(n) + 2 * r, 2)}, v{a} offset:{off - cur[u] + r * 256}', ('af', n) if r else None)

    def window():
        e.need(lg=[('cswr', 0)])
        e.i('s_barrier')
        e.stamp()
        for it in dma_slot(2): it()
        mm = [m for ks in range(18) for m in stat_mm(1, ks)]
        va = epi_half(0, 0, True, (0,)) + epi_half(0, 1, True, (0,))
        k = 0
        for i_, m in enumerate(mm):
            m()
            while k < (i_ + 1) * (len(va) - 12) // len(mm):
                va[k](); k += 1
        e.raw(f'''
v_lshrrev_b32 v{vT0}, 8, v{vL16}
v_lshlrev_b32 v{vT0}, 9, v{vT0}
v_sub_u32 v{vTA0}, v{vTA0}, v{vT0}
v_sub_u32 v{vTA1}, v{vTA1}, v{vT0}
s_and_b32 s{sT0}, s{sWAVE}, 1
s_lshl_b32 s{sT0}, s{sT0}, 5
v_xor_b32 v{vCS}, s{sT0}, v{vTA0}
s_bfe_u32 s{sT0}, s{sWAVE}, 0x10001
s_mul_i32 s{sT0}, s{sT0}, 12288
s_lshr_b32 s{sT1}, s{sWAVE}, 2
s_mul_i32 s{sT1}, s{sT1}, 6144
s_add_u32 s{sT0}, s{sT0}, s{sT1}
s_add_u32 s{sT0}, s{sT0}, {BUF[0] * SLOT}
v_add_u32 v{vCS}, s{sT0}, v{vCS}
''')
        fin = stat_fin(1)
        rest = va[k:]
        for i_ in range(max(len(fin), len(rest))):
            if i_ < len(fin): fin[i_]()
            if i_ < len(rest): rest[i_]()
        o = ACC(0, 0, 1)
        t2 = ACC(0, 1, 1)
        for it in swiglu(0, 1, 3, 1, [t2, t2 + 1])[:8]: it()
        f, g, h = cs_load(0, 0, 2)
        f()
        for it in swiglu(0, 1, 3, 1, [t2, t2 + 1])[8:]: it()
        g()
        vb = swiglu(0, 0, 2, 1, [o, o + 1])
        for it in vb[:20]: it()
        e.need(vm=[('W', 0)])
        e.i('s_barrier')
        for n in range(144, 144 + D):
            rdA(n, 0); rdA(n, 1)
        for it in vb[20:]: it()
        e.i(f'v_mov_b32 v{o + 2}, v{t2}')
        e.i(f'v_mov_b32 v{o + 3}, v{t2 + 1}')
        hstore(0, 1)()
        e.stamp()

    e.stamp()
    for it in xread(0) + xread(1): it()
    e.need(vm=[('Wp', 0)])
    e.i('s_barrier')
    e.stamp()
    for n in range(D):
        rdA(n, 0); rdA(n, 1)
    for n in range(360):
        c, b, ks, u, off = FR[n]
        if n == 144: window()
        for f in pre[n]: f(n)
        for tb in range(2):
            e.need(lg=[('af', n)] + ([('xf', tb, ks)] if c == 0 else []))
            acc = ACC(c & 1, b, tb)
            e.i(f'v_mfma_f32_16x16x32_bf16 {vr(acc)}, {vr(AF(n))}, {vr(X(tb, ks))}, {0 if ks == 0 else vr(acc)}')
            if n + D < 360 and not (n < 144 <= n + D): rdA(n + D, tb)
            for it in sched[2 * n + tb]: it()
    e.need(vm=['kv'])
    e.drain(lg=True)
    e.i('s_barrier')
    e.raw(f'''
s_cmp_lt_u32 s{sWAVE}, 4
s_cbranch_scc1 KA_NOPR
s_setprio 1
s_branch KA_JN
KA_NOPR:
''')
    rf_load()
    e.label('KA_JN')
    e.i('s_nop 2')
    e.stamp()
    for it in epi_half(4, 1, False): it()
    e.stamp()
```

```python
class Emit:
    def __init__(self):
        self.lines = []
        self.vm = []
        self.lg = []
        self.vm_done = 0
        self.lg_done = 0
    def raw(self, s):
        for l in s.strip('\n').split('\n'):
            if not l.strip(): continue
            self.lines.append(l if l.endswith(':') or l.startswith('.') or l.startswith(';') else '    ' + l.strip())
    def i(self, s):
        self.lines.append('    ' + s)
    def label(self, s):
        self.lines.append(s + ':')
    skip_dma = False
    skip_wait = False
    def vmop(self, s, tag=None):
        if self.skip_dma and isinstance(tag, tuple) and tag[0] in ('x', 'Wp') and tag[1] >= 4: s = 's_nop 0'
        self.i(s); self.vm.append(tag)
    def vmcount(self, n, tag=None):
        self.vm += [tag] * n
    def lgop(self, s, tag=None):
        self.i(s); self.lg.append(tag)
    def _last(self, lst, tags):
        idx = -1
        for t in tags:
            found = [k for k, x in enumerate(lst) if x == t]
            assert found, f'tag {t} never issued'
            idx = max(idx, found[-1])
        return idx
    def need(self, vm=(), lg=()):
        parts = []
        if vm:
            idx = self._last(self.vm, vm)
            if idx >= self.vm_done:
                n = len(self.vm) - 1 - idx
                if n < 63 and not (self.skip_wait and isinstance(vm[0], tuple) and vm[0][0] in ('x', 'Wp') and vm[0][1] >= 2):
                    parts.append(f'vmcnt({n})')
                self.vm_done = idx + 1
        if lg:
            idx = self._last(self.lg, lg)
            if idx >= self.lg_done:
                n = len(self.lg) - 1 - idx
                n = min(n, 15)
                parts.append(f'lgkmcnt({n})')
                self.lg_done = len(self.lg) - n
        if parts:
            self.i('s_waitcnt ' + ' '.join(parts))
    def mark(self):
        return len(self.vm)
    def need_mark(self, m):
        n = len(self.vm) - m
        if n < 63: self.i(f's_waitcnt vmcnt({n})')
        self.vm_done = max(self.vm_done, m)
    def drain(self, vm=False, lg=False):
        parts = []
        if vm: parts.append('vmcnt(0)'); self.vm_done = len(self.vm)
        if lg: parts.append('lgkmcnt(0)'); self.lg_done = len(self.lg)
        self.i('s_waitcnt ' + ' '.join(parts))
    nstamp = 0
    stamps_on = False
    def stamp(self, real=False):
        if not self.stamps_on: return
        import os
        if os.environ.get('STAMPS') == 'rt': real = True
        self.i(('s_memrealtime' if real else 's_memtime') + ' s[68:69]')
        self.drain(lg=True)
        self.i(f's_mov_b32 s{70 + self.nstamp}, s68')
        self.nstamp += 1
        assert self.nstamp <= 32
    def stamp_flush(self, sWS, sWAVE, off):
        if not self.stamps_on: return
        import os
        if os.environ.get('DBGOUT'):
            lbl = 'DBGSKIP%d' % len(self.lines)
            self.i('s_lshl_b32 s68, s2, 3')
            self.i(f's_add_u32 s68, s68, s{sWAVE}')
            self.i(f's_cmp_lg_u32 s68, {int(os.environ["DBGOUT"])}')
            self.i(f's_cbranch_scc1 {lbl}')
            for k, v in enumerate(['s66', 's67', '256', '0x00020000']): self.i(f's_mov_b32 s{40 + k}, {v}')
            self.i('v_mov_b32 v1, 0')
            self.i('s_mov_b64 exec, 1')
            sel = list(range(self.nstamp - 1))[-16:]
            for j, k in enumerate(sel):
                self.i(f's_sub_u32 s68, s{70 + k}, s70')
                self.i('v_mov_b32 v2, s68')
                self.i(f'buffer_store_dword v2, v1, s[40:43], 0 offen offset:{4 * j}')
            self.i('s_mov_b64 exec, -1')
            self.label(lbl)
            return
        self.i('s_lshl_b32 s68, s2, 3')
        self.i(f's_add_u32 s68, s68, s{sWAVE}')
        self.i('s_lshl_b32 s68, s68, 7')
        self.i(f's_add_u32 s68, s68, {off}')
        self.i('v_mov_b32 v1, 0')
        self.i('s_mov_b64 exec, 1')
        for k in range(self.nstamp):
            self.i(f'v_mov_b32 v2, s{70 + k}')
            self.i(f'buffer_store_dword v2, v1, s[{sWS}:{sWS+3}], s68 offen offset:{4 * k}')
        self.i('s_mov_b64 exec, -1')
    def text(self):
        return '\n'.join(self.lines) + '\n'

def vr(a, n=4):
    return f'v[{a}:{a+n-1}]'
def sr(a, n=4):
    return f's[{a}:{a+n-1}]'
```

```python
from emit import *
from common import *
import os
EXP = os.environ.get('EXP', '').split(',')
ENV = lambda k, d: int(os.environ.get(k, d))

SLOT = 24576
XS = 3 * SLOT
XS2 = 5 * SLOT
CST = XS2 + 32768
SCR = CST + 2560
FLG = SCR + 256
TKW = FLG + 80
KA_LDS = TKW + 16
BUF = [3, 4, 1, 0, 2, 3, 1, 0, 2]

vL16, vTA0, vTA1, vCS, vDMA, vT0 = 0, 1, 2, 3, 4, 5
vCF = 8
vXG0, vXG1, vXR0, vXR1 = 12, 13, 14, 15
vNM = [12, 13]; vC = [14, 15]; vIR2 = [6, 7]
def X(tb, ks): return 16 + (ks * 2 + tb) * 4
def ACC(buf, b, tb): return 160 + buf * 32 + (b * 2 + tb) * 4
NAF = 4
def AF(n): return 224 + (n % NAF) * 4
vONE = 240; vCA = 244
vCV = 248
MAPPING = ENV('MAPPING', 0)
DSP = ENV('DSP', 16)
RLPOS = ENV('RLPOS', 0)
NTR = ' nt'
NTW = '' if 'nontw' in EXP else ' nt'
NTX = ' nt' if 'ntx' in EXP else ''
sX, sW, sQ, sWS, sRL = 24, 28, 32, 36, 40
sWAVE, sTM, sFN, sQI = 44, 45, 46, 47
sXO = [48, 49, 50, 51]
sWM0, sWSO, sT0, sT1, sXM0, sHO, sSCALE, sT2 = 52, 53, 54, 55, 56, 57, 58, 59
sT3, sT4 = 60, 61
sRLD = 62
sHF = 63
sHA, sHB = 8, 9
sF0 = 10
vOA, vOC = 36, 37
NKV = ENV('NKV', 5)
vRF = 48
sOA, sOC = 50, 51
SWB = ENV('SWB', 0)
sTG, sCG = 4, 5
sMSK = 14
KBI = {0: 0, 1: 1, 3: 2, 4: 3}

def gen_ka(e, name):
    I = lambda s: (lambda: e.i(s))
    NOP = lambda: None
    M2 = ENV('MAP2', 0)
    MAP2 = f'''s_lshr_b32 s{sTG}, s{sT1}, {3 - M2}
s_lshr_b32 s{sT2}, s{sT0}, {M2}
s_lshl_b32 s{sT2}, s{sT2}, {2 + M2}
s_add_u32 s{sTG}, s{sTG}, s{sT2}
s_and_b32 s{sCG}, s{sT1}, {(8 >> M2) - 1}
s_and_b32 s{sT0}, s{sT0}, {(1 << M2) - 1}
s_lshl_b32 s{sT0}, s{sT0}, {3 - M2}
s_add_u32 s{sCG}, s{sCG}, s{sT0}'''
    LT = 3 - MAPPING
    e.raw(f'''
.p2align 8
.globl {name}
.type {name},@function
{name}:
{'s_memrealtime s[70:71]' if STAMPS else ''}
s_cmp_ge_u32 s2, 256
s_cbranch_scc1 KB_END
s_load_dwordx8 s[4:11], s[0:1], 0
s_load_dwordx2 s[12:13], s[0:1], 32
s_load_dwordx4 s[16:19], s[0:1], 48
s_load_dwordx2 s[20:21], s[0:1], 64
s_load_dwordx2 s[22:23], s[0:1], 88
s_load_dwordx4 s[64:67], s[0:1], 72
v_lshrrev_b32 v1, 6, v0
v_and_b32 v0, 63, v0
v_readfirstlane_b32 s{sWAVE}, v1
s_getreg_b32 s{sT0}, hwreg(HW_REG_XCC_ID)
s_and_b32 s{sT0}, s{sT0}, {0 if 'onexcd' in EXP else 7}
s_lshl_b32 s{sFN}, s{sT0}, 2
s_lshr_b32 s{sT1}, s2, 6
s_add_u32 s{sFN}, s{sFN}, s{sT1}
; x DMA source: row=l/8, pos=l%8 : row*1152 + ((pos ^ (row>>1))*16)
v_lshrrev_b32 v6, 4, v0
v_and_b32 v10, 7, v0
v_xor_b32 v6, v6, v10
v_lshrrev_b32 v10, 3, v0
v_mul_u32_u24 v{vXG0}, 1152, v10
v_lshl_add_u32 v{vXG0}, v6, 4, v{vXG0}
v_xor_b32 v{vXG1}, 64, v{vXG0}
s_mul_i32 s{sXM0}, s{sWAVE}, 10240
s_add_u32 s{sXM0}, s{sXM0}, {XS}
; pass-1 W DMA source: h=l/32, row=(l%32)/4, sigma=(l%4)^(2*(w&1)) : row*9216 + h*64 + sigma*16
s_lshl_b32 s{sT1}, s{sWAVE}, 1
s_and_b32 s{sT1}, s{sT1}, 2
v_bfe_u32 v8, v0, 2, 3
v_mul_u32_u24 v{vDMA}, 9216, v8
v_and_b32 v6, 3, v0
v_xor_b32 v6, s{sT1}, v6
v_lshl_add_u32 v{vDMA}, v6, 4, v{vDMA}
v_lshrrev_b32 v6, 5, v0
v_lshl_add_u32 v{vDMA}, v6, 6, v{vDMA}
s_and_b32 s{sT0}, s{sWAVE}, 3
s_lshr_b32 s{sT1}, s{sWAVE}, 2
s_lshl_b32 s{sWM0}, s{sT1}, 13
s_lshl_b32 s{sT1}, s{sT0}, 10
s_add_u32 s{sWM0}, s{sWM0}, s{sT1}
s_mul_i32 s{sWSO}, s{sT0}, {8*9216}
s_lshl_b32 s{sT1}, s{sFN}, 8
s_add_u32 s{sWSO}, s{sWSO}, s{sT1}
s_bfe_u32 s{sT1}, s{sFN}, {0x10000 + SWB}
s_lshl_b32 s{sT1}, s{sT1}, 7
s_add_u32 s{sWSO}, s{sWSO}, s{sT1}
s_cmp_lt_u32 s{sWAVE}, 4
s_waitcnt lgkmcnt(0)
s_cselect_b32 s{sW}, s16, s18
s_cselect_b32 s{sW+1}, s17, s19
s_mov_b32 s{sRL}, s66
s_mov_b32 s{sRL+1}, s67
s_mov_b32 s{sRL+2}, 256
s_mov_b32 s{sRL+3}, 0x00020000
s_mov_b32 s{sT3}, s{sFN}
v_mov_b32 v9, 0
s_cmp_lg_u32 s{sWAVE}, 0
s_cbranch_scc1 KA_NOTK
s_mov_b64 exec, 1
s_and_b32 s{sT0}, s{sT3}, 1
s_lshl_b32 s{sT0}, s{sT0}, 7
s_lshr_b32 s{sT1}, s{sT3}, 1
s_lshl_b32 s{sT1}, s{sT1}, 2
s_add_u32 s{sT0}, s{sT0}, s{sT1}
v_mov_b32 v7, 1
buffer_atomic_add v7, v9, {sr(sRL)}, s{sT0} offen offset:4 sc0{'' if 'tkl2' in EXP else ' sc1'}
s_mov_b64 exec, -1
KA_NOTK:
s_mov_b32 s{sX}, s4
s_mov_b32 s{sX+1}, s5
s_mov_b32 s{sX+2}, {2048*1152}
s_mov_b32 s{sX+3}, 0x00020000
s_mov_b32 s{sW+2}, {576*9216}
s_mov_b32 s{sW+3}, 0x00020000
s_mov_b32 s{sWS}, s22
s_mov_b32 s{sWS+1}, s23
s_mov_b32 s{sWS+2}, {WS_BYTES}
s_mov_b32 s{sWS+3}, 0x00020000
''')
    if STAMPS: e.nstamp = 1
    e.stamp(True)
    def xdma(pi):
        cgp, tb = divmod(pi, 2)
        items = []
        for h in range(2):
            def f(h=h):
                if pi >= 5 and h == 0:
                    pc, pt = divmod(pi - 5, 2)
                    e.need(lg=[('xf', pt, 2 * pc + 1)])
                e.i(f's_add_u32 m0, s{sXM0}, {(pi % 5) * 2048 + h * 1024 - cgp * 128}')
                e.i('s_nop 0')
                e.vmop(f'buffer_load_dwordx4 v{vXG1 if h else vXG0}, {sr(sX)}, s{sXO[2 * tb + h]} offen offset:{cgp * 128}{NTX} lds', ('x', pi))
            items.append(f)
        return items
    def wdma1(j):
        items = []
        for i in range(2):
            def f(i=i):
                e.i(f's_add_u32 m0, s{sWM0}, {(j % 4) * 16384 + i * 4096}')
                e.i(f's_add_u32 s{sT2}, s{sWSO}, {(64 * j + 32 * i) * 9216}')
                e.vmop(f'buffer_load_dwordx4 v{vDMA}, {sr(sW)}, s{sT2} offen{NTW} lds', ('Wp', j))
            items.append(f)
        return items
    XT = ENV('XT', 3)
    e.raw(f'''
s_lshl_b32 s{sT0}, s2, 3
s_add_u32 s{sT0}, s{sT0}, s{sWAVE}
s_mul_i32 s{sT2}, s{sT0}, 1152
v_lshlrev_b32 v6, 7, v0
s_mov_b32 m0, {SCR}
s_mov_b64 exec, {(1 << XT) - 1}
buffer_load_dword v6, {sr(sX)}, s{sT2} offen lds
s_mov_b64 exec, -1
''')
    for it in wdma1(0) + wdma1(1): it()
    late_setup_mark = len(e.lines)
    def after_ticket():
        e.raw(f'''
s_cmp_lg_u32 s{sWAVE}, 0
s_cbranch_scc1 KA_NOTK2
s_waitcnt vmcnt(5)
s_mov_b64 exec, 1
KA_TKL:
v_readfirstlane_b32 s{sT2}, v7
s_cmp_lt_u32 s{sT2}, 8
s_cbranch_scc1 KA_TKOK
s_add_u32 s{sT3}, s{sT3}, 1
s_and_b32 s{sT3}, s{sT3}, 31
s_cmp_lg_u32 s{sT3}, s{sFN}
s_cbranch_scc1 KA_TKN
s_and_b32 s{sT3}, s2, 31
s_lshr_b32 s{sT2}, s2, 5
s_branch KA_TKOK
KA_TKN:
s_and_b32 s{sT0}, s{sT3}, 1
s_lshl_b32 s{sT0}, s{sT0}, 7
s_lshr_b32 s{sT1}, s{sT3}, 1
s_lshl_b32 s{sT1}, s{sT1}, 2
s_add_u32 s{sT0}, s{sT0}, s{sT1}
v_mov_b32 v7, 1
buffer_atomic_add v7, v9, {sr(sRL)}, s{sT0} offen offset:4 sc0{'' if 'tkl2' in EXP else ' sc1'}
s_waitcnt vmcnt(0)
s_branch KA_TKL
KA_TKOK:
s_lshl_b32 s{sT2}, s{sT2}, 5
s_add_u32 s{sT2}, s{sT2}, s{sT3}
v_mov_b32 v7, s{sT2}
ds_write_b32 v10, v7
s_waitcnt lgkmcnt(0)
s_mov_b64 exec, -1
KA_NOTK2:
s_barrier
ds_read_b32 v7, v10
s_waitcnt lgkmcnt(0)
v_readfirstlane_b32 s{sT2}, v7
s_lshr_b32 s{sTM}, s{sT2}, 5
s_and_b32 s{sT2}, s{sT2}, 31
s_cmp_eq_u32 s{sT2}, s{sFN}
s_cbranch_scc1 KA_FNOK
s_mov_b32 s{sFN}, s{sT2}
s_and_b32 s{sT0}, s{sWAVE}, 3
s_mul_i32 s{sWSO}, s{sT0}, {8*9216}
s_lshl_b32 s{sT1}, s{sFN}, 8
s_add_u32 s{sWSO}, s{sWSO}, s{sT1}
s_bfe_u32 s{sT1}, s{sFN}, {0x10000 + SWB}
s_lshl_b32 s{sT1}, s{sT1}, 7
s_add_u32 s{sWSO}, s{sWSO}, s{sT1}
s_waitcnt vmcnt(0)
''')
        sv = list(e.vm)
        for it in wdma1(0) + wdma1(1): it()
        e.vm = sv
        e.raw(f'''
KA_FNOK:
s_lshl_b32 s{sT0}, s{sTM}, 3
s_add_u32 s{sT0}, s{sT0}, s{sWAVE}
s_mul_i32 s{sXO[0]}, s{sT0}, {32*1152}
s_add_u32 s{sXO[1]}, s{sXO[0]}, {8*1152}
s_add_u32 s{sXO[2]}, s{sXO[0]}, {16*1152}
s_add_u32 s{sXO[3]}, s{sXO[0]}, {24*1152}
''')
        if 'pst' in EXP: e.stamp()
        for pi in range(4):
            for it in xdma(pi): it()
        if 'pst' in EXP: e.stamp()
    e.raw(f'''
s_mov_b32 s{sMSK}, 0x33333333
s_mov_b32 s{sMSK+1}, 0xcccccccc
s_cmp_lt_u32 s{sWAVE}, 4
s_cbranch_scc1 KA_MSK
s_not_b64 {sr(sMSK, 2)}, {sr(sMSK, 2)}
{'s_setprio 1' if 'prio' in EXP else ''}
KA_MSK:
{'s_setprio 1' if 'prioall' in EXP else ''}
; pass-1 tr-read base: g=l/16,i=l%16: g*1024 + (g&1)*32 + (i/4)*64 + (i%4)*8
v_lshrrev_b32 v6, 4, v0
v_lshlrev_b32 v{vTA0}, 10, v6
v_and_b32 v6, 1, v6
v_lshl_add_u32 v{vTA0}, v6, 5, v{vTA0}
v_bfe_u32 v6, v0, 2, 2
v_lshl_add_u32 v{vTA0}, v6, 6, v{vTA0}
v_and_b32 v6, 3, v0
v_lshl_add_u32 v{vTA0}, v6, 3, v{vTA0}
v_xor_b32 v{vTA1}, 32, v{vTA0}
s_and_b32 s{sT0}, s{sWAVE}, 1
s_lshl_b32 s{sT0}, s{sT0}, 5
v_xor_b32 v{vCS}, s{sT0}, v{vTA0}
s_bfe_u32 s{sT0}, s{sWAVE}, 0x10001
s_lshl_b32 s{sT0}, s{sT0}, 13
s_lshr_b32 s{sT1}, s{sWAVE}, 2
s_lshl_b32 s{sT1}, s{sT1}, 9
s_add_u32 s{sT0}, s{sT0}, s{sT1}
v_add_u32 v{vCS}, s{sT0}, v{vCS}
; x staging read addr: t=l%16, kg=l/16: base + t*128 + ((kg ^ (t>>1))*16)
v_bfe_u32 v6, v0, 1, 3
v_lshrrev_b32 v10, 4, v0
v_xor_b32 v6, v6, v10
v_lshlrev_b32 v6, 4, v6
v_and_b32 v10, 15, v0
v_lshl_add_u32 v6, v10, 7, v6
v_add_u32 v{vXR0}, s{sXM0}, v6
v_xor_b32 v{vXR1}, 64, v{vXR0}
v_mov_b32 v{vONE}, 0x3f803f80
v_mov_b32 v{vONE+1}, 0x3f803f80
v_mov_b32 v{vONE+2}, 0x3f803f80
v_mov_b32 v{vONE+3}, 0x3f803f80
v_mov_b32 v10, {TKW}
''')
    after_ticket()
    e.raw(f'''
s_and_b32 s{sT1}, s{sFN}, 3
s_lshl_b32 s{sQI}, s{sT1}, 3
s_lshr_b32 s{sT1}, s{sFN}, 2
s_xor_b32 s{sT1}, s{sT1}, 4
s_add_u32 s{sQI}, s{sQI}, s{sT1}
; H store base: ((tg*144)*4 + 2*(w%2))*1024, tg = (8tm+w)/2
s_lshl_b32 s{sT0}, s{sTM}, 3
s_add_u32 s{sT0}, s{sT0}, s{sWAVE}
s_lshr_b32 s{sT1}, s{sT0}, 1
s_mul_i32 s{sHO}, s{sT1}, {144*4096}
s_and_b32 s{sT1}, s{sWAVE}, 1
s_lshl_b32 s{sT1}, s{sT1}, 11
s_add_u32 s{sHO}, s{sHO}, s{sT1}
s_mov_b32 s{sQ}, s6
s_mov_b32 s{sQ+1}, s7
s_mov_b32 s{sQ+2}, {576*1152}
s_mov_b32 s{sQ+3}, 0x00020000
s_mov_b32 s{sSCALE}, {f32(-QSCALE / LOG2E)}
s_cmp_lt_u32 s{sQI}, 18
s_cbranch_scc1 KA_ROLE_DONE
s_mov_b32 s{sSCALE}, {f32(-1.0 / LOG2E)}
s_mov_b32 s{sQ+2}, 0
s_cmp_gt_u32 s{sQI}, 19
s_cbranch_scc1 KA_ROLE_DONE
s_cmp_eq_u32 s{sQI}, 18
s_cselect_b32 s{sQ}, s8, s10
s_cselect_b32 s{sQ+1}, s9, s11
s_mov_b32 s{sQ+2}, {576*36}
KA_ROLE_DONE:
s_lshr_b32 s{sT2}, s{sT0}, 1
s_lshl_b32 s{sHF}, s{sT2}, 8
s_lshl_b32 s{sT2}, s{sFN}, 3
s_add_u32 s{sHF}, s{sHF}, s{sT2}
s_lshr_b32 s{sT1}, s{sT1}, 9
s_add_u32 s{sHF}, s{sHF}, s{sT1}
s_add_u32 s{sHF}, s{sHF}, {HF_OFF}
s_lshl_b32 s{sT2}, s{sFN}, 14
s_add_u32 s{sHA}, s{sHO}, s{sT2}
s_bfe_u32 s{sT1}, s{sFN}, {0x10000 + SWB}
s_lshl_b32 s{sT1}, s{sT1}, 13
s_sub_u32 s{sHB}, s{sHA}, s{sT1}
s_add_u32 s{sHA}, s{sHA}, s{sT1}
s_lshr_b32 s{sTG}, s{sTM}, 1
s_and_b32 s{sT0}, s{sFN}, 28
s_add_u32 s{sTG}, s{sTG}, s{sT0}
s_and_b32 s{sCG}, s{sTM}, 1
s_lshl_b32 s{sCG}, s{sCG}, 2
s_and_b32 s{sT0}, s{sFN}, 3
s_add_u32 s{sCG}, s{sCG}, s{sT0}
s_mov_b32 s{sF0}, 0xf0
s_cmp_lg_u32 s2, 0
s_cbranch_scc1 KA_NOZ
s_mul_i32 s{sT0}, s{sWAVE}, 3072
s_add_u32 s{sT0}, s{sT0}, {FLAG_OFF}
v_lshlrev_b32 v6, 4, v0
v_mov_b32 v8, 0
v_mov_b32 v9, 0
v_mov_b32 v10, 0
v_mov_b32 v11, 0
buffer_store_dwordx4 v[8:11], v6, {sr(sWS)}, s{sT0} offen sc1
buffer_store_dwordx4 v[8:11], v6, {sr(sWS)}, s{sT0} offen offset:1024 sc1
buffer_store_dwordx4 v[8:11], v6, {sr(sWS)}, s{sT0} offen offset:2048 sc1
KA_NOZ:
v_lshlrev_b32 v{vL16}, 4, v0
''')

    def o_init():
        e.raw(f'''
s_mul_i32 s{sT0}, s2, 9216
s_lshl_b32 s{sT1}, s{sWAVE}, 10
s_add_u32 s{sT0}, s{sT0}, s{sT1}
s_add_u32 s{sT0}, s{sT0}, {O_OFF}
v_mov_b32 v{ACC(1, 3, 1)}, -1
v_mov_b32 v{ACC(1, 3, 1)+1}, -1
v_mov_b32 v{ACC(1, 3, 1)+2}, -1
v_mov_b32 v{ACC(1, 3, 1)+3}, -1
s_cmp_lg_u32 s{sWAVE}, 7
buffer_store_dwordx4 {vr(ACC(1, 3, 1))}, v{vL16}, {sr(sWS)}, s{sT0} offen sc1
s_cbranch_scc1 KA_NOO
buffer_store_dwordx4 {vr(ACC(1, 3, 1))}, v{vL16}, {sr(sWS)}, s{sT0} offen offset:1024 sc1
KA_NOO:
''')
        e.vmcount(1, 'oi')
    o_init()
    def touch(srd, nl, vmul, soff_code):
        e.raw(soff_code)
        e.i(f'v_mul_u32_u24 v{vT0}, {vmul}, v{vL16}')
        e.i(f's_mov_b32 m0, {SCR}')
        e.i(f's_mov_b64 exec, {(1 << nl) - 1:#x}')
        e.vmop(f'buffer_load_dword v{vT0}, {sr(srd)}, s{sT2} offen lds')
        e.i('s_mov_b64 exec, -1')
    GP = f'''
s_lshl_b32 s{sT0}, s2, 2
s_and_b32 s{sT1}, s{sWAVE}, 3
s_add_u32 s{sT0}, s{sT0}, s{sT1}
'''
    def t_x(c0=2):
        touch(sX, 9 - c0, 8, f'''
s_lshl_b32 s{sT0}, s2, 3
s_add_u32 s{sT0}, s{sT0}, s{sWAVE}
s_mul_i32 s{sT2}, s{sT0}, 1152
s_add_u32 s{sT2}, s{sT2}, {c0 * 128}
''')
    def t_w(row0, line):
        touch(sW, (576 - row0) // 32, 2 * 9216, GP + f'''
s_lshr_b32 s{sT1}, s{sT0}, 5
s_mul_i32 s{sT2}, s{sT1}, 9216
s_and_b32 s{sT1}, s{sT0}, 31
s_lshl_b32 s{sT1}, s{sT1}, 8
s_add_u32 s{sT2}, s{sT2}, s{sT1}
s_add_u32 s{sT2}, s{sT2}, {row0 * 9216 + line * 128}
''')
    def t_rem():
        touch(sW, 5, 8 * 9216, GP + f'''
s_lshr_b32 s{sT1}, s{sT0}, 3
s_mul_i32 s{sT2}, s{sT1}, 9216
s_and_b32 s{sT1}, s{sT0}, 7
s_lshl_b32 s{sT1}, s{sT1}, 7
s_add_u32 s{sT2}, s{sT2}, s{sT1}
s_add_u32 s{sT2}, s{sT2}, 8192
''')
    def t_q():
        touch(sRL, 3, 16384, f'''
s_mov_b32 s{sRL}, s6
s_mov_b32 s{sRL+1}, s7
s_mov_b32 s{sRL+2}, {576*1152}
s_mov_b32 s{sRL+3}, 0x00020000
s_lshl_b32 s{sT0}, s2, 3
s_add_u32 s{sT0}, s{sT0}, s{sWAVE}
s_lshl_b32 s{sT2}, s{sT0}, 7
''')
    if 'pf1' in EXP:
        t_x(); t_w(128, 0)
    def dma_reconf():
        e.raw(f'''
v_lshrrev_b32 v{vT0}, 6, v{vL16}
v_mul_u32_u24 v{vDMA}, 9216, v{vT0}
v_lshrrev_b32 v{vT0}, 4, v{vL16}
v_xor_b32 v{vT0}, v{vT0}, v{vL16}
v_and_b32 v{vT0}, 0x20, v{vT0}
v_add_u32 v{vDMA}, v{vDMA}, v{vT0}
v_and_b32 v{vT0}, 0x10, v{vL16}
v_add_u32 v{vDMA}, v{vDMA}, v{vT0}
s_and_b32 s{sT0}, s{sWAVE}, 3
s_lshr_b32 s{sT1}, s{sWAVE}, 2
s_mul_i32 s{sWM0}, s{sT1}, 12288
s_lshl_b32 s{sT1}, s{sT0}, 10
s_add_u32 s{sWM0}, s{sWM0}, s{sT1}
s_mul_i32 s{sWSO}, s{sT0}, {16*9216}
s_lshl_b32 s{sT1}, s{sFN}, 8
s_add_u32 s{sWSO}, s{sWSO}, s{sT1}
s_bfe_u32 s{sT1}, s{sFN}, {0x10000 + SWB}
s_lshl_b32 s{sT1}, s{sT1}, 7
s_sub_u32 s{sWSO}, s{sWSO}, s{sT1}
''')
    def dma_slot(p):
        c, ph = divmod(p, 3)
        base = BUF[p] * SLOT
        items = []
        if c >= 1:
            for i in range(3):
                def f(i=i):
                    e.i(f's_add_u32 m0, s{sWM0}, {base + i * 4096}')
                    e.i(f's_add_u32 s{sT2}, s{sWSO}, {(192 * ph + 64 * i) * 9216 + 64 * (c + 1)}')
                    e.vmop(f'buffer_load_dwordx4 v{vDMA}, {sr(sW)}, s{sT2} offen lds', ('W', p))
                items.append(f)
            return items
        for i in range(3):
            def f(i=i):
                e.raw(f'''
s_and_b32 s{sT0}, s{sWAVE}, 3
s_mul_i32 s{sT2}, s{sT0}, {16*9216}
s_lshl_b32 s{sT1}, s{sFN}, 5
s_add_u32 s{sT2}, s{sT2}, s{sT1}
s_add_u32 s{sT2}, s{sT2}, {(192 * ph + 64 * i) * 9216 + 8192}
s_lshl_b32 s{sT0}, s{sT0}, 10
s_add_u32 m0, s{sT0}, {base + i * 4096}
v_and_b32 v{vT0}, 0xffffffdf, v{vDMA}
s_mov_b64 exec, {sr(sMSK, 2)}
''')
                e.vmop(f'buffer_load_dwordx4 v{vT0}, {sr(sW)}, s{sT2} offen lds', ('W', p))
                e.i('s_mov_b64 exec, -1')
            items.append(f)
        def g():
            e.raw(f'''
s_cmp_eq_u32 s{sQ+2}, {576*36}
s_cbranch_scc1 KA_S{p}K
{'s_cmp_eq_u32 s%d, 0' % (sQ+2) if 'skipq' in EXP else ''}
{'s_cbranch_scc1 KA_S%dE' % p if 'skipq' in EXP else ''}
v_lshrrev_b32 v{vT0}, 6, v{vL16}
v_mul_u32_u24 v{vT0}, 1152, v{vT0}
v_and_or_b32 v{vT0}, v{vDMA}, 48, v{vT0}
s_mul_i32 s{sT2}, s{sWAVE}, {16*1152}
s_lshl_b32 s{sT1}, s{sQI}, 6
s_add_u32 s{sT2}, s{sT2}, s{sT1}
s_add_u32 s{sT2}, s{sT2}, {192 * ph * 1152}
s_lshl_b32 s{sT0}, s{sWAVE}, 10
s_add_u32 m0, s{sT0}, {base + 12288}
s_cmp_gt_u32 s{sWAVE}, 3
buffer_load_dwordx4 v{vT0}, {sr(sQ)}, s{sT2} offen lds
s_cbranch_scc1 KA_S{p}E
s_add_u32 m0, s{sT0}, {base + 12288 + 8192}
s_add_u32 s{sT2}, s{sT2}, {128 * 1152}
buffer_load_dwordx4 v{vT0}, {sr(sQ)}, s{sT2} offen lds
s_branch KA_S{p}E
KA_S{p}K:
s_lshl_b32 s{sT1}, s{sWAVE}, 4
s_and_b32 s{sT1}, s{sT1}, 32
v_lshrrev_b32 v{vT0}, 2, v{vL16}
v_and_b32 v{vT0}, 60, v{vT0}
v_xor_b32 v{vT0}, s{sT1}, v{vT0}
v_cmp_gt_u32 vcc, 36, v{vT0}
v_mov_b32 v7, 0x7fffff00
s_mul_i32 s{sT3}, s{sWAVE}, 144
v_cndmask_b32 v{vT0}, v7, v{vT0}, vcc
v_lshrrev_b32 v7, 8, v{vL16}
v_mad_u32_u24 v{vT0}, v7, 36, v{vT0}
s_lshl_b32 s{sT0}, s{sWAVE}, 8
''')
            for i in range(6):
                e.i(f's_add_u32 m0, s{sT0}, {base + 12288 + i * 2048}')
                e.i(f's_add_u32 s{sT2}, s{sT3}, {(6 * ph + i) * 8 * 144}')
                e.i(f'buffer_load_dword v{vT0}, {sr(sQ)}, s{sT2} offen lds')
            e.label(f'KA_S{p}E')
            if 'skipq' not in EXP: e.vmcount(1, ('W', p))
        items.insert(0, g)
        return items

    FR = []
    p1 = [(j, ksl, h) for j in range(7) for ksl in range(2) for h in range(2)]
    p1 += [(j, ksl, h) for h in range(2) for j in (7, 8) for ksl in range(2)]
    for j, ksl, h in p1:
        for b in range(4):
            FR.append((h, b, 2 * j + ksl, b & 1, (j % 4) * 16384 + (b >> 1) * 8192 + ksl * 4096 + h * 512))
    for p in range(6):
        for ksl in range(6):
            for b in range(4):
                FR.append((2 + p // 3, b, 6 * (p % 3) + ksl, b & 1, BUF[p] * SLOT + (b >> 1) * 12288 + ksl * 2048))
    for u in range(2):
        for p in (6, 7, 8):
            for ksl in range(6):
                for mat in range(2):
                    FR.append((4, 2 * mat + u, 6 * (p % 3) + ksl, u, BUF[p] * SLOT + mat * 12288 + ksl * 2048))
    NS = 720
    sched = [[] for _ in range(NS + 1)]
    pre = [[] for _ in range(361)]
    def place(items, a, b):
        n = len(items)
        for k, it in enumerate(items):
            sched[a + (k * (b - a)) // n].append(it)

    def xread(pi):
        cgp, tb = divmod(pi, 2)
        def r0():
            if 'wst' in EXP and pi in (8, 10): e.stamp()
            e.need(vm=[('x', pi)])
            if 'wst' in EXP and pi in (8, 10): e.stamp()
            e.lgop(f'ds_read_b128 {vr(X(tb, 2 * cgp))}, v{vXR0} offset:{(pi % 5) * 2048}', ('xf', tb, 2 * cgp))
        def r1(): e.lgop(f'ds_read_b128 {vr(X(tb, 2 * cgp + 1))}, v{vXR1} offset:{(pi % 5) * 2048}', ('xf', tb, 2 * cgp + 1))
        return [r0, r1]
    XRP = ENV('XRP', 18)
    XD0 = ENV('XD0', 0); XDW = ENV('XDW', 24); WD0 = ENV('WD0', 3); WDW = ENV('WDW', 24)
    for cgp in range(1, 9):
        a_ = 32 * (cgp - 1) + XRP if cgp < 8 else 226
        place(xread(2 * cgp) + xread(2 * cgp + 1), a_, a_ + 4)
    place(xdma(4) + wdma1(2), 0, 8)
    place(xdma(5) + xdma(6), 8, 16)
    for cgp in range(1, 7):
        its = xdma(2 * cgp + 5) + (xdma(2 * cgp + 6) if cgp < 6 else [])
        if cgp < 6: place(its, 32 * cgp + XD0, 32 * cgp + XD0 + XDW)
        else: place(its, 32 * 5 + XRP + 8, 32 * 5 + XRP + 12)
    place(wdma1(3), 16, 24)
    for j in range(4, 9):
        jj = j - 3 if 'lead3' in EXP else j - 2
        if j < 8: place(wdma1(j), 32 * jj + WD0, 32 * jj + WD0 + WDW)
        else: place(wdma1(j), 32 * jj - 4, 32 * jj + 2)
    sched[222].append(dma_reconf)
    if 'nopf2' not in EXP:
        P2 = ENV('PF2', 80)
        sched[P2].append(t_rem); sched[P2 + 40].append(t_q)
        def t_kv():
            e.i(f's_cmp_lg_u32 s{sQ+2}, {576*36}')
            e.i('s_cbranch_scc1 KA_NOTKV')
            touch(sQ, 21, 8, f's_mul_i32 s{sT2}, s{sWAVE}, {21 * 128}')
            e.vm.pop()
            e.label('KA_NOTKV')
        sched[P2 + 70].append(t_kv)
        NTC = ENV('NTC', 2)
        assert MAPPING == 0
        for k in range(NTC):
            n_ = 18 // NTC
            def t_c(k=k, n_=n_):
                touch(sW, n_, 576, f'''
s_mul_i32 s{sT0}, s{sTM}, 72
s_and_b32 s{sT1}, s{sWAVE}, 3
s_mul_i32 s{sT1}, s{sT1}, 18
s_add_u32 s{sT0}, s{sT0}, s{sT1}
s_mul_i32 s{sT2}, s{sT0}, 9216
s_lshl_b32 s{sT1}, s{sFN}, 8
s_add_u32 s{sT2}, s{sT2}, s{sT1}
s_bfe_u32 s{sT1}, s{sFN}, {0x10000 + SWB}
s_lshl_b32 s{sT1}, s{sT1}, 7
s_sub_u32 s{sT2}, s{sT2}, s{sT1}
s_add_u32 s{sT2}, s{sT2}, {128 + k * n_ * 9216}
''')
            sched[ENV('TC0', 180) + k * ENV('TCS', 30)].append(t_c)

    SX = [vCV, vCF]; SG = [vCV + 4, vCA]
    def stat_mm(tb, ks):
        return [I(f'v_mfma_f32_16x16x32_bf16 {vr(SX[tb])}, {vr(vONE)}, {vr(X(tb, ks))}, {0 if ks == 0 else vr(SX[tb])}'),
                I(f'v_mfma_f32_16x16x32_bf16 {vr(SG[tb])}, {vr(X(tb, ks))}, {vr(X(tb, ks))}, {0 if ks == 0 else vr(SG[tb])}')]
    for ks in range(18):
        a, b = stat_mm(0, ks)
        t_ = 16 * ks if ks < 14 else 224 + 8 * (ks - 14)
        sched[t_ + 2].append(a); sched[t_ + 4].append(b)
    def stat_fin(tb):
        T0, T1 = vC[tb], vIR2[tb]
        fin = [I(f'v_mul_f32 v{vNM[tb]}, {f32(-1.0/576)}, v{SX[tb]}')]
        for r in range(4):
            m = sum(1 << (20 * g + r) for g in range(4))
            def f(r=r, m=m):
                e.i(f's_mov_b32 vcc_lo, {m & 0xffffffff:#x}')
                e.i(f's_mov_b32 vcc_hi, {m >> 32:#x}')
                e.i(f'v_cndmask_b32 v{T0}, {0 if r == 0 else "v%d" % T0}, v{SG[tb] + r}, vcc')
            fin.append(f)
        for swap in ('v_permlane32_swap_b32', 'v_permlane16_swap_b32'):
            fin += [I(f'v_mov_b32 v{T1}, v{T0}'), I('s_nop 1'), I(f'{swap} v{T1}, v{T0}'), I('s_nop 1'), I(f'v_add_f32 v{T0}, v{T1}, v{T0}')]
        fin += [I(f'v_mul_f32 v{T1}, v{vNM[tb]}, v{vNM[tb]}'), I(f'v_mul_f32 v{T0}, {f32(1.0/576)}, v{T0}'),
                I(f'v_sub_f32 v{T0}, v{T0}, v{T1}'), I(f'v_max_f32 v{T0}, 0, v{T0}'), I(f'v_add_f32 v{T1}, {f32(1e-5)}, v{T0}'),
                I(f'v_rsq_f32 v{T0}, v{T1}'), I('s_nop 0'), I(f'v_mul_f32 v{T0}, {f32(-LOG2E)}, v{T0}')]
        return fin

    def cs_rd(tag, off):
        def rd():
            e.lgop(f'ds_read_b64_tr_b16 {vr(vCF, 2)}, v{vCS} offset:{off}')
            e.lgop(f'ds_read_b64_tr_b16 {vr(vCF + 2, 2)}, v{vCS} offset:{off + 256}', ('cf', tag))
        return rd
    def cs_mm(tag, first):
        def d():
            e.need(lg=[('cf', tag)])
            e.i(f'v_mfma_f32_16x16x32_bf16 {vr(vCA)}, {vr(vONE)}, {vr(vCF)}, {0 if first else vr(vCA)}')
        return d
    def cs_wr(c):
        def ad():
            e.i(f'v_lshrrev_b32 v{vT0}, 2, v{vL16}')
            e.i(f's_lshl_b32 s{sT0}, s{sWAVE}, 6')
            e.i(f's_add_u32 s{sT0}, s{sT0}, {CST + c * 512}')
            e.i(f'v_add_u32 v{vT0}, s{sT0}, v{vT0}')
            e.i(f's_mov_b64 exec, 0xffff')
            e.lgop(f'ds_write_b32 v{vT0}, v{vCA}', ('cswr', c))
            e.i(f's_mov_b64 exec, -1')
        return ad
    for j in range(9):
        for ksl in range(2):
            t = 32 * j + 1 + 8 * ksl if j < 7 else 224 + 11 * (j - 7) + 5 * ksl
            sched[t].append(cs_rd(('p', j, ksl), (j % 4) * 16384 + ksl * 4096))
            sched[t + 4].append(cs_mm(('p', j, ksl), j == 0 and ksl == 0))
    sched[250].append(cs_wr(0))
    def cs_move(p):
        d = (BUF[p] - BUF[p - 1]) * SLOT
        return I(f'v_add_u32 v{vCS}, {d & 0xffffffff:#x}, v{vCS}')
    for p in range(6):
        s0 = 288 + 48 * p
        if p: sched[s0].append(cs_move(p))
        for i in range(3):
            sched[s0 + 11 + 6 * i].append(cs_rd((p, i), i * 2048))
            sched[s0 + 16 + 6 * i].append(cs_mm((p, i), p % 3 == 0 and i == 0))
        if p % 3 == 2: sched[s0 + 34].append(cs_wr(2 + p // 3))
    t = 576 + 10
    for p in (6, 7, 8):
        sched[t - 1].append(cs_move(p))
        for i in range(3):
            sched[t].append(cs_rd((p, i), i * 2048)); sched[t + 4].append(cs_mm((p, i), p == 6 and i == 0)); t += 5
    sched[t + 5].append(cs_wr(4))

    def dbg_srd():
        e.raw(f'''
s_mov_b32 s{sRL}, s66
s_mov_b32 s{sRL+1}, s67
s_mov_b32 s{sRL+2}, 256
s_mov_b32 s{sRL+3}, 0x00020000
''')
    def z_set():
        e.raw(f'''
s_lshl_b32 s{sT0}, s2, 3
s_add_u32 s{sT0}, s{sT0}, s{sWAVE}
s_cmp_lg_u32 s{sT0}, 0
s_cbranch_scc1 KA_NOZS
''')
        dbg_srd()
        e.raw(f'''
v_mov_b32 v{vT0}, 1
s_mov_b64 exec, 1
buffer_store_dword v{vT0}, v{vL16}, {sr(sRL)}, 0 offen sc1
s_mov_b64 exec, -1
KA_NOZS:
''')
    sched[61].append(z_set)
    def spin(lbl, dst, load, tag):
        e.need(vm=[tag])
        e.raw(f'''
s_mov_b32 s{sT3}, 0x40000
{lbl}:
v_cmp_ne_u32 vcc, 1, v{dst}
s_cmp_eq_u64 vcc, 0
s_cbranch_scc1 {lbl}_OK
s_sleep {ENV('SLP', 32)}
{load}
s_waitcnt vmcnt(0)
s_sub_u32 s{sT3}, s{sT3}, 1
s_cmp_lg_u32 s{sT3}, 0
s_cbranch_scc1 {lbl}
{lbl}_OK:
''')
    ZR = ACC(1, 2, 0)
    z_ld = f'buffer_load_dword v{ZR}, v{ZR+1}, {sr(sRL)}, 0 offen sc1'
    def z_load():
        dbg_srd()
        e.i(f'v_mov_b32 v{ZR+1}, 0')
        e.vmop(z_ld, 'z')
    if 'noz' not in EXP: sched[350].append(z_load)
    if 'noz' not in EXP: sched[410].append(lambda: spin('KA_ZS', ZR, z_ld, 'z'))
    marks = {}
    def e_set(off=EF_OFF, lbl='KA_NOES'):
        e.raw(f'''
s_cmp_lg_u32 s{sWAVE}, 0
s_cbranch_scc1 {lbl}
s_lshl_b32 s{sT0}, s2, 2
s_add_u32 s{sT0}, s{sT0}, {off}
v_mov_b32 v{vT0}, 1
s_mov_b64 exec, 1
buffer_store_dword v{vT0}, v{vL16}, {sr(sWS)}, s{sT0} offen sc1
s_mov_b64 exec, -1
{lbl}:
''')
    ER = ACC(0, 1, 0)
    e_ld = f'buffer_load_dword v{ER}, v{ER+1}, {sr(sWS)}, s{sT4} offen sc1'
    def e_load():
        e.i(f's_lshl_b32 s{sT4}, s{sWAVE}, 7')
        e.i(f's_add_u32 s{sT4}, s{sT4}, {EF_OFF}')
        e.i(f'v_lshrrev_b32 v{ER+1}, 2, v{vL16}')
        e.i(f'v_and_b32 v{ER+1}, 0x7c, v{ER+1}')
        e.vmop(e_ld, 'e')
    sched[ENV('ELD', 618)].append(e_load)
    sched[644].append(lambda: spin('KA_ES', ER, e_ld, 'e'))
    def kvdma(i):
        def f():
            e.i(f's_lshl_b32 s{sT0}, s{sWAVE}, 10')
            e.i(f's_add_u32 m0, s{sT0}, {KVL0 + i * 8192}')
            e.i(f's_add_u32 s{sT2}, s{sT0}, {KV_OFF + i * 8192}')
            e.vmop(f'buffer_load_dwordx4 v{vL16}, {sr(sWS)}, s{sT2} offen sc1 lds', 'kv')
        return f
    place([kvdma(i) for i in range(NKV)], 647, 680)
    def qpiece(r):
        t0, t1, t2, t3 = X(0, 2), X(0, 2) + 1, X(0, 2) + 2, X(0, 2) + 3
        def f():
            e.raw(f'''
s_cmp_lt_u32 s{sWAVE}, 4
s_cbranch_scc1 KA_NOQ{r}
s_lshl_b32 s{sT0}, s{sCG}, 2
s_and_b32 s{sT1}, s{sWAVE}, 3
s_add_u32 s{sT0}, s{sT0}, s{sT1}
s_mul_i32 s{sT0}, s{sT0}, 18
s_add_u32 s{sT0}, s{sT0}, {4 * r}
s_lshl_b32 s{sT1}, s{sTG}, 12
s_add_u32 s{sT1}, s{sT1}, {Q_OFF}
v_and_b32 v{t0}, 0x1f0, v{vL16}
v_lshlrev_b32 v{t0}, 2, v{t0}
v_lshrrev_b32 v{t1}, 6, v{vL16}
v_and_b32 v{t1}, 8, v{t1}
v_add_u32 v{t1}, s{sT0}, v{t1}
v_lshrrev_b32 v{t2}, 5, v{t1}
v_lshl_add_u32 v{t2}, v{t2}, 17, v{t0}
v_and_b32 v{t3}, 12, v{t1}
v_lshl_add_u32 v{t2}, v{t3}, 2, v{t2}
v_bfe_u32 v{t3}, v{t1}, 4, 1
v_lshl_add_u32 v{t2}, v{t3}, 3, v{t2}
buffer_load_dwordx2 {vr(16 + 2 * r, 2)}, v{t2}, {sr(sWS)}, s{sT1} offen sc1
buffer_load_dwordx2 {vr(24 + 2 * r, 2)}, v{t2}, {sr(sWS)}, s{sT1} offen offset:2048 sc1
KA_NOQ{r}:
''')
        return f
    for r in range(3): sched[660 + 8 * r].append(qpiece(r))
    sched[677].append(lambda: marks.__setitem__('q', e.mark()))
    def qload():
        t0, t1, t2, t3 = X(0, 2), X(0, 2) + 1, X(0, 2) + 2, X(0, 2) + 3
        e.raw(f'''
s_cmp_lt_u32 s{sWAVE}, 4
s_cbranch_scc1 KA_NOQ
''')
        e.raw(f'''
s_mul_i32 s{sT0}, s{sCG}, 9
s_and_b32 s{sT2}, s{sWAVE}, 3
s_lshl_b32 s{sT1}, s{sT2}, 1
s_add_u32 s{sT1}, s{sT1}, s{sT0}
v_lshrrev_b32 v{t2}, 9, v{vL16}
v_add_u32 v{t3}, s{sT1}, v{t2}
v_lshrrev_b32 v{vOA}, 2, v{t3}
v_lshlrev_b32 v{vOA}, 12, v{vOA}
v_and_b32 v{t3}, 3, v{t3}
v_lshl_add_u32 v{vOA}, v{t3}, 8, v{vOA}
v_and_b32 v{t3}, 0x100, v{vL16}
v_lshlrev_b32 v{t3}, 2, v{t3}
v_and_or_b32 v{t3}, v{vL16}, s{sF0}, v{t3}
v_add_u32 v{vOA}, v{vOA}, v{t3}
v_lshl_add_u32 v{vOC}, v{t2}, 28, v{t3}
s_mul_i32 s{sOA}, s{sTG}, {18 * 4096}
s_add_u32 s{sOA}, s{sOA}, {O_OFF}
s_add_u32 s{sT0}, s{sT0}, 8
s_lshr_b32 s{sT1}, s{sT0}, 2
s_lshl_b32 s{sT1}, s{sT1}, 12
s_and_b32 s{sT0}, s{sT0}, 3
s_lshl_b32 s{sT0}, s{sT0}, 8
s_add_u32 s{sT1}, s{sT1}, s{sT0}
s_lshl_b32 s{sT0}, s{sT2}, 2
s_add_u32 s{sT1}, s{sT1}, s{sT0}
s_add_u32 s{sOC}, s{sT1}, s{sOA}
KA_NOQ:
v_mov_b32 v{t0}, 0
v_lshrrev_b32 v{t1}, 2, v{vL16}
v_add_u32 v{t1}, {FLG}, v{t1}
s_mov_b64 exec, 0xfffff
''')
        e.lgop(f'ds_write_b32 v{t1}, v{t0}', 'flgclr')
        e.i('s_mov_b64 exec, -1')
    sched[692].append(qload)
    def rf_load():
        e.i(f's_mov_b32 s{sT4}, {RF_OFF}')
        e.vmop(f'buffer_load_dwordx4 {vr(vRF)}, v{vL16}, {sr(sWS)}, s{sT4} offen sc1', 'rf')

    RT = vCF
    def rl_dma():
        e.raw(f'''
s_lshl_b32 s{sT0}, s{sWAVE}, 8
s_add_u32 s{sT0}, s{sT0}, s2
s_mul_i32 s{sT1}, s{sT0}, 7282
s_lshr_b32 s{sT1}, s{sT1}, 16
s_mul_i32 s{sT2}, s{sT1}, 9
s_sub_u32 s{sT2}, s{sT0}, s{sT2}
s_lshl_b32 s{sRLD}, s{sT0}, 12
s_add_u32 s{sRLD}, s{sRLD}, {W2R_OFF}
s_mov_b32 s{sRL+3}, 0x00020000
s_lshl_b32 s{sT2}, s{sT2}, 7
s_lshl_b32 s{sT0}, s{sWAVE}, 12
s_add_u32 s{sT0}, s{sT0}, {XS2}
v_bfe_u32 v{RT}, v{vL16}, 7, 1
v_mul_u32_u24 v{RT}, 1152, v{RT}
v_and_b32 v{RT+1}, 0x70, v{vL16}
v_add_u32 v{RT}, v{RT}, v{RT+1}
v_bfe_u32 v{RT+1}, v{vL16}, 8, 1
v_lshrrev_b32 v{RT+2}, 9, v{vL16}
v_mul_u32_u24 v{RT+1}, 1152, v{RT+1}
v_mul_u32_u24 v{RT+2}, 1152, v{RT+2}
s_cmp_lt_u32 s{sT1}, 144
s_cbranch_scc0 KA_RLWO
s_mov_b32 s{sRL}, s20
s_mov_b32 s{sRL+1}, s21
s_mov_b32 s{sRL+2}, {4608*1152}
s_cmp_lt_u32 s{sT1}, 128
s_cselect_b32 s{sT3}, 4, 2
s_cselect_b32 s{sT4}, 4, 8
s_mul_i32 s{sT4}, s{sT4}, 1152
s_mul_i32 s{sT1}, s{sT1}, {32*1152}
s_add_u32 s{sT2}, s{sT2}, s{sT1}
v_lshl_add_u32 v{RT+3}, v{RT+1}, 1, v{RT}
v_lshl_add_u32 v{RT+3}, v{RT+2}, s{sT3}, v{RT+3}
''')
        for i in range(4):
            e.i(f's_add_u32 m0, s{sT0}, {i * 1024}')
            e.i(f's_add_u32 s{sT2}, s{sT2}, s{sT4}' if i else 's_nop 0')
            e.i(f'buffer_load_dwordx4 v{RT+3}, {sr(sRL)}, s{sT2} offen{NTR} lds')
        e.raw(f'''
s_branch KA_RLE
KA_RLWO:
s_mov_b32 s{sRL}, s12
s_mov_b32 s{sRL+1}, s13
s_cmp_lt_u32 s{sT1}, 162
s_cselect_b32 s{sRL+2}, {576*1152}, 0
s_cselect_b32 s{sRLD}, s{sRLD}, 0x7f000000
s_sub_u32 s{sT1}, s{sT1}, 144
s_lshl_b32 s{sT1}, s{sT1}, 2
''')
        for i in range(4):
            e.raw(f'''
s_add_u32 s{sT3}, s{sT1}, {i}
s_mul_i32 s{sT4}, s{sT3}, 7282
s_lshr_b32 s{sT4}, s{sT4}, 16
s_mul_i32 vcc_lo, s{sT4}, 9
s_sub_u32 s{sT3}, s{sT3}, vcc_lo
s_mul_i32 s{sT4}, s{sT4}, 72
s_lshr_b32 vcc_lo, s{sT3}, 1
s_mul_i32 vcc_lo, vcc_lo, 18
s_and_b32 vcc_hi, s{sT3}, 1
s_lshl_b32 vcc_hi, vcc_hi, 2
s_add_u32 vcc_lo, vcc_lo, vcc_hi
s_cmp_eq_u32 s{sT3}, 8
s_cselect_b32 vcc_lo, 16, vcc_lo
s_add_u32 s{sT4}, s{sT4}, vcc_lo
s_mul_i32 s{sT4}, s{sT4}, 1152
s_add_u32 s{sT4}, s{sT4}, s{sT2}
s_cmp_eq_u32 s{sT3}, 8
s_cselect_b32 vcc_lo, 18, 2
s_cselect_b32 vcc_hi, 36, 8
v_mad_u32_u24 v{RT+3}, v{RT+1}, vcc_lo, v{RT}
v_mad_u32_u24 v{RT+3}, v{RT+2}, vcc_hi, v{RT+3}
s_add_u32 m0, s{sT0}, {i * 1024}
s_nop 0
buffer_load_dwordx4 v{RT+3}, {sr(sRL)}, s{sT4} offen{NTR} lds
''')
        e.label('KA_RLE')
        e.vmcount(4, 'rl')
    sched[ENV('RLS', 515)].append(rl_dma)
    RQ = [ACC(0, 1, 0), ACC(0, 1, 1), ACC(0, 3, 0), ACC(0, 3, 1)]
    def rl_rd():
        e.need(vm=['rl'])
        e.raw(f'''
v_lshrrev_b32 v{vT0}, 8, v{vL16}
v_lshlrev_b32 v{vT0}, 10, v{vT0}
v_and_b32 v{RQ[0]}, 0xc0, v{vL16}
v_lshl_add_u32 v{vT0}, v{RQ[0]}, 1, v{vT0}
v_bfe_u32 v{RQ[0]}, v{vL16}, 4, 2
v_lshl_add_u32 v{vT0}, v{RQ[0]}, 3, v{vT0}
s_lshl_b32 s{sT0}, s{sWAVE}, 12
s_add_u32 s{sT0}, s{sT0}, {XS2}
v_add_u32 v{vT0}, s{sT0}, v{vT0}
''')
        for q in range(4):
            e.lgop(f'ds_read_b64_tr_b16 {vr(RQ[q], 2)}, v{vT0} offset:{q * 32}')
            e.lgop(f'ds_read_b64_tr_b16 {vr(RQ[q] + 2, 2)}, v{vT0} offset:{q * 32 + 512}', ('rlf', q))
    RLF = ENV('RLF', 590)
    sched[RLF].append(rl_rd)
    for q in range(4):
        def st(q=q):
            e.need(lg=[('rlf', q)])
            e.vmop(f'buffer_store_dwordx4 {vr(RQ[q])}, v{vL16}, {sr(sWS)}, s{sRLD} offen offset:{q * 1024} sc1', 'rls')
        sched[RLF + 8 + 4 * q].append(st)

    def cs_load(c, b0, b1, t0=None, t1=None):
        base = CST + (c * 512 if c >= 2 else c * 256)
        def f():
            e.i(f'v_lshrrev_b32 v{vT0}, 4, v{vL16}')
            e.i(f'v_and_b32 v{vT0}, 48, v{vT0}')
            e.i(f'v_add_u32 v{vT0}, {base}, v{vT0}')
            e.lgop(f'ds_read_b128 {vr(vCV)}, v{vT0} offset:{b0 * 64}')
            if c >= 2: e.lgop(f'ds_read_b128 {vr(t0)}, v{vT0} offset:{256 + b0 * 64}')
            e.lgop(f'ds_read_b128 {vr(vCV + 4)}, v{vT0} offset:{b1 * 64}', ('cv', c, b0))
            if c >= 2: e.lgop(f'ds_read_b128 {vr(t1)}, v{vT0} offset:{256 + b1 * 64}', ('cv', c, b0))
        def g():
            e.need(lg=[('cv', c, b0)])
            if c >= 2:
                for r in range(4): e.i(f'v_add_f32 v{vCV + r}, v{vCV + r}, v{t0 + r}')
        def h():
            if c >= 2:
                for r in range(4): e.i(f'v_add_f32 v{vCV + 4 + r}, v{vCV + 4 + r}, v{t1 + r}')
        return f, g, h
    def swiglu(c, bg, bu, tb, outs):
        buf = c & 1
        g = ACC(buf, bg, tb); u = ACC(buf, bu, tb)
        it = []
        for r in range(4): it.append(I(f'v_fma_f32 v{g + r}, v{vNM[tb]}, v{vCV + r}, v{g + r}'))
        for r in range(4): it.append(I(f'v_fma_f32 v{u + r}, v{vNM[tb]}, v{vCV + 4 + r}, v{u + r}'))
        for r in range(4): it.append(I(f'v_mul_f32 v{u + r}, v{g + r}, v{u + r}'))
        for r in range(4): it.append(I(f'v_mul_f32 v{g + r}, v{vC[tb]}, v{g + r}'))
        for r in range(4): it.append(I(f'v_exp_f32 v{g + r}, v{g + r}'))
        for r in range(4): it.append(I(f'v_fma_f32 v{g + r}, v{g + r}, v{vIR2[tb]}, v{vIR2[tb]}'))
        for r in range(4): it.append(I(f'v_rcp_f32 v{g + r}, v{g + r}'))
        for r in range(4): it.append(I(f'v_mul_f32 v{u + r}, v{g + r}, v{u + r}'))
        it.append(I(f'v_cvt_pk_bf16_f32 v{outs[0]}, v{u}, v{u + 1}'))
        it.append(I(f'v_cvt_pk_bf16_f32 v{outs[1]}, v{u + 2}, v{u + 3}'))
        return it
    def hstore(c, tb):
        def st_():
            e.i(f's_add_u32 s{sT0}, s{sHA if c < 2 else sHB}, {H_OFF + KBI[c] * 4096 + tb * 1024}')
            e.vmop(f'buffer_store_dwordx4 {vr(ACC(c & 1, 0, tb))}, v{vL16}, {sr(sWS)}, s{sT0} offen sc1', 'hs')
        return st_
    def head(c, b0, b1, s0):
        f, g, h = cs_load(c, b0, b1, vCA, vCF)
        sched[s0].append(f); sched[s0 + 5].append(g); sched[s0 + 6].append(h)
    def epi_half(c, half, with_load, tbs=(0, 1), store=True):
        buf = c & 1
        it = []
        if with_load:
            f, g, h = cs_load(c, half, 2 + half, ACC(buf, 2, 0), ACC(buf, 2, 1))
            it += [f, NOP, NOP, NOP, NOP, g, h]
        for tb in tbs:
            o = ACC(buf, 0, tb)
            it += swiglu(c, half, 2 + half, tb, [o + 2 * half, o + 2 * half + 1])
            if half == 1 and store: it.append(hstore(c, tb))
        return it
    def epi_special():
        it = []
        for tb in range(2):
            for b in (2, 3):
                a = ACC(0, b, tb)
                for r in range(4): it.append(I(f'v_fma_f32 v{a + r}, v{vNM[tb]}, v{vCV + 4 * (b - 2) + r}, v{a + r}'))
                def sc(a=a, tb=tb):
                    e.i(f'v_mul_f32 v{vT0}, s{sSCALE}, v{vC[tb]}')
                    for r in range(4): e.i(f'v_mul_f32 v{a + r}, v{vT0}, v{a + r}')
                it.append(sc)
                d = ACC(0, 2, tb) + 2 * (b - 2)
                it.append(I(f'v_cvt_pk_bf16_f32 v{d}, v{a}, v{a + 1}'))
                it.append(I(f'v_cvt_pk_bf16_f32 v{d + 1}, v{a + 2}, v{a + 3}'))
        def stores():
            A = lambda b, tb: ACC(0, b, tb)
            t0, t1, t2 = vCV, vCV + 1, vCV + 2
            e.raw(f'''
s_cmp_gt_u32 s{sQI}, 19
s_cbranch_scc1 KA_QKV_DONE
v_bfe_u32 v{t0}, v{vL16}, 4, 4
v_lshrrev_b32 v{t1}, 8, v{vL16}
s_lshl_b32 s{sT0}, s{sTM}, 3
s_add_u32 s{sT0}, s{sT0}, s{sWAVE}
s_cmp_lt_u32 s{sQI}, 18
s_cbranch_scc0 KA_KV
v_lshlrev_b32 v{t2}, 6, v{t0}
v_lshl_add_u32 v{t2}, v{t1}, 4, v{t2}
s_lshl_b32 s{sT1}, s{sQI}, 17
s_lshl_b32 s{sT0}, s{sT0}, 11
s_add_u32 s{sT1}, s{sT1}, s{sT0}
s_add_u32 s{sT1}, s{sT1}, {Q_OFF}
buffer_store_dwordx4 {vr(A(2,0))}, v{t2}, {sr(sWS)}, s{sT1} offen sc1
buffer_store_dwordx4 {vr(A(2,1))}, v{t2}, {sr(sWS)}, s{sT1} offen offset:1024 sc1
s_branch KA_QKV_DONE
KA_KV:
s_mul_i32 s{sT1}, s{sT0}, {REC}
s_add_u32 s{sT1}, s{sT1}, {KV_OFF}
s_mul_i32 s{sT0}, s{sWAVE}, 2048
s_add_u32 s{sT0}, s{sT0}, {4 * SLOT}
s_cmp_eq_u32 s{sQI}, 18
s_cbranch_scc0 KA_V
; K1[half=rg/2][key][ (rg%2)*8 ] , K2[key] from rg==0 lanes
v_lshrrev_b32 v{t2}, 1, v{t1}
v_lshlrev_b32 v{t2}, 9, v{t2}
v_lshl_add_u32 v{t2}, v{t0}, 4, v{t2}
v_and_b32 v{vT0}, 1, v{t1}
v_lshl_add_u32 v{t2}, v{vT0}, 3, v{t2}
v_add_u32 v{t2}, s{sT0}, v{t2}
ds_write_b64 v{t2}, {vr(A(2,0),2)}
ds_write_b64 v{t2}, {vr(A(2,1),2)} offset:256
v_lshlrev_b32 v{t2}, 2, v{t0}
v_add_u32 v{t2}, s{sT0}, v{t2}
s_mov_b64 exec, 0xffff
ds_write_b32 v{t2}, v{A(2,0)+2} offset:{K2_IN}
ds_write_b32 v{t2}, v{A(2,1)+2} offset:{K2_IN + 64}
s_mov_b64 exec, -1
s_branch KA_KVST
KA_V:
; V[kblk][half=(t/4)%2][d][j=4(t/8)+t%4] : off = half*288 + d*16 + j*2 , d = 4rg+i
s_add_u32 s{sT1}, s{sT1}, {V_IN}
v_bfe_u32 v{t2}, v{t0}, 2, 1
v_mul_u32_u24 v{t2}, 288, v{t2}
v_lshrrev_b32 v{vT0}, 3, v{t0}
v_lshl_add_u32 v{t2}, v{vT0}, 3, v{t2}
v_and_b32 v{vT0}, 3, v{t0}
v_lshl_add_u32 v{t2}, v{vT0}, 1, v{t2}
v_lshl_add_u32 v{t2}, v{t1}, 6, v{t2}
v_add_u32 v{t2}, s{sT0}, v{t2}
''')
            for tb in range(2):
                o = tb * 576
                e.i(f'ds_write_b16 v{t2}, v{A(2,tb)} offset:{o}')
                e.i(f'ds_write_b16_d16_hi v{t2}, v{A(2,tb)} offset:{o + 16}')
                e.i(f'ds_write_b16 v{t2}, v{A(2,tb)+1} offset:{o + 32}')
                e.i(f'ds_write_b16_d16_hi v{t2}, v{A(2,tb)+1} offset:{o + 48}')
            e.i('s_mov_b64 exec, 0xffff')
            for tb in range(2):
                o = tb * 576
                e.i(f'ds_write_b16 v{t2}, v{A(2,tb)+2} offset:{o + 256}')
                e.i(f'ds_write_b16_d16_hi v{t2}, v{A(2,tb)+2} offset:{o + 272}')
            e.raw(f'''
s_mov_b64 exec, -1
KA_KVST:
v_add_u32 v{t2}, s{sT0}, v{vL16}
ds_read_b128 {vr(A(2,0))}, v{t2}
ds_read_b128 {vr(A(2,1))}, v{t2} offset:1024
s_waitcnt lgkmcnt(0)
buffer_store_dwordx4 {vr(A(2,0))}, v{vL16}, {sr(sWS)}, s{sT1} offen sc1
s_mov_b64 exec, 0xff
buffer_store_dwordx4 {vr(A(2,1))}, v{vL16}, {sr(sWS)}, s{sT1} offen offset:1024 sc1
s_mov_b64 exec, -1
''')
            e.label('KA_QKV_DONE')
        it.append(stores)
        it1 = it
        it = []
        f, g, h = cs_load(2, 0, 1, ACC(0, 2, 0), ACC(0, 2, 1))
        it += [f, NOP, NOP, NOP, NOP, g, h]
        o = ACC(0, 0, 0)
        it += swiglu(2, 0, 1, 0, [o, o + 1])
        it += swiglu(2, 0, 1, 1, [o + 2, o + 3])
        def st_():
            e.raw(f'''
s_lshr_b32 s{sT0}, s{sFN}, 1
s_lshl_b32 s{sT0}, s{sT0}, 12
s_and_b32 s{sT1}, s{sFN}, 1
s_lshl_b32 s{sT1}, s{sT1}, 9
s_add_u32 s{sT0}, s{sT0}, s{sT1}
s_add_u32 s{sT0}, s{sT0}, s{sHO}
s_add_u32 s{sT0}, s{sT0}, {H_OFF + 128 * 4096}
v_permlane16_swap_b32 v{o}, v{o + 2}
v_permlane16_swap_b32 v{o + 1}, v{o + 3}
v_and_b32 v{vT0}, 0x100, v{vL16}
v_lshlrev_b32 v{vT0}, 2, v{vT0}
v_and_or_b32 v{vT0}, v{vL16}, s{sF0}, v{vT0}
v_lshrrev_b32 v{o + 4}, 1, v{vL16}
v_and_b32 v{o + 4}, 0x100, v{o + 4}
v_add_u32 v{vT0}, v{vT0}, v{o + 4}
''')
            e.vmop(f'buffer_store_dwordx4 {vr(o)}, v{vT0}, {sr(sWS)}, s{sT0} offen sc1', 'hs')
        it.append(st_)
        return it1, it
    place(epi_half(1, 0, True) + epi_half(1, 1, True), 290, 288 + 138)
    head(2, 2, 3, 432)
    sp1, sp2 = epi_special()
    place(sp1, 432 + 8, 432 + 40)
    place(sp2, 432 + 42, 432 + 138)
    sched[473].append(lambda: marks.__setitem__('e', e.mark()))
    head(3, 0, 2, 576)
    E4 = ENV('E4', 670)
    place(epi_half(3, 0, False) + epi_half(3, 1, True, store=False), 576 + 8, E4)
    sched[684].append(hstore(3, 0)); sched[690].append(hstore(3, 1))
    head(4, 0, 2, E4)
    f, g, h = cs_load(4, 1, 3, ACC(0, 2, 0), ACC(0, 2, 1))
    place(epi_half(4, 0, False) + [f, NOP, NOP, NOP, g, h], E4 + 7, 719)

    D = NAF - 1
    def bar(vm, lg, dmas, stamp=False, span=DSP * 3, eflag=False):
        def f(n):
            e.need(vm=vm, lg=lg)
            if eflag == 1: e.need_mark(marks['e'])
            if not ('nobar' in EXP and vm and vm[0][0] == 'Wp'): e.i('s_barrier')
            if eflag == 1: e_set()
            if eflag == 2: e_set(RF_OFF, 'KA_NORS')
            if stamp or 'allstamps' in EXP: e.stamp()
            its = [it for p in dmas for it in dma_slot(p)]
            if its: place(its, 2 * n + 2, 2 * n + 2 + span)
        return f
    for j in range(1, 9):
        lg = [('xf', 1, 17)] if j == 8 else []
        if 'lead3' in EXP and j <= 5: lg = [('af', 16 * j - 1)]
        pre[(16 * j if j < 8 else 120) - D].append(bar([('Wp', j)], lg, [0] if j == 8 else [], j % 3 == 0 and 'c4st' not in EXP, span=20))
    for p in range(6):
        dm = {0: [3, 4], 1: [5], 3: [6], 4: [7], 5: [8]}.get(p, [])
        pre[144 + 24 * (p + 1) - D].append(bar([('W', p + 1)], [('cswr', 2 + p // 3)] if p % 3 == 2 else [], dm, p % 3 == 2, span=(DSP * 3 if p < 5 else 12), eflag=int(p == 4)))
    pre[288 + 12 - D].append(bar([('W', 7)], [], []))
    pre[288 + 24 - D - 2].append(bar([('W', 8)], [], []))
    pre[288 + 36 - 1].append(bar(['rls'], [('cswr', 4)], [], True, eflag=2))

    if 'c4st' in EXP:
        for t_ in (380, 450, 480, 520, 590, 612, 640, 645, 660, 680, 700, 719): sched[t_].append(lambda: e.stamp())
    cur = {0: 0, 1: 0}
    def rdA(n, r):
        c, b, ks, u, off = FR[n]
        a = vTA1 if u else vTA0
        if not (0 <= off - cur[u] <= 65535 - 256):
            nb = (off // SLOT) * SLOT
            e.i(f'v_add_u32 v{a}, {(nb - cur[u]) & 0xffffffff:#x}, v{a}')
            cur[u] = nb
        e.lgop(f'ds_read_b64_tr_b16 {vr(AF(n) + 2 * r, 2)}, v{a} offset:{off - cur[u] + r * 256}', ('af', n) if r else None)

    def window():
        e.need(lg=[('cswr', 0)])
        e.i('s_barrier')
        e.stamp()
        mm = [m for ks in range(18) for m in stat_mm(1, ks)]
        va = stat_fin(0) + epi_half(0, 0, True, (0,)) + epi_half(0, 1, True, (0,))
        dm = dma_slot(1)
        d2 = dma_slot(2)
        dm.append(d2.pop(0))
        place(d2, 258, 286)
        NW = ENV('NW', 85)
        k = 0
        for i_, m in enumerate(mm):
            m()
            if i_ % 7 == 1 and dm: dm.pop(0)()
            while k < (i_ + 1) * NW // len(mm):
                va[k](); k += 1
        o = ACC(0, 0, 1)
        t2 = ACC(0, 1, 1)
        f, g, h = cs_load(0, 0, 2)
        s1 = swiglu(0, 1, 3, 1, [t2, t2 + 1])
        fin = stat_fin(1)
        rest = va[k:]
        mix = rest[:6]
        rest = rest[6:]
        for i_ in range(max(len(fin), len(rest))):
            if i_ < len(fin): mix.append(fin[i_])
            if i_ < len(rest): mix.append(rest[i_])
        vb = mix + s1[:8] + [f] + s1[8:] + [g] + swiglu(0, 0, 2, 1, [o, o + 1])
        vb += [I(f'v_mov_b32 v{o + 2}, v{t2}'), I(f'v_mov_b32 v{o + 3}, v{t2 + 1}'), hstore(0, 1)]
        NB = ENV('NB', 95)
        place(vb[:NB], 256, 288)
        pre[144].append(lambda n: ([it() for it in vb[NB:]], e.stamp()))
    def fmt_switch(n):
        e.need(vm=[('W', 0)])
        e.i('s_barrier')
        e.raw(f'''
v_lshrrev_b32 v{vT0}, 8, v{vL16}
v_lshlrev_b32 v{vT0}, 9, v{vT0}
v_sub_u32 v{vTA0}, v{vTA0}, v{vT0}
v_sub_u32 v{vTA1}, v{vTA1}, v{vT0}
s_and_b32 s{sT0}, s{sWAVE}, 1
s_lshl_b32 s{sT0}, s{sT0}, 5
v_xor_b32 v{vCS}, s{sT0}, v{vTA0}
s_bfe_u32 s{sT0}, s{sWAVE}, 0x10001
s_mul_i32 s{sT0}, s{sT0}, 12288
s_lshr_b32 s{sT1}, s{sWAVE}, 2
s_mul_i32 s{sT1}, s{sT1}, 6144
s_add_u32 s{sT0}, s{sT0}, s{sT1}
s_add_u32 s{sT0}, s{sT0}, {BUF[0] * SLOT}
v_add_u32 v{vCS}, s{sT0}, v{vCS}
''')
    pre[144 - D].append(fmt_switch)

    e.stamp()
    for it in xread(0) + xread(1): it()
    e.need(vm=[('Wp', 0)])
    e.i('s_barrier')
    e.stamp()
    for n in range(D):
        rdA(n, 0); rdA(n, 1)
    for n in range(360):
        c, b, ks, u, off = FR[n]
        if n == 128: window()
        for f in pre[n]: f(n)
        for tb in range(2):
            e.need(lg=[('af', n)] + ([('xf', tb, ks)] if c == 0 else []))
            acc = ACC(c & 1, b, tb)
            e.i(f'v_mfma_f32_16x16x32_bf16 {vr(acc)}, {vr(AF(n))}, {vr(X(tb, ks))}, {0 if ks == 0 else vr(acc)}')
            if n + D < 360: rdA(n + D, tb)
            for it in sched[2 * n + tb]: it()
    e.need(vm=['kv'])
    e.need_mark(marks['q'])
    e.drain(lg=True)
    e.i('s_barrier')
    e.raw(f'''
s_cmp_lt_u32 s{sWAVE}, 4
s_cbranch_scc1 KA_NOPR
s_setprio 1
s_branch KA_JN
KA_NOPR:
''')
    rf_load()
    e.label('KA_JN')
    e.i('s_nop 2')
    e.stamp()
    for it in epi_half(4, 1, False): it()
    e.stamp()
```

```python
from emit import *
from common import *
import os
import fa
EXP = os.environ.get('EXP', '').split(',')
ENV = lambda k, d: int(os.environ.get(k, d))
FLG = fa.FLG
FP_OFF = 73728
SP_OFF = 0
OSLP = ENV('OSLP', 4)
ODLY = ENV('ODLY', 20)
XLD = ENV('XLD', 0)
OSC = '' if 'plaino' in EXP else ' sc1'
OUTF = {0: '', 1: ' sc1', 2: ' nt', 3: ' sc0 sc1'}[ENV('OUTF', 0)]
GNOP = ENV('GNOP', 0)
DEPTH = ENV('DEPTH', 5)
HSLP = ENV('HSLP', 6)
HFT = ENV('HFT', 0)
PRIO_A = ENV('PRIO_A', 1)
PRIO_G = ENV('PRIO_G', 0)

sX, sOUT, sWS = fa.sX, 28, fa.sWS
sWAVE, sTG, sCG, sODD = fa.sWAVE, fa.sTG, fa.sCG, 6
sT0, sT1, sT2, sT3 = 32, 33, 34, 35
sHO, sWM, sWSH = 45, 46, 47
sIT, sRDY = 48, 49
sVM = 54
sW4, sINC, sREC8 = 7, 56, 57
sHF = fa.sHF
sKV = 58

def gen_kb(e):
    e.raw(f'''
s_and_b32 s{sODD}, s{sCG}, 1
s_and_b32 s{sW4}, s{sWAVE}, 3
''')
    def hflag(tmp):
        e.raw(f'''
v_mov_b32 v{tmp}, 1
v_mov_b32 v{tmp+1}, 0
s_mov_b64 exec, 1
buffer_store_dword v{tmp}, v{tmp+1}, {sr(sWS)}, s{sHF} offen sc1
s_mov_b64 exec, -1
''')
    def post(word, val, ta, tb):
        e.raw(f'''
s_lshl_b32 s{sT3}, s{sW4}, 2
s_add_u32 s{sT3}, s{sT3}, {FLG + 16 * word}
v_mov_b32 v{ta}, s{sT3}
v_mov_b32 v{tb}, {val}
s_mov_b64 exec, 1
ds_write_b32 v{ta}, v{tb}
s_mov_b64 exec, -1
''')
    def wait4(lbl, word, ta, t4, slp):
        e.raw(f'''
v_mov_b32 v{ta}, {FLG + 16 * word}
s_mov_b32 s{sT2}, 0x400000
{lbl}:
ds_read_b128 {vr(t4)}, v{ta}
s_waitcnt lgkmcnt(0)
v_min_u32 v{t4}, v{t4}, v{t4+1}
v_min3_u32 v{t4}, v{t4}, v{t4+2}, v{t4+3}
s_nop 0
v_readfirstlane_b32 s{sT3}, v{t4}
s_cmp_lg_u32 s{sT3}, 0
s_cbranch_scc1 {lbl}_OK
s_sleep {slp}
s_sub_u32 s{sT2}, s{sT2}, 1
s_cmp_lg_u32 s{sT2}, 0
s_cbranch_scc1 {lbl}
{lbl}_OK:
''')
    ns0 = e.nstamp
    e.i(f's_cmp_lt_u32 s{sWAVE}, 4')
    e.i('s_cbranch_scc1 KB_GEMM')
    head_lines = e.lines; e.lines = []
    e.label('KB_GEMM')

    vL16, vA, vB, vT = 0, 1, 2, 3
    F = lambda t: 4 + 4 * t
    S = lambda t: 76 + 4 * t
    BUFS = {3: [148, 184, 220], 4: [76, 148, 184, 220], 5: [112, 148, 184, 220, 76]}[DEPTH]
    e.i(f's_setprio {PRIO_G}')
    assert fa.SWB == 0
    sHB, sWB = 59, 60
    def setk(code):
        e.raw(code + f'''
s_lshl_b32 s{sHO}, s{sT3}, 12
s_add_u32 s{sHO}, s{sHO}, s{sHB}
s_mul_i32 s{sWSH}, s{sT3}, {36 * 1024}
s_add_u32 s{sWSH}, s{sWSH}, s{sWB}
s_mul_i32 s{sT3}, s{sODD}, {5 * 1024}
s_add_u32 s{sWM}, s{sWSH}, s{sT3}
s_add_u32 s{sWSH}, s{sWSH}, {4 * 1024}
''')
    def poll(lbl, ld, red):
        e.raw(f'''
s_mov_b32 s{sIT}, 0x40000
{lbl}:
s_waitcnt vmcnt(0)
{red}
s_cmp_eq_u64 vcc, 0
s_cbranch_scc1 {lbl}_OK
s_sleep {HSLP}
{ld}
s_sub_u32 s{sIT}, s{sIT}, 1
s_cmp_lg_u32 s{sIT}, 0
s_cbranch_scc1 {lbl}
s_waitcnt vmcnt(0)
{lbl}_OK:
''')
    RF = fa.vRF
    rld = f'buffer_load_dwordx4 {vr(RF)}, v{vL16}, {sr(sWS)}, s{sT0} offen sc1'
    e.raw(f'''
s_mov_b32 s{sT0}, {RF_OFF}
s_lshl_b32 s{sT2}, s{sODD}, 11
v_add_u32 v{vA}, s{sT2}, v{vL16}
v_xor_b32 v{vB}, 0x800, v{vA}
s_mul_i32 s{sHB}, s{sTG}, {144 * 4096}
s_lshr_b32 s{sT2}, s{sCG}, 1
s_mul_i32 s{sWB}, s{sT2}, {9 * 1024}
s_add_u32 s{sWB}, s{sWB}, {W2R_OFF}
s_lshl_b32 s{sKV}, s{sWAVE}, 10
''')
    setk(f'''
s_lshl_b32 s{sT3}, s{sWAVE}, 1
s_and_b32 s{sT3}, s{sT3}, 4
s_add_u32 s{sT3}, s{sT3}, s{sWAVE}
''')
    rred = f'''v_and_b32 v{RF}, v{RF}, v{RF+1}
v_and_b32 v{RF+2}, v{RF+2}, v{RF+3}
v_and_b32 v{RF}, v{RF}, v{RF+2}
v_cmp_ne_u32 vcc, 1, v{RF}'''
    e.need(vm=['rf'])
    e.raw(rred + f'''
s_cmp_eq_u64 vcc, 0
s_cbranch_scc1 KB_RP2_OK
{rld}
''')
    poll('KB_RP2', rld, rred)
    e.stamp()
    e.vm = []; e.vm_done = 0; e.lg = []; e.lg_done = 0
    def loads(i):
        r = BUFS[i % DEPTH]
        for j in range(4):
            e.vmop(f'buffer_load_dwordx4 {vr(r + 4 * j)}, v{vA if j < 2 else vB}, {sr(sWS)}, s{sHO} offen offset:{(j & 1) * 1024} sc1', ('g', i, 0))
        for j in range(4):
            e.vmop(f'buffer_load_dwordx4 {vr(r + 16 + 4 * j)}, v{vL16}, {sr(sWS)}, s{sWM} offen offset:{j * 1024} sc1', ('g', i, j))
        e.vmop(f'buffer_load_dwordx4 {vr(r + 32)}, v{vL16}, {sr(sWS)}, s{sWSH} offen sc1', ('g', i, 4))
        if i == 15: setk(f's_add_u32 s{sT3}, s{sWAVE}, 128')
        elif i == 19: setk(f's_add_u32 s{sT3}, s{sWAVE}, 2')
        elif i == 35: setk(f's_add_u32 s{sT3}, s{sWAVE}, 144')
        else:
            st = 4 if 16 <= i < 19 else 8
            e.i(f's_add_u32 s{sHO}, s{sHO}, {st * 4096}')
            e.i(f's_add_u32 s{sWM}, s{sWM}, {st * 36 * 1024}')
            e.i(f's_add_u32 s{sWSH}, s{sWSH}, {st * 36 * 1024}')
    HR = vT
    hld = f'buffer_load_dword v{HR}, v{HR}, {sr(sWS)}, s{sT1} offen sc1'
    hadr = f'v_lshrrev_b32 v{HR}, 2, v{vL16}'
    def mm(acc, r, first, tagf):
        for nb in range(5):
            e.need(vm=[tagf(nb)])
            for j in range(4 if nb < 4 else 2):
                t = nb * 4 + j
                if 'nogmm' not in EXP: e.i(f'v_mfma_f32_16x16x32_bf16 {vr(acc(t))}, {vr(r + 16 + 4 * nb)}, {vr(r + 4 * j)}, {0 if first else vr(acc(t))}')
                if GNOP: e.i(f's_nop {GNOP - 1}')
    NREST = (144 - 8 * fa.NKV) // 4
    def kvdma(i):
        pi = 8 * fa.NKV + 4 * i
        e.i(f's_add_u32 m0, s{sKV}, {(KVL0 + pi * 1024) if pi < 72 else (pi - 72) * 1024}')
        e.i(f's_add_u32 s{sT2}, s{sKV}, {KV_OFF + pi * 1024}')
        e.vmop(f'buffer_load_dwordx4 v{vL16}, {sr(sWS)}, s{sT2} offen sc1 lds', 'kv1' if pi < 72 else 'kv2')
    def kvpost(val):
        e.raw(f'''
s_lshl_b32 s{sT3}, s{sW4}, 2
s_add_u32 s{sT3}, s{sT3}, {FLG + val * 64}
v_mov_b32 v{vT}, s{sT3}
s_mov_b64 exec, 1
ds_write_b32 v{vT}, v{vT}
s_mov_b64 exec, -1
''')
    WO = lambda i, nb: 148 + (i * 5 + nb) * 4
    wo_n = [0]
    def woload(k):
        i, j = divmod(k, 5)
        if k == 20:
            e.i(f's_cmp_gt_u32 s{sWAVE}, 1')
            e.i(f's_cselect_b32 s{sWM}, 0x7f000000, s{sWM}')
            e.i(f's_cselect_b32 s{sWSH}, 0x7f000000, s{sWSH}')
        if j < 4:
            e.vmop(f'buffer_load_dwordx4 {vr(WO(i, j))}, v{vL16}, {sr(sWS)}, s{sWM} offen offset:{j * 1024} sc1')
        else:
            e.vmop(f'buffer_load_dwordx4 {vr(WO(i, 4))}, v{vL16}, {sr(sWS)}, s{sWSH} offen sc1')
            e.i(f's_add_u32 s{sWM}, s{sWM}, {4 * 36 * 1024}')
            e.i(f's_add_u32 s{sWSH}, s{sWSH}, {4 * 36 * 1024}')
    N1 = NREST - 18
    for k in range(N1): kvdma(k)
    for i in range(DEPTH - 1): loads(i)
    for i in range(36):
        if i == 13:
            e.i(f's_lshl_b32 s{sT1}, s{sTG}, 8')
            e.i(f's_add_u32 s{sT1}, s{sT1}, {HF_OFF}')
            e.i(hadr)
            e.vmop(hld, 'hf')
        if i + DEPTH - 1 == 20:
            e.need(vm=['hf'])
            e.i(f'v_cmp_ne_u32 vcc, 1, v{HR}')
            e.i('s_cmp_eq_u64 vcc, 0')
            e.i('s_cbranch_scc1 KB_HP_OK')
            e.i(hadr)
            e.i(hld)
            poll('KB_HP', hadr + '\n' + hld, f'v_cmp_ne_u32 vcc, 1, v{HR}')
            e.stamp()
        if i + DEPTH - 1 < 36: loads(i + DEPTH - 1)
        else:
            fb_ = BUFS[(i - 1) % DEPTH]
            if fb_ >= 148:
                k0 = (fb_ - 148) // 4
                assert k0 == wo_n[0]
                for k in range(k0, min(25, k0 + 9)): woload(k)
                wo_n[0] = min(25, k0 + 9)
        if i < 6:
            for k in range(3): kvdma(N1 + 3 * i + k)
        mm(F, BUFS[i % DEPTH], i == 0, lambda nb, i=i: ('g', i, nb))
        if i == 0:
            if N1: kvpost(1)
            e.raw(f'''
v_mov_b32 v{vT}, 1
s_mov_b64 exec, 1
buffer_store_dword v{vT}, v{vL16}, {sr(sWS)}, s{sHF} offen sc1
s_mov_b64 exec, -1
''')
        if i == 6 + DEPTH - 1:
            e.need(vm=['kv2'])
            kvpost(0)
    e.i('s_setprio 2')
    for k in range(wo_n[0], 25): woload(k)
    e.stamp()
    sO = [49, 50, 51, 52, 53]
    sPEND = 55
    sFST = 56
    e.i(f's_mov_b32 s{sFST}, 0')
    e.raw(f'''
s_mul_i32 s{sT2}, s{sWAVE}, 18432
s_add_u32 s{sT2}, s{sT2}, {FP_OFF}
v_add_u32 v{vT}, s{sT2}, v{vL16}
s_mul_i32 s{sO[0]}, s{sTG}, {18 * 4096}
s_lshl_b32 s{sT2}, s{sWAVE}, 12
s_add_u32 s{sO[0]}, s{sO[0]}, s{sT2}
s_add_u32 s{sO[0]}, s{sO[0]}, {O_OFF}
s_add_u32 s{sO[1]}, s{sO[0]}, {1 * 16384}
s_add_u32 s{sO[2]}, s{sO[0]}, {2 * 16384}
s_add_u32 s{sO[3]}, s{sO[0]}, {3 * 16384}
s_add_u32 s{sO[4]}, s{sO[0]}, {4 * 16384}
s_cmp_gt_u32 s{sWAVE}, 1
s_cselect_b32 s{sPEND}, 15, 31
''')
    wait4('KB_AP', 2, 248, 252, 8)
    for t in range(18):
        e.i(f'ds_write_b128 v{vT}, {vr(F(t))} offset:{t * 1024}')
    e.i('s_waitcnt lgkmcnt(0)')
    post(1, 1, 248, 249)
    e.i('s_waitcnt lgkmcnt(0)')
    e.stamp()
    OB = lambda i, j: 4 + (i * 4 + j) * 4 if i < 4 else 68 + 4 * j if j < 2 else 248 + 4 * (j - 2)
    wait4('KB_AD', 3, 248, 252, 2)
    e.i(f's_cmp_eq_u32 s{sT2}, 0x400000')
    e.i('s_cbranch_scc1 KB_NODLY')
    e.i(f's_sleep {ODLY}')
    e.label('KB_NODLY')
    e.stamp()
    e.i(f's_mov_b32 s{sIT}, 0x100000')
    def oload(i):
        for j in range(4):
            e.i(f'buffer_load_dwordx4 {vr(OB(i, j))}, v{vA if j < 2 else vB}, {sr(sWS)}, s{sO[i]} offen offset:{(j & 1) * 1024} sc1')
    def ocheck(i, lbl):
        regs = [OB(i, j) + r for j in range(4) for r in range(4)]
        e.i(f'v_max_u32 v{vL16}, v{regs[0]}, v{regs[1]}')
        for k in range(2, 16, 2):
            e.i(f'v_max3_u32 v{vL16}, v{regs[k]}, v{regs[k + 1]}, v{vL16}')
        e.raw(f'''
v_cmp_eq_u32 vcc, -1, v{vL16}
s_cmp_eq_u64 vcc, 0
s_cbranch_scc0 {lbl}
s_bitset0_b32 s{sPEND}, {i}
s_cmp_lg_u32 s{sFST}, 0
s_cbranch_scc1 {lbl}_ACC
s_mov_b32 s{sFST}, 1
''')
        for first in (True, False):
            for nb in range(5):
                for j in range(4 if nb < 4 else 2):
                    t = nb * 4 + j
                    e.i(f'v_mfma_f32_16x16x32_bf16 {vr(S(t))}, {vr(WO(i, nb))}, {vr(OB(i, j))}, {0 if first else vr(S(t))}')
            if first:
                e.i(f's_branch {lbl}')
                e.label(f'{lbl}_ACC')
    e.label('KB_OR')
    e.i(f's_mov_b32 s{sT0}, s{sPEND}')
    for i in range(5):
        e.i(f's_bitcmp1_b32 s{sPEND}, {i}')
        e.i(f's_cbranch_scc0 KB_OL{i}')
        oload(i)
        e.label(f'KB_OL{i}')
    for i in range(5):
        e.i(f's_bitcmp1_b32 s{sPEND}, {i}')
        e.i(f's_cbranch_scc0 KB_OM{i}')
        if i < 4:
            e.i(f's_lshr_b32 s{sT1}, s{sT0}, {i + 1}')
            e.i(f's_bcnt1_i32_b32 s{sT1}, s{sT1}')
            for n in range(4 - i, 0, -1):
                e.i(f's_waitcnt vmcnt({4 * n})')
                e.i(f's_cmp_eq_u32 s{sT1}, {n}')
                e.i(f's_cbranch_scc1 KB_OC{i}')
        e.i('s_waitcnt vmcnt(0)')
        e.label(f'KB_OC{i}')
        ocheck(i, f'KB_OM{i}')
        e.label(f'KB_OM{i}')
    e.raw(f'''
s_cmp_eq_u32 s{sPEND}, 0
s_cbranch_scc1 KB_OD
s_sleep {OSLP}
s_sub_u32 s{sIT}, s{sIT}, 1
s_cmp_lg_u32 s{sIT}, 0
s_cbranch_scc1 KB_OR
KB_OD:
''')
    e.stamp()
    e.i('s_nop 4')
    e.i(f'v_add_u32 v{vT}, {(SP_OFF - FP_OFF) & 0xffffffff:#x}, v{vT}')
    for t in range(18):
        e.i(f'ds_write_b128 v{vT}, {vr(S(t))} offset:{t * 1024}')
    e.raw('''
s_waitcnt lgkmcnt(0)
s_barrier
''')
    e.stamp(); e.stamp(True)
    e.stamp_flush(sWS, sWAVE, STAMP_A)
    e.i('s_endpgm')

    e.nstamp = ns0
    e.vm = []; e.vm_done = 0; e.lg = []; e.lg_done = 0
    vK1, vK2, vV = 1, 2, 3
    Q1 = [16, 24]; Q2 = [20, 28]
    SB = [136, 48]; P = 64; O = [72, 88]
    KF = [104, 112]; VF = [120, 128]
    t0, t1, t2, t3, t4, t5 = 4, 5, 6, 7, 8, 9
    vMX = [10, 11]
    vOA, vOC = fa.vOA, fa.vOC
    vXO, vP0, vP1 = 38, 39, 40
    XR = 240
    sOA, sOC, sXM, sXS = fa.sOA, fa.sOC, 52, 53
    gemm_lines = e.lines; e.lines = head_lines
    def qk(q, k):
        e.i(f'v_mfma_f32_32x32x16_bf16 {vr(SB[q], 16)}, {vr(k)}, {vr(Q1[q])}, 0')
        e.i(f'v_mfma_f32_32x32x8_bf16 {vr(SB[q], 16)}, {vr(k + 4, 2)}, {vr(Q2[q], 2)}, {vr(SB[q], 16)}')
    def set_m(off):
        for q in range(2): e.i(f'v_mov_b32 v{t0 + q}, v{vMX[q]}')
        e.i('s_nop 1')
        for q in range(2): e.i(f'v_permlane32_swap_b32 v{t0 + q}, v{vMX[q]}')
        e.i('s_nop 1')
        for q in range(2): e.i(f'v_max_f32 v{vMX[q]}, v{t0 + q}, v{vMX[q]}')
        for q in range(2): e.i(f'v_sub_f32 v{vMX[q]}, {f32(-off)}, v{vMX[q]}')
        for q in range(2): e.i(f'v_cvt_pk_bf16_f32 v{t0 + q}, v{vMX[q]}, 0')
        for q in range(2): e.i(f'v_lshlrev_b32 v{t0 + q}, 16, v{t0 + q}')
        for q in range(2): e.i(f'v_sub_f32 v{t0 + q}, v{vMX[q]}, v{t0 + q}')
        for q in range(2): e.i(f'v_cvt_pk_bf16_f32 v{Q2[q] + 1}, v{vMX[q]}, v{t0 + q}')
        for q in range(2): e.i(f'v_and_b32 v{t2 + q}, 0xffff0000, v{Q2[q] + 1}')
        for q in range(2): e.i(f'v_sub_f32 v{t0 + q}, v{t0 + q}, v{t2 + q}')
        e.i(f'v_cmp_gt_u32 vcc, 32, v0')
        for q in range(2): e.i(f'v_cvt_pk_bf16_f32 v{t0 + q}, v{t0 + q}, 0')
        for q in range(2): e.i(f'v_cndmask_b32 v{Q2[q] + 1}, v{t0 + q}, v{Q2[q] + 1}, vcc')
    e.raw(f'''
s_setprio {PRIO_A}
v_add_u32 v{vK1}, {KVL0}, v0
v_lshrrev_b32 v0, 4, v0
v_and_b32 v{t0}, 31, v0
v_lshlrev_b32 v{vK2}, 2, v{t0}
v_add_u32 v{vK2}, {KVL0}, v{vK2}
ds_read_b128 {vr(KF[0])}, v{vK1}
ds_read_b32 v{KF[0]+4}, v{vK2} offset:{K2_IN}
s_bitcmp1_b32 s{sWAVE}, 0
s_cbranch_scc0 KB_QEV
v_mov_b32 v16, v17
v_mov_b32 v24, v25
v_mov_b32 v17, v18
v_mov_b32 v25, v26
v_mov_b32 v18, v19
v_mov_b32 v26, v27
v_mov_b32 v19, v20
v_mov_b32 v27, v28
v_mov_b32 v20, v21
v_mov_b32 v28, v29
KB_QEV:
v_cmp_gt_u32 vcc, 32, v0
v_mov_b32 v{t4}, 0x3f803f80
v_mov_b32 v{KF[0]+5}, v{t4}
v_cndmask_b32 v{Q2[0]}, v{Q2[0]}, 0, vcc
v_cndmask_b32 v{Q2[1]}, v{Q2[1]}, 0, vcc
v_mov_b32 v{Q2[0]+1}, 0
v_mov_b32 v{Q2[1]+1}, 0
v_mov_b32 v{KF[1]+5}, v{t4}
v_or_b32 v{t5}, 4, v{t0}
v_cmp_eq_u32 vcc, 22, v{t5}
v_lshrrev_b32 v{t1}, 5, v0
v_mul_u32_u24 v{vV}, 288, v{t1}
v_lshl_add_u32 v{vV}, v{t0}, 4, v{vV}
v_add_u32 v{vV}, {KVL0}, v{vV}
s_mov_b32 s{sVM}, 0x3ffff
s_mov_b32 s{sVM+1}, 0x3ffff
''')
    for r in range(8): e.i(f'v_cndmask_b32 v{VF[0] + r}, 0, v{t4}, vcc')
    e.i('s_waitcnt lgkmcnt(0)')
    qk(0, KF[0])
    e.raw(f'''
s_mov_b64 exec, {sr(sVM, 2)}
ds_read_b128 {vr(VF[0])}, v{vV} offset:{V_IN}
ds_read_b128 {vr(VF[0]+4)}, v{vV} offset:{V_IN + 576}
s_mov_b64 exec, -1
''')
    qk(1, KF[0])
    for r in range(8): e.i(f'v_cndmask_b32 v{VF[1] + r}, 0, v{t4}, vcc')
    for r in range(4): e.i(f'v_mov_b32 v{P + 4 + r}, 0')
    for r in range(8): e.i(f'v_mov_b32 v{O[0] + r}, 0')
    for q in range(2):
        e.i(f'v_max_f32 v{vMX[q]}, v{SB[q]}, v{SB[q] + 1}')
        for r in range(2, 16, 2):
            e.i(f'v_max3_f32 v{vMX[q]}, v{SB[q] + r}, v{SB[q] + r + 1}, v{vMX[q]}')
            e.i(f'v_mov_b32 v{O[0] + 8 + q * 12 + r // 2 - 1}, 0')
        for r in range(5): e.i(f'v_mov_b32 v{O[0] + 8 + q * 12 + 7 + r}, 0')
    set_m(100.0)
    for r in range(16): e.i(f'v_add_f32 v{SB[0] + r}, v{vMX[0]}, v{SB[0] + r}')
    e.raw(f'''
s_mov_b32 s{sRDY}, 0
s_mov_b32 s{sIT}, 0
s_mov_b32 s{sREC8}, {8 * REC}
s_waitcnt lgkmcnt(0)
''')
    e.stamp()
    e.raw('.p2align 6')
    e.label('KB_LOOP')
    e.raw(f'''
s_cmp_eq_u32 s{sIT}, 3
s_cselect_b32 s{sINC}, {(-(KVL0 + 24 * REC)) & 0xffffffff:#x}, s{sREC8}
''')
    def step(tt, q):
        kb = tt & 1
        s = SB[q]; sn = SB[q ^ 1]
        kn = KF[kb] if q == 0 else KF[kb ^ 1]
        ex = lambda r: e.i(f'v_exp_f32 v{s + r}, v{s + r}')
        cv = lambda c: e.i(f'v_cvt_pk_bf16_f32 v{P + c}, v{s + 2 * c}, v{s + 2 * c + 1}')
        off = (tt + 1) * REC
        if tt == 7:
            off = 0
            if q == 0:
                e.i(f'v_add_u32 v{vK1}, s{sINC}, v{vK1}')
                e.i(f'v_add_u32 v{vK2}, s{sINC}, v{vK2}')
            else:
                e.i(f'v_add_u32 v{vV}, s{sINC}, v{vV}')
        if q == 1: e.i('s_waitcnt lgkmcnt(0)')
        e.i(f'v_mfma_f32_32x32x16_bf16 {vr(sn, 16)}, {vr(kn)}, {vr(Q1[q ^ 1])}, 0')
        if q == 0:
            e.i(f'ds_read_b128 {vr(KF[kb ^ 1])}, v{vK1} offset:{off}')
            e.i(f'ds_read_b32 v{KF[kb ^ 1] + 4}, v{vK2} offset:{off + K2_IN}')
        else:
            if 'noex' not in EXP: e.i(f's_mov_b64 exec, {sr(sVM, 2)}')
            e.i(f'ds_read_b128 {vr(VF[kb ^ 1])}, v{vV} offset:{off + V_IN}')
            e.i(f'ds_read_b128 {vr(VF[kb ^ 1] + 4)}, v{vV} offset:{off + V_IN + 576}')
            if 'noex' not in EXP: e.i('s_mov_b64 exec, -1')
        ex(0); ex(1); ex(2); cv(0); ex(3)
        vp = VF[kb ^ 1] if q == 0 else VF[kb]
        e.i(f'v_mfma_f32_32x32x16_bf16 {vr(O[q ^ 1], 16)}, {vr(vp + 4)}, {vr(P + 4)}, {vr(O[q ^ 1], 16)}')
        ex(4); cv(1); ex(5); ex(6); cv(2); ex(7)
        e.i(f'v_mfma_f32_32x32x8_bf16 {vr(sn, 16)}, {vr(kn + 4, 2)}, {vr(Q2[q ^ 1], 2)}, {vr(sn, 16)}')
        ex(8); cv(3); ex(9); ex(10); cv(4); ex(11)
        if q == 0: e.i('s_waitcnt lgkmcnt(2)')
        e.i(f'v_mfma_f32_32x32x16_bf16 {vr(O[q], 16)}, {vr(VF[kb])}, {vr(P)}, {vr(O[q], 16)}')
        ex(12); cv(5); ex(13); ex(14); ex(15); cv(6); cv(7)
    for tt in range(8):
        step(tt, 0); step(tt, 1)
        if tt == HFT:
            e.i(f's_cmp_lg_u32 s{sIT}, 1')
            e.i('s_cbranch_scc1 KB_NOHF')
            e.i('s_waitcnt vmcnt(0)')
            hflag(t0)
            e.label('KB_NOHF')
        t_lim = (8 * fa.NKV * 1024) // REC - 2
        if fa.NKV < 9 and tt == t_lim % 8:
            e.i(f's_cmp_lg_u32 s{sIT}, {t_lim // 8}')
            e.i('s_cbranch_scc1 KB_KV1_OK')
            wait4('KB_KV1', 4, t0, 12, 1)
        if tt == 5:
            e.i(f's_cmp_lg_u32 s{sIT}, 3')
            e.i('s_cbranch_scc1 KB_KVW_OK')
            wait4('KB_KVW', 0, t0, 12, 1)
        if tt == 3:
            e.i(f's_cmp_lg_u32 s{sIT}, 4')
            e.i('s_cbranch_scc1 KB_NOAP')
            post(2, 1, 12, 13)
            e.i('s_waitcnt lgkmcnt(0)')
            e.label('KB_NOAP')
    e.raw(f'''
s_add_u32 s{sIT}, s{sIT}, 1
s_cmp_lt_u32 s{sIT}, 8
s_cbranch_scc1 KB_LOOP
v_mfma_f32_32x32x16_bf16 {vr(O[1], 16)}, {vr(VF[1] + 4)}, {vr(P + 4)}, {vr(O[1], 16)}
s_waitcnt lgkmcnt(0)
''')
    e.i('s_nop 3')
    e.stamp()
    for k in range(2): e.i(f'v_mul_f32 v{t0 + k}, 0, v{O[0] + k}')
    for r in range(2, 11): e.i(f'v_fma_f32 v{t0 + (r & 1)}, v{O[0] + r}, 0, v{t0 + (r & 1)}')
    e.i(f'v_rcp_f32 v{t4}, v{O[0] + 10}')
    for r in range(11): e.i(f'v_fma_f32 v{t0 + (r & 1)}, v{O[1] + r}, 0, v{t0 + (r & 1)}')
    e.raw(f'''
v_rcp_f32 v{t5}, v{O[1]+10}
v_max_f32 v{t2}, v{O[0]+10}, v{O[1]+10}
v_min_f32 v{t3}, v{O[0]+10}, v{O[1]+10}
v_add_f32 v{t0}, v{t0}, v{t1}
v_cmp_lt_f32 vcc, {f32(2.0 ** 110)}, v{t2}
v_cmp_neq_f32 {sr(sT0, 2)}, 0, v{t0}
s_or_b64 {sr(sT0, 2)}, {sr(sT0, 2)}, vcc
v_cmp_gt_f32 vcc, {f32(2.0 ** -104)}, v{t3}
s_or_b64 {sr(sT0, 2)}, {sr(sT0, 2)}, vcc
s_cbranch_scc1 KB_REDO
KB_SAFE:
''')
    for q in range(2):
        for r in range(10): e.i(f'v_mul_f32 v{O[q] + r}, v{t4 + q}, v{O[q] + r}')
        for c in range(5): e.i(f'v_cvt_pk_bf16_f32 v{SB[q] + c}, v{O[q] + 2 * c}, v{O[q] + 2 * c + 1}')
        for c in range(5): e.i(f'v_min_u32 v{SB[q] + c}, -2, v{SB[q] + c}')
        e.i(f'buffer_store_dwordx4 {vr(SB[q])}, v{vOA}, {sr(sWS)}, s{sOA} offen offset:{q * 2048}{OSC}')
        e.i(f'buffer_store_dword v{SB[q] + 4}, v{vOC}, {sr(sWS)}, s{sOC} offen offset:{q * 2048}{OSC}')
    post(3, 1, 12, 13)
    if 'plaino' in EXP:
        e.i('s_waitcnt vmcnt(0)')
        e.i('buffer_wbl2 sc1')
    e.stamp()
    e.raw(f'''
v_and_b32 v{t5}, 15, v0
s_mov_b32 s{sOUT}, s64
s_mov_b32 s{sOUT+1}, s65
s_mov_b32 s{sOUT+2}, {2048 * 1152}
s_mov_b32 s{sOUT+3}, 0x00020000
s_lshl_b32 s{sT0}, s{sODD}, 1
s_add_u32 s{sT0}, s{sT0}, s{sW4}
s_and_b32 s{sT0}, s{sT0}, 3
s_lshl_b32 s{sT1}, s{sTG}, 2
s_add_u32 s{sT0}, s{sT0}, s{sT1}
s_mul_i32 s{sXM}, s{sT0}, {16 * 1152}
s_lshr_b32 s{sT1}, s{sCG}, 1
s_mul_i32 s{sT1}, s{sT1}, 288
s_add_u32 s{sXM}, s{sXM}, s{sT1}
s_add_u32 s{sXS}, s{sXM}, 128
s_cmp_gt_u32 s{sW4}, 1
s_cselect_b32 s{sXS}, 0x7f000000, s{sXS}
s_mul_i32 s{sT2}, s{sODD}, 160
s_add_u32 s{sXM}, s{sXM}, s{sT2}
v_mul_u32_u24 v{vXO}, 1152, v{t5}
v_lshrrev_b32 v{t3}, 4, v0
v_lshl_add_u32 v{vXO}, v{t3}, 3, v{vXO}
s_lshl_b32 s{sT2}, s{sW4}, 10
s_add_u32 s{sT2}, s{sT2}, {FP_OFF}
v_lshl_add_u32 v{vP0}, v0, 4, s{sT2}
v_add_u32 v{vP1}, 36864, v{vP0}
''')
    for nb in range(4):
        e.i(f'buffer_load_dwordx2 {vr(XR + 2 * nb, 2)}, v{vXO}, {sr(sX)}, s{sXM} offen offset:{nb * 32}')
    e.i(f'buffer_load_dwordx2 {vr(XR + 8, 2)}, v{vXO}, {sr(sX)}, s{sXS} offen')
    wait4('KB_FW', 1, t0, 12, 2)
    R = lambda nb, w: 156 + (nb * 4 + w) * 4
    G = lambda nb: R(nb, 0)
    R2 = lambda nb, w: 56 + (nb * 4 + w) * 4
    def red(RR):
        e.lg = []; e.lg_done = 0
        for nb in range(5):
            for w in range(4):
                e.lgop(f'ds_read_b128 {vr(RR(nb, w))}, v{vP0 if w < 2 else vP1} offset:{(w & 1) * 18432 + nb * 4096}', ('r', nb))
    def red2(RR, nb):
        e.need(lg=[('r', nb)])
        for r in range(4): e.i(f'v_add_f32 v{RR(nb, 0) + r}, v{RR(nb, 0) + r}, v{RR(nb, 1) + r}')
        for r in range(4): e.i(f'v_add_f32 v{RR(nb, 2) + r}, v{RR(nb, 2) + r}, v{RR(nb, 3) + r}')
        for r in range(4): e.i(f'v_add_f32 v{RR(nb, 0) + r}, v{RR(nb, 0) + r}, v{RR(nb, 2) + r}')
    red(R)
    for nb in range(5):
        red2(R, nb)
        for r in range(4): e.i(f'v_mul_f32 v{R(nb, 1) + r}, {f32(-LOG2E)}, v{G(nb) + r}')
        for r in range(4): e.i(f'v_exp_f32 v{R(nb, 1) + r}, v{R(nb, 1) + r}')
        for r in range(4): e.i(f'v_add_f32 v{R(nb, 1) + r}, 1.0, v{R(nb, 1) + r}')
        for r in range(4): e.i(f'v_rcp_f32 v{R(nb, 1) + r}, v{R(nb, 1) + r}')
        for r in range(4): e.i(f'v_mul_f32 v{G(nb) + r}, v{G(nb) + r}, v{R(nb, 1) + r}')
    e.i('s_waitcnt vmcnt(0)')
    for nb in range(5):
        e.i(f'v_lshlrev_b32 v{R(nb, 1)}, 16, v{XR + 2 * nb}')
        e.i(f'v_and_b32 v{R(nb, 1) + 1}, 0xffff0000, v{XR + 2 * nb}')
        e.i(f'v_lshlrev_b32 v{R(nb, 1) + 2}, 16, v{XR + 2 * nb + 1}')
        e.i(f'v_and_b32 v{R(nb, 1) + 3}, 0xffff0000, v{XR + 2 * nb + 1}')
    e.i(f'v_add_u32 v{vP0}, {(SP_OFF - FP_OFF) & 0xffffffff:#x}, v{vP0}')
    e.i(f'v_add_u32 v{vP1}, {(SP_OFF - FP_OFF) & 0xffffffff:#x}, v{vP1}')
    e.stamp()
    e.i('s_barrier')
    e.stamp()
    red(R2)
    for nb in range(5):
        red2(R2, nb)
        for r in range(4): e.i(f'v_fma_f32 v{R(nb, 1) + r}, v{R2(nb, 0) + r}, v{G(nb) + r}, v{R(nb, 1) + r}')
        e.i(f'v_cvt_pk_bf16_f32 v{R(nb, 2)}, v{R(nb, 1)}, v{R(nb, 1) + 1}')
        e.i(f'v_cvt_pk_bf16_f32 v{R(nb, 2) + 1}, v{R(nb, 1) + 2}, v{R(nb, 1) + 3}')
        if nb < 4:
            e.i(f'buffer_store_dwordx2 {vr(R(nb, 2), 2)}, v{vXO}, {sr(sOUT)}, s{sXM} offen offset:{nb * 32}{OUTF}')
        else:
            e.i(f'buffer_store_dwordx2 {vr(R(nb, 2), 2)}, v{vXO}, {sr(sOUT)}, s{sXS} offen{OUTF}')
    if STAMPS: e.drain(vm=True)
    e.stamp(); e.stamp(True)
    e.stamp_flush(sWS, sWAVE, STAMP_A)
    e.label('KB_END')
    e.i('s_endpgm')

    e.label('KB_REDO')
    e.raw(f'''
v_lshlrev_b32 v{vK1}, 4, v0
v_and_b32 v{t0}, 31, v0
v_lshlrev_b32 v{vK2}, 2, v{t0}
v_lshrrev_b32 v{t1}, 5, v0
v_mul_u32_u24 v{vV}, 288, v{t1}
v_lshl_add_u32 v{vV}, v{t0}, 4, v{vV}
s_mov_b32 s{sT0}, {KV_OFF}
''')
    for q in range(2):
        e.i(f'v_mov_b32 v{Q2[q] + 1}, 0')
        e.i(f'v_mov_b32 v{vMX[q]}, 0xff800000')
    e.label('KB_RM')
    e.raw(f'''
buffer_load_dwordx4 {vr(KF[0])}, v{vK1}, {sr(sWS)}, s{sT0} offen sc1
buffer_load_dword v{KF[0]+4}, v{vK2}, {sr(sWS)}, s{sT0} offen offset:{K2_IN} sc1
s_waitcnt vmcnt(0)
''')
    qk(0, KF[0]); qk(1, KF[0])
    e.i('s_nop 11')
    for q in range(2):
        for r in range(0, 16, 2):
            e.i(f'v_max3_f32 v{vMX[q]}, v{SB[q] + r}, v{SB[q] + r + 1}, v{vMX[q]}')
    e.raw(f'''
s_add_u32 s{sT0}, s{sT0}, {REC}
s_cmp_lt_u32 s{sT0}, {KV_OFF + 64 * REC}
s_cbranch_scc1 KB_RM
s_mov_b32 s{sT0}, {KV_OFF}
''')
    set_m(0.0)
    for r in range(32): e.i(f'v_mov_b32 v{O[0] + r}, 0')
    e.label('KB_RP')
    e.raw(f'''
buffer_load_dwordx4 {vr(KF[0])}, v{vK1}, {sr(sWS)}, s{sT0} offen sc1
buffer_load_dword v{KF[0]+4}, v{vK2}, {sr(sWS)}, s{sT0} offen offset:{K2_IN} sc1
s_mov_b64 exec, {sr(sVM, 2)}
buffer_load_dwordx4 {vr(VF[0])}, v{vV}, {sr(sWS)}, s{sT0} offen offset:{V_IN} sc1
buffer_load_dwordx4 {vr(VF[0]+4)}, v{vV}, {sr(sWS)}, s{sT0} offen offset:{V_IN + 576} sc1
s_mov_b64 exec, -1
s_waitcnt vmcnt(0)
''')
    qk(0, KF[0]); qk(1, KF[0])
    e.i('s_nop 11')
    for q in range(2):
        for r in range(16): e.i(f'v_exp_f32 v{SB[q] + r}, v{SB[q] + r}')
        for c in range(8): e.i(f'v_cvt_pk_bf16_f32 v{P + c}, v{SB[q] + 2 * c}, v{SB[q] + 2 * c + 1}')
        e.i('s_nop 1')
        e.i(f'v_mfma_f32_32x32x16_bf16 {vr(O[q], 16)}, {vr(VF[0])}, {vr(P)}, {vr(O[q], 16)}')
        e.i(f'v_mfma_f32_32x32x16_bf16 {vr(O[q], 16)}, {vr(VF[0] + 4)}, {vr(P + 4)}, {vr(O[q], 16)}')
    e.raw(f'''
s_add_u32 s{sT0}, s{sT0}, {REC}
s_cmp_lt_u32 s{sT0}, {KV_OFF + 64 * REC}
s_cbranch_scc1 KB_RP
s_nop 11
v_rcp_f32 v{t4}, v{O[0]+10}
v_rcp_f32 v{t5}, v{O[1]+10}
s_nop 0
s_branch KB_SAFE
''')
    e.lines += gemm_lines
```
